```python
import torch

def _softmax(x, axis=-1):
    return torch.softmax(x, dim=axis)
def _gelu(x):
    return torch.nn.functional.gelu(x, approximate="tanh")
def _silu(x):
    return torch.nn.functional.silu(x)
def _sigmoid(x):
    return torch.sigmoid(x)
def _layernorm(x, axis=-1, eps=1e-5):
    m = x.mean(dim=axis, keepdim=True)
    v = x.var(dim=axis, keepdim=True, unbiased=False)
    return (x - m) / torch.sqrt(v + eps)
def _scatter_add(tgt, idx, src, axis=0):
    return tgt.clone().index_add_(axis, idx, src)
def _segment_sum(src, seg, n):
    out = torch.zeros((n,) + src.shape[1:], dtype=src.dtype)
    return out.index_add_(0, seg, src)
def _pad(x, pw):
    flat = tuple(v for pair in reversed(pw) for v in pair)
    return torch.nn.functional.pad(x, flat)

kernel_name = 'interleave_layers__gqa_block_cached__glu_gated_reglu__decode'

def setup_inputs():

    _w = (lambda a: (lambda t: t.to(torch.bfloat16) if t.is_floating_point() else t)(torch.as_tensor(a)))
    def _A_setup():
        B, Sq, D = 1, 1, 512
        Hq, Hkv, Sk, Dh = 32, 8, 65536, 128
        assert Hq % Hkv == 0, (Hq, Hkv)
        return {
            "x": _w((lambda *s: torch.randn(*s, dtype=torch.bfloat16) * 0.05)(B, Sq, D)),
            "k_cache": _w((lambda *s: torch.randn(*s, dtype=torch.bfloat16) * 0.8)(B, Hkv, Sk, Dh)),
            "v_cache": _w((lambda *s: torch.randn(*s, dtype=torch.bfloat16) * 1.6)(B, Hkv, Sk, Dh)),
            "wq": _w((lambda *s: torch.randn(*s, dtype=torch.bfloat16) * 0.8)(D, Hq * Dh) * (D ** -0.5)),
            "wo": _w((lambda *s: torch.randn(*s, dtype=torch.bfloat16) * 1.6)(Hq * Dh, D) * ((Hq * Dh) ** -0.5)),
        }
    _A_in = _A_setup()

    def _B_setup():
        B, S, D, F = 1, 1, 512, 1792
        return {
            "x": _w((lambda *s: torch.randn(*s, dtype=torch.bfloat16) * 0.05)(B, S, D)),
            "W_gate": _w((lambda *s: torch.randn(*s, dtype=torch.bfloat16) * 0.2)(D, F) * (2.0 / D) ** 0.5),
            "W_up": _w((lambda *s: torch.randn(*s, dtype=torch.bfloat16) * 0.2)(D, F) * (2.0 / D) ** 0.5),
            "W_down": _w((lambda *s: torch.randn(*s, dtype=torch.bfloat16) * 0.2)(F, D) * (1.0 / F) ** 0.5),
        }
    _B_in = _B_setup()

    return {
        "A_x": _A_in["x"],
        "A_k_cache": _A_in["k_cache"],
        "A_v_cache": _A_in["v_cache"],
        "A_wq": _A_in["wq"],
        "A_wo": _A_in["wo"],
        "B_x": _B_in["x"],
        "B_W_gate": _B_in["W_gate"],
        "B_W_up": _B_in["W_up"],
        "B_W_down": _B_in["W_down"],
    }

def reference(A_x, A_k_cache, A_v_cache, A_wq, A_wo, B_x, B_W_gate, B_W_up, B_W_down):
    def _A_ref(x, k_cache, v_cache, wq, wo):
        B, Sq, D = x.shape
        Hq, Dh = 32, 128
        Hkv = k_cache.shape[1]
        rep = Hq // Hkv
        q = (lambda x, *d: x.permute(*d))((x @ wq).reshape(B, Sq, Hq, Dh), 0, 2, 1, 3)
        k = (lambda x, n, axis: torch.repeat_interleave(x, n, dim=axis))(k_cache, rep, axis=1)
        v = (lambda x, n, axis: torch.repeat_interleave(x, n, dim=axis))(v_cache, rep, axis=1)
        scores = torch.einsum("bhqd,bhkd->bhqk", q, k) * (Dh ** -0.5)
        p = _softmax(scores, axis=-1)
        o = torch.einsum("bhqk,bhkd->bhqd", p, v)
        return (lambda x, *d: x.permute(*d))(o, 0, 2, 1, 3).reshape(B, Sq, Hq * Dh) @ wo

    def _B_ref(x, W_gate, W_up, W_down):
        gate = torch.einsum("bsd,df->bsf", x, W_gate)
        up = torch.einsum("bsd,df->bsf", x, W_up)
        gate = gate * (lambda x, dt: x.to(dt))(gate > 0, gate.dtype)
        h = gate * up
        return torch.einsum("bsf,fd->bsd", h, W_down)

    x = A_x
    x = x + _A_ref(_layernorm(x, axis=-1), A_k_cache, A_v_cache, A_wq, A_wo)
    x = x + _B_ref(_layernorm(x, axis=-1), B_W_gate, B_W_up, B_W_down)
    x = x + _A_ref(_layernorm(x, axis=-1), A_k_cache, A_v_cache, A_wq, A_wo)
    x = x + _B_ref(_layernorm(x, axis=-1), B_W_gate, B_W_up, B_W_down)
    return x
```

```python
import re

TRANS = ("v_exp_f32", "v_log_f32", "v_rcp_f32", "v_rsq_f32", "v_sqrt_f32", "v_sin_f32", "v_cos_f32")


def regs_of(tok):
    tok = tok.strip()
    if tok.startswith("-"):
        tok = tok[1:]
    m = re.fullmatch(r"abs\((.*)\)", tok)
    if m:
        tok = m.group(1)
    m = re.fullmatch(r"([vas])(\d+)", tok)
    if m:
        return {(m.group(1), int(m.group(2)))}
    m = re.fullmatch(r"([vas])\[(\d+):(\d+)\]", tok)
    if m:
        return {(m.group(1), i) for i in range(int(m.group(2)), int(m.group(3)) + 1)}
    if tok in ("vcc", "vcc_lo", "vcc_hi"):
        return {("vcc", 0)}
    if tok == "m0":
        return {("m0", 0)}
    if tok == "exec":
        return {("exec", 0)}
    return set()


class Ins:
    __slots__ = ("kind", "w", "r", "rc", "op", "store_data")

    def __init__(self, kind, w=(), r=(), rc=(), op="", store_data=()):
        self.kind = kind
        self.w = set(w)
        self.r = set(r)
        self.rc = set(rc)
        self.op = op
        self.store_data = set(store_data)


class Asm:
    def __init__(self):
        self.lines = []
        self.hist = []

    def raw(self, text):
        self.lines.append(text)

    def comment(self, text):
        self.lines.append("  ; " + text)

    def label(self, name, pad=True):
        if pad:
            self.nop(10)
        self.lines.append(name + ":")

    def nop(self, n):
        while n > 0:
            k = min(n, 16)
            self.lines.append(f"  s_nop {k-1}")
            self.hist.append((Ins("nop"), k))
            n -= k
        self.hist = self.hist[-40:]

    def _need(self, new, is_dpp=False, is_perm=False, is_rdlane=False, lanesel=(), ldsdma=False):
        need = 0
        dist = 0
        vg = lambda s: {x for x in s if x[0] in ("v", "a")}
        sg = lambda s: {x for x in s if x[0] in ("s", "vcc")}
        for ins, st in reversed(self.hist):
            req = 0
            k = ins.kind
            if k in ("valu", "trans", "dot"):
                wv = vg(ins.w)
                ws = sg(ins.w)
                if is_dpp and wv & new.r:
                    req = max(req, 2)
                if is_perm and wv & new.r:
                    req = max(req, 2)
                if is_rdlane and wv & new.r:
                    req = max(req, 1)
                if k == "trans" and new.kind in ("valu", "dot") and wv & new.r:
                    req = max(req, 1)
                if k == "dot" and new.kind != "nop" and new.op != ins.op and (wv & (new.r | new.w)):
                    req = max(req, 3)
                if k == "dot" and new.op == ins.op and (wv & (new.r - new.rc)):
                    req = max(req, 3)
                if new.kind == "mfma" and wv & new.r:
                    req = max(req, 2)
                if ws and new.kind in ("valu", "trans", "dot") and ws & new.r:
                    req = max(req, 2)
                if ws and new.kind == "vmem" and ws & new.r:
                    req = max(req, 5)
                if ws and lanesel and ws & set(lanesel):
                    req = max(req, 4)
                if ws and new.kind == "salu" and ws & new.r:
                    req = max(req, 1)
                if ("exec", 0) in ins.w:
                    req = max(req, 5)
            if k == "mfma":
                d = ins.w
                if new.kind == "mfma":
                    ab = new.r - new.rc
                    if d & ab:
                        req = max(req, 8)
                    if d & new.rc and d != new.rc:
                        req = max(req, 6)
                    if d & new.w and d != new.w:
                        req = max(req, 8)
                elif new.kind in ("valu", "trans", "dot", "vmem", "ds"):
                    if d & (new.r | new.w):
                        req = max(req, 8)
                if new.kind in ("valu", "trans", "dot") and ins.rc & new.w:
                    req = max(req, 3)
            if k == "salu" and ("m0", 0) in ins.w and ldsdma:
                req = max(req, 1)
            if k == "vmem" and ins.store_data and (ins.store_data & new.w):
                req = max(req, 2)
            if req > dist:
                need = max(need, req - dist)
            dist += st
            if dist > 24:
                break
        return need

    def _push(self, text, ins, **kw):
        n = self._need(ins, **kw)
        if n:
            self.nop(n)
        self.lines.append("  " + text)
        self.hist.append((ins, 1))
        self.hist = self.hist[-40:]

    def v(self, op, *ops, mods=""):
        ops = [str(o) for o in ops]
        text = op + " " + ", ".join(ops) + ((" " + mods) if mods else "")
        base = op.replace("_dpp", "").replace("_e32", "").replace("_e64", "")
        w = regs_of(ops[0])
        r = set()
        for o in ops[1:]:
            r |= regs_of(o)
        is_dpp = ("quad_perm" in mods) or ("row_" in mods)
        is_perm = base.startswith("v_permlane")
        is_rd = base in ("v_readlane_b32", "v_readfirstlane_b32")
        lanesel = ()
        rc = set()
        kind = "valu"
        if base in TRANS:
            kind = "trans"
        if base.startswith("v_dot2"):
            kind = "dot"
            rc = regs_of(ops[3])
        if base.startswith("v_fmac") or is_dpp:
            r |= w
        if is_perm:
            w |= regs_of(ops[1])
            r |= regs_of(ops[0])
        if base == "v_cndmask_b32" and len(ops) == 3:
            r |= {("vcc", 0)}
        if base in ("v_add_co_u32", "v_addc_co_u32"):
            w |= regs_of(ops[1])
        if base == "v_readlane_b32":
            lanesel = regs_of(ops[2])
        self._push(text, Ins(kind, w, r, rc, base), is_dpp=is_dpp, is_perm=is_perm, is_rdlane=is_rd, lanesel=lanesel)

    def dpp(self, op, dst, s0, s1=None, ctrl=""):
        mods = ctrl + " row_mask:0xf bank_mask:0xf"
        if s1 is None:
            self.v(op + "_dpp", dst, s0, mods=mods)
        else:
            self.v(op + "_dpp", dst, s0, s1, mods=mods)

    def mfma(self, d, a, b, c):
        text = f"v_mfma_f32_16x16x32_bf16 {d}, {a}, {b}, {c}"
        rc = regs_of(str(c))
        self._push(text, Ins("mfma", regs_of(d), regs_of(a) | regs_of(b) | rc, rc, "mfma"))

    def s(self, op, *ops):
        ops = [str(o) for o in ops]
        text = op + (" " + ", ".join(ops) if ops else "")
        w = regs_of(ops[0]) if ops and not op.startswith(("s_cmp", "s_cbranch", "s_branch", "s_waitcnt", "s_barrier", "s_sleep", "s_setprio")) else set()
        r = set()
        for o in ops[1:] if w else ops:
            r |= regs_of(o)
        if op.startswith("s_cbranch_vcc"):
            r |= {("vcc", 0)}
        self._push(text, Ins("salu", w, r, op=op))

    def wait(self, vm=None, lgkm=None):
        parts = []
        if vm is not None:
            assert 0 <= vm <= 63
            parts.append(f"vmcnt({vm})")
        if lgkm is not None:
            assert 0 <= lgkm <= 15
            parts.append(f"lgkmcnt({lgkm})")
        self._push("s_waitcnt " + " ".join(parts), Ins("other"))

    def barrier(self):
        self._push("s_barrier", Ins("other"))

    def bload(self, width, dst, voff, srd, soff, offset=0, flags=""):
        sfx = {1: "", 2: "x2", 4: "x4"}[width]
        assert 0 <= offset <= 4095, offset
        text = f"buffer_load_dword{sfx} {dst}, {voff}, {srd}, {soff} offen"
        if offset:
            text += f" offset:{offset}"
        if flags:
            text += " " + flags
        self._push(text, Ins("vmem", regs_of(dst), regs_of(voff) | regs_of(srd) | regs_of(str(soff))))

    def bload_lds(self, voff, srd, soff, offset=0, flags=""):
        assert 0 <= offset <= 4095, offset
        text = f"buffer_load_dwordx4 {voff}, {srd}, {soff} offen"
        if offset:
            text += f" offset:{offset}"
        if flags:
            text += " " + flags
        text += " lds"
        self._push(text, Ins("vmem", (), regs_of(voff) | regs_of(srd) | regs_of(str(soff))), ldsdma=True)

    def bstore(self, width, data, voff, srd, soff, offset=0, flags=""):
        sfx = {1: "", 2: "x2", 4: "x4"}[width]
        assert 0 <= offset <= 4095, offset
        text = f"buffer_store_dword{sfx} {data}, {voff}, {srd}, {soff} offen"
        if offset:
            text += f" offset:{offset}"
        if flags:
            text += " " + flags
        self._push(text, Ins("vmem", (), regs_of(data) | regs_of(voff) | regs_of(srd) | regs_of(str(soff)),
                             store_data=regs_of(data)))

    def ds_read(self, width, dst, addr, offset=0):
        sfx = {1: "b32", 2: "b64", 4: "b128"}[width]
        assert 0 <= offset <= 65535
        text = f"ds_read_{sfx} {dst}, {addr}" + (f" offset:{offset}" if offset else "")
        self._push(text, Ins("ds", regs_of(dst), regs_of(addr)))

    def ds_write(self, width, addr, data, offset=0):
        sfx = {1: "b32", 2: "b64", 4: "b128"}[width]
        assert 0 <= offset <= 65535
        text = f"ds_write_{sfx} {addr}, {data}" + (f" offset:{offset}" if offset else "")
        self._push(text, Ins("ds", (), regs_of(addr) | regs_of(data)))

    def ds_bpermute(self, dst, addr, src):
        self._push(f"ds_bpermute_b32 {dst}, {addr}, {src}", Ins("ds", regs_of(dst), regs_of(addr) | regs_of(src)))

    def text(self):
        return "\n".join(self.lines) + "\n"


def vr(b, n=1):
    return f"v{b}" if n == 1 else f"v[{b}:{b+n-1}]"


def ar(b, n=1):
    return f"a{b}" if n == 1 else f"a[{b}:{b+n-1}]"


def sr(b, n=1):
    return f"s{b}" if n == 1 else f"s[{b}:{b+n-1}]"
```

```python
import sys
from asmlib import *

NAME = "interleave_layers__gqa_block_cached__glu_gated_reglu__decode"
EMU_ROUND = True

LSTR = 0x100000
QB, DP, ML, HB, YP, PO, ZONE = 0x0, 0x2000, 0x4000, 0x6000, 0x8000, 0x10000, 0x90000
Q0 = 0x200000
WS_BYTES = 0x300000

SC_O = 0
SC_ML = 8192
SC_R1 = 8448
SC_R2 = 8576
SC_R3 = 8704
SC_R4 = 8832
SC_GD = 8960
SC_GO = 9216
SC_GG = 11264
SC_GQ = 12288
SC_X = 13312
SC_END = 15360

S_K, S_V, S_WQ, S_WO, S_WG, S_WU, S_WD, S_WS, S_X, S_OUT = [sr(8 + 4 * i, 4) for i in range(10)]
sWG, sWV = "s2", "s3"
sLAYER, sKVB, sRLB, sT0, sT1, sLAY, sQB, sTO = "s48", "s49", "s50", "s51", "s52", "s53", "s54", "s55"
sC, sLOG2E, sSELLO, sSELHI, sT2, sLDSW, sT3, sT4 = "s56", "s57", "s58", "s59", "s60", "s61", "s62", "s63"
SW0 = 64

vTID, vKOFF, vVOFF, vLDS = "v0", "v1", "v2", "v3"
vX0, vX1 = "v4", "v5"
vM, vL = "v6", "v7"
VQ = 8
VP = 12
VPB = (16, 20)
vT = [f"v{24+i}" for i in range(8)]
VO = 32
VD = 64
VTMP = 96
VV = 128

RAW_O, RAW_G, RAW_Q, RAW_D = 32, 48, 64, 80
UU = 96
GATH = list(range(8, 24)) + list(range(32, 48))

C_SCALE = 0x3DB504F3
LOG2E = 0x3FB8AA3B
SENT_FIX = "0xfffffffe"


def f32bits(x):
    import struct
    return struct.unpack("<I", struct.pack("<f", x))[0]


assert f32bits(128 ** -0.5) == C_SCALE, hex(f32bits(128 ** -0.5))


def set_exec(a, lo, hi):
    a.s("s_mov_b32", "exec_lo", hex(lo))
    a.s("s_mov_b32", "exec_hi", hex(hi))


def exec_all(a):
    a.s("s_mov_b64", "exec", "-1")


def round_pair(a, x0, x1, tmp):
    a.v("v_cvt_pk_bf16_f32", tmp, x0, x1)
    a.v("v_lshlrev_b32", x0, 16, tmp)
    a.v("v_and_b32", x1, "0xffff0000", tmp)


def round_one(a, x0, tmp):
    a.v("v_cvt_pk_bf16_f32", tmp, x0, x0)
    a.v("v_lshlrev_b32", x0, 16, tmp)


def row_allreduce(a, op, regs):
    for ctrl in ("quad_perm:[1,0,3,2]", "quad_perm:[2,3,0,1]", "row_half_mirror", "row_mirror"):
        for r in regs:
            a.dpp(op, r, r, r, ctrl=ctrl)


def prologue_common(a, lbl_end):
    a.s("s_cmp_ge_u32", sWG, 256)
    a.s("s_cbranch_scc1", lbl_end)
    a.raw("  s_load_dwordx16 s[64:79], s[0:1], 0")
    a.raw("  s_load_dwordx8 s[80:87], s[0:1], 64")
    a.v("v_lshrrev_b32", vT[0], 6, vTID)
    a.v("v_readfirstlane_b32", sWV, vT[0])
    a.raw("  s_waitcnt lgkmcnt(0)")
    srds = [(8, 66, 0x8000000), (12, 68, 0x8000000), (16, 70, 0x400000), (20, 72, 0x400000),
            (24, 76, 512 * 1792 * 2), (28, 78, 512 * 1792 * 2), (32, 80, 1792 * 512 * 2),
            (36, 86, WS_BYTES), (40, 64, 1024), (44, 82, 1024)]
    for d, p, n in srds:
        a.s("s_mov_b32", sr(d), sr(p))
        a.s("s_and_b32", sr(d + 1), sr(p + 1), "0xffff")
        a.s("s_mov_b32", sr(d + 2), hex(n))
        a.s("s_mov_b32", sr(d + 3), "0x00020000")
    a.s("s_mov_b32", sC, hex(C_SCALE))
    a.s("s_mov_b32", sLOG2E, hex(LOG2E))
    a.s("s_mov_b32", sSELLO, "0x05040100")
    a.s("s_mov_b32", sSELHI, "0x07060302")
    a.s("s_mov_b32", sTO, hex(1 << 18))
    l = vT[0]
    a.v("v_and_b32", l, 63, vTID)
    a.v("v_lshlrev_b32", vVOFF, 4, l)
    a.v("v_bfe_u32", vT[1], l, 2, 2)
    a.v("v_lshlrev_b32", vKOFF, 8, vT[1])
    a.v("v_lshrrev_b32", vT[2], 4, l)
    a.v("v_lshl_add_u32", vKOFF, vT[2], 6, vKOFF)
    a.v("v_and_b32", vT[3], 3, l)
    a.v("v_lshl_add_u32", vKOFF, vT[3], 4, vKOFF)
    a.s("s_lshl_b32", sLDSW, sWV, 15)
    a.s("s_add_u32", sLDSW, sLDSW, 32768)
    a.v("v_add_u32", vLDS, sLDSW, vVOFF)


def load_x(a):
    a.v("v_lshlrev_b32", vT[4], 2, vTID)
    a.bload(1, vX0, vT[4], S_X, 0)


def unpack_x(a):
    a.v("v_and_b32", vX1, "0xffff0000", vX0)
    a.v("v_lshlrev_b32", vX0, 16, vX0)


def issue_w16(a, raw, which):
    if which == "Q":
        a.v("v_lshlrev_b32", vT[5], 14, vTID)
        a.s("s_lshl_b32", sT0, sWG, 5)
        a.s("s_add_u32", sT1, sT0, 8192)
        a.bload(4, vr(raw + 0, 4), vT[5], S_WQ, sT0, 0)
        a.bload(4, vr(raw + 4, 4), vT[5], S_WQ, sT1, 0)
        a.bload(4, vr(raw + 8, 4), vT[5], S_WQ, sT0, 16)
        a.bload(4, vr(raw + 12, 4), vT[5], S_WQ, sT1, 16)
    else:
        a.s("s_mov_b32", sT1, 7168)
        a.v("v_mul_lo_u32", vT[5], sT1, vTID)
        a.s("s_lshl_b32", sT0, sWG, 4)
        a.bload(4, vr(raw + 0, 4), vT[5], S_WG, sT0, 0)
        a.bload(4, vr(raw + 4, 4), vT[5], S_WG, sT0, 3584)
        a.bload(4, vr(raw + 8, 4), vT[5], S_WU, sT0, 0)
        a.bload(4, vr(raw + 12, 4), vT[5], S_WU, sT0, 3584)


def unpack(a, raw, n, dst):
    for i in range(n):
        a.v("v_lshlrev_b32", vr(dst + 2 * i), 16, vr(raw + i))
        a.v("v_and_b32", vr(dst + 2 * i + 1), "0xffff0000", vr(raw + i))


def lds_sum16(a, addr, base, stride, regs, out):
    for p in range(16):
        a.ds_read(1, regs[p], addr, base + p * stride)
    a.wait(lgkm=0)
    n = 16
    while n > 1:
        for i in range(n // 2):
            a.v("v_add_f32", regs[i], regs[i], regs[i + n // 2])
        n //= 2
    if out != regs[0]:
        a.v("v_mov_b32", out, regs[0])


def wg_allreduce_sum(a, sc, r_off, val, tq):
    row_allreduce(a, "v_add_f32", [val])
    a.v("v_lshrrev_b32", vT[6], 4, vTID)
    a.v("v_lshlrev_b32", vT[6], 2, vT[6])
    set_exec(a, 0x00010001, 0x00010001)
    a.ds_write(1, vT[6], val, sc + r_off)
    exec_all(a)
    a.wait(lgkm=0)
    a.barrier()
    a.v("v_mov_b32", vT[6], 0)
    for i in range(4):
        a.ds_read(4, vr(tq + 4 * i, 4), vT[6], sc + r_off + 16 * i)
    a.wait(lgkm=0)
    n = 16
    while n > 1:
        for i in range(n // 2):
            a.v("v_add_f32", vr(tq + i), vr(tq + i), vr(tq + i + n // 2))
        n //= 2
    a.v("v_mov_b32", val, vr(tq))


def layernorm(a, sc, r1, r2, tq, a0, a1):
    s, mean, d0, d1, tmp = vT[0], vT[1], vT[2], vT[3], vT[4]
    a.v("v_add_f32", s, vX0, vX1)
    wg_allreduce_sum(a, sc, r1, s, tq)
    a.v("v_mul_f32", mean, hex(f32bits(1.0 / 512)), s)
    a.v("v_sub_f32", d0, vX0, mean)
    a.v("v_sub_f32", d1, vX1, mean)
    a.v("v_mul_f32", s, d0, d0)
    a.v("v_fmac_f32", s, d1, d1)
    wg_allreduce_sum(a, sc, r2, s, tq)
    a.v("v_mul_f32", s, hex(f32bits(1.0 / 512)), s)
    round_pair(a, mean, s, tmp)
    a.v("v_add_f32", s, hex(f32bits(1e-5)), s)
    round_one(a, s, tmp)
    a.v("v_sqrt_f32", s, s)
    round_one(a, s, tmp)
    a.v("v_rcp_f32", s, s)
    a.v("v_sub_f32", a0, vX0, mean)
    a.v("v_sub_f32", a1, vX1, mean)
    round_pair(a, a0, a1, tmp)
    a.v("v_mul_f32", a0, a0, s)
    a.v("v_mul_f32", a1, a1, s)
    round_pair(a, a0, a1, tmp)


def gemv16(a, sc, scoff, acc, a0, a1, tq, out):
    for k in range(8):
        a.v("v_mul_f32", vr(acc + k), a0, vr(UU + k))
        a.v("v_mul_f32", vr(acc + 8 + k), a0, vr(UU + 16 + k))
    for k in range(8):
        a.v("v_fmac_f32", vr(acc + k), a1, vr(UU + 8 + k))
        a.v("v_fmac_f32", vr(acc + 8 + k), a1, vr(UU + 24 + k))
    row_allreduce(a, "v_add_f32", [vr(acc + k) for k in range(16)])
    a.v("v_lshrrev_b32", vT[6], 4, vTID)
    a.v("v_lshlrev_b32", vT[6], 6, vT[6])
    set_exec(a, 0x00010001, 0x00010001)
    for i in range(4):
        a.ds_write(4, vT[6], vr(acc + 4 * i, 4), sc + scoff + 16 * i)
    exec_all(a)
    a.wait(lgkm=0)
    a.barrier()
    a.v("v_and_b32", vT[6], 15, vTID)
    a.v("v_lshlrev_b32", vT[6], 2, vT[6])
    lds_sum16(a, vT[6], sc + scoff, 64, [vr(tq + i) for i in range(16)], out)


def q_publish(a, val, base_s):
    a.dpp("v_mov_b32", vT[1], val, ctrl="quad_perm:[1,1,3,3]")
    a.v("v_cvt_pk_bf16_f32", vT[1], val, vT[1])
    a.v("v_min_u32", vT[1], SENT_FIX, vT[1])
    a.v("v_and_b32", vT[2], 15, vTID)
    a.v("v_lshlrev_b32", vT[2], 1, vT[2])
    a.s("s_lshl_b32", sT0, sWG, 5)
    a.s("s_add_u32", sT0, sT0, base_s)
    set_exec(a, 0x00005555, 0)
    a.bstore(1, vT[1], vT[2], S_WS, sT0, 0, "sc1")
    exec_all(a)


_pollid = [0]


def poll(a, issue_loads, regs):
    _pollid[0] += 1
    n = _pollid[0]
    a.label(f"L_poll{n}")
    issue_loads()
    a.wait(vm=0)
    acc = vT[7]
    rs = list(regs)
    a.v("v_max_u32", acc, rs[0], rs[1] if len(rs) > 1 else rs[0])
    rs = rs[2:]
    while rs:
        if len(rs) >= 2:
            a.v("v_max3_u32", acc, acc, rs[0], rs[1])
            rs = rs[2:]
        else:
            a.v("v_max_u32", acc, acc, rs[0])
            rs = rs[1:]
    a.v("v_cmp_eq_u32", "vcc", -1, acc)
    a.nop(1)
    a.s("s_cbranch_vccz", f"L_pdone{n}")
    a.s("s_sub_u32", sTO, sTO, 1)
    a.s("s_cmp_le_i32", sTO, 0)
    a.s("s_cbranch_scc1", f"L_pdone{n}")
    a.s("s_sleep", 1)
    a.s("s_branch", f"L_poll{n}")
    a.label(f"L_pdone{n}")


def slot_kreg(s, i):
    return ar(32 * s + 4 * i, 4)


def slot_vraw(s, i):
    if s < 4:
        return vr(VV + 32 * s + 4 * i, 4)
    return ar(192 + 32 * (s - 4) + 4 * i, 4)


def issue_slot(a, s, sbase, toff):
    a.wait(vm=47)
    a.s("s_add_u32", sT0, sbase, toff)
    a.s("s_add_u32", sT1, sbase, toff + 4096)
    if s < 6:
        for i in range(8):
            a.bload(4, slot_kreg(s, i), vKOFF, S_K, sT0 if i < 4 else sT1, (i % 4) * 1024, "nt")
        for i in range(8):
            a.bload(4, slot_vraw(s, i), vVOFF, S_V, sT0 if i < 4 else sT1, (i % 4) * 1024, "nt")
    else:
        for half, (srd, voff) in enumerate(((S_K, vKOFF), (S_V, vVOFF))):
            for hi in range(2):
                a.s("s_add_u32", "m0", sLDSW, (s - 6) * 16384 + half * 8192 + hi * 4096)
                for i in range(4):
                    a.bload_lds(voff, srd, sT0 if hi == 0 else sT1, i * 1024, "nt")


def tile(a, s):
    a.comment(f"---- tile slot {s}")
    lds = s >= 6
    if lds:
        for i in range(8):
            a.ds_read(4, vr(VTMP + 4 * i, 4), vLDS, (s - 6) * 16384 + i * 1024)
        a.wait(lgkm=0)
        kf = lambda i: vr(VTMP + 4 * i, 4)
    else:
        kf = lambda i: slot_kreg(s, i)
    for i in range(8):
        a.mfma(vr(VD + 4 * i, 4), kf(i), vr(VQ, 4), 0)
    if lds:
        for i in range(8):
            a.ds_read(4, vr(VTMP + 4 * i, 4), vLDS, (s - 6) * 16384 + 8192 + i * 1024)
        vsrc = lambda i, d: vr(VTMP + 4 * i + d)
    elif s >= 4:
        for i in range(32):
            a.v("v_accvgpr_read_b32", vr(VTMP + i), ar(192 + 32 * (s - 4) + i))
        vsrc = lambda i, d: vr(VTMP + 4 * i + d)
    else:
        vsrc = lambda i, d: vr(VV + 32 * s + 4 * i + d)

    def perms(m):
        d = m // 2
        sel = sSELLO if m % 2 == 0 else sSELHI
        b = VPB[m % 2]
        for e in range(4):
            a.v("v_perm_b32", vr(b + e), vsrc(2 * e + 1, d), vsrc(2 * e, d), sel)

    if not lds:
        perms(0)
        perms(1)
    S = [vr(VD + 4 * i) for i in range(8)]
    for i in range(8):
        a.dpp("v_mov_b32", S[i], S[i], ctrl="quad_perm:[0,0,0,0]")
    for r in (1, 2, 3):
        for i in range(8):
            a.dpp("v_add_f32", S[i], vr(VD + 4 * i + r), S[i], ctrl=f"quad_perm:[{r},{r},{r},{r}]")
    if EMU_ROUND:
        for i in range(0, 8, 2):
            round_pair(a, S[i], S[i + 1], vr(VD + 4 * i + 1))
        for i in range(8):
            a.v("v_mul_f32", S[i], sC, S[i])
        for i in range(0, 8, 2):
            round_pair(a, S[i], S[i + 1], vr(VD + 4 * i + 1))
    else:
        for i in range(8):
            a.v("v_mul_f32", S[i], sC, S[i])
    tm, t2, alpha, mneg, ps = vT[0], vT[1], vT[2], vT[3], vT[4]
    a.v("v_max3_f32", tm, S[0], S[1], S[2])
    a.v("v_max3_f32", t2, S[3], S[4], S[5])
    a.v("v_max3_f32", tm, tm, S[6], S[7])
    a.v("v_max3_f32", tm, tm, t2, vM)
    a.v("v_mov_b32", t2, tm)
    a.v("v_permlane32_swap_b32", tm, t2)
    a.v("v_max_f32", tm, tm, t2)
    a.v("v_mov_b32", t2, tm)
    a.v("v_permlane16_swap_b32", tm, t2)
    a.v("v_max_f32", tm, tm, t2)
    a.v("v_sub_f32", alpha, vM, tm)
    a.v("v_mul_f32", alpha, sLOG2E, alpha)
    a.v("v_exp_f32", alpha, alpha)
    a.v("v_mov_b32", vM, tm)
    a.v("v_mul_f32", mneg, sLOG2E, tm)
    for i in range(8):
        a.v("v_fma_f32", S[i], S[i], sLOG2E, "-" + mneg)
    for i in range(8):
        a.v("v_exp_f32", S[i], S[i])
    for i in range(32):
        a.v("v_mul_f32", vr(VO + i), alpha, vr(VO + i))
    a.v("v_mul_f32", vL, alpha, vL)
    a.v("v_add_f32", ps, S[0], S[1])
    a.v("v_add_f32", t2, S[2], S[3])
    a.v("v_add_f32", ps, ps, S[4])
    a.v("v_add_f32", t2, t2, S[5])
    a.v("v_add_f32", ps, ps, S[6])
    a.v("v_add_f32", t2, t2, S[7])
    a.v("v_add_f32", vL, vL, ps)
    a.v("v_add_f32", vL, vL, t2)
    for e in range(4):
        a.v("v_cvt_pk_bf16_f32", vr(VP + e), S[2 * e], S[2 * e + 1])
    if lds:
        a.wait(lgkm=0)
        perms(0)
        perms(1)
    for m in range(8):
        a.mfma(vr(VO + 4 * m, 4), vr(VPB[m % 2], 4), vr(VP, 4), vr(VO + 4 * m, 4))
        if m + 2 < 8:
            perms(m + 2)


def gen_main():
    a = Asm()
    sc = 0
    kn = "main_kernel"
    a.raw(f".globl {kn}\n.p2align 8\n.type {kn},@function\n{kn}:")
    prologue_common(a, "L_end")
    load_x(a)
    a.s("s_lshr_b32", sT2, sWG, 5)
    a.s("s_lshl_b32", sT2, sT2, 10)
    a.s("s_add_u32", sQB, sT2, hex(Q0))
    a.bload(4, vr(VQ, 4), vKOFF, S_WS, sQB, 0, "sc1")
    a.s("s_lshl_b32", sKVB, sWG, 19)
    a.s("s_lshl_b32", sT2, sWV, 13)
    a.s("s_add_u32", sKVB, sKVB, sT2)
    a.s("s_add_u32", sRLB, sKVB, 8 * 32768)
    a.s("s_mov_b32", sLAYER, 0)
    a.s("s_mov_b32", sLAY, 0)
    for s in range(8):
        issue_slot(a, s, sKVB, s * 32768)
    unpack_x(a)

    a.label("L_pass")
    a.v("v_mov_b32", vM, "0xff7fffff")
    a.v("v_mov_b32", vL, 0)
    for i in range(32):
        a.v("v_mov_b32", vr(VO + i), 0)
    for s in range(8):
        tile(a, s)
        issue_slot(a, s, sRLB, s * 32768)
    for s in range(8):
        a.wait(vm=min(63, 16 * (7 - s)))
        tile(a, s)

    t2 = vT[1]
    a.v("v_mov_b32", t2, vL)
    a.v("v_permlane32_swap_b32", vL, t2)
    a.v("v_add_f32", vL, vL, t2)
    a.v("v_mov_b32", t2, vL)
    a.v("v_permlane16_swap_b32", vL, t2)
    a.v("v_add_f32", vL, vL, t2)
    l = vT[0]
    a.v("v_and_b32", l, 63, vTID)
    a.v("v_bfe_u32", vT[2], l, 2, 2)
    a.s("s_lshl_b32", sT0, sWV, 5)
    a.v("v_lshl_add_u32", vT[3], vT[2], 3, sT0)
    a.s("s_lshl_b32", sT0, sWV, 11)
    a.v("v_lshl_add_u32", vT[4], vT[2], 9, sT0)
    a.v("v_lshrrev_b32", vT[5], 4, l)
    a.v("v_lshl_add_u32", vT[4], vT[5], 7, vT[4])
    set_exec(a, 0x11111111, 0x11111111)
    a.ds_write(2, vT[3], "v[6:7]", sc + SC_ML)
    for m in range(8):
        for r in range(4):
            a.ds_write(1, vT[4], vr(VO + 4 * m + r), sc + SC_O + (8 * r + m) * 4)
    exec_all(a)
    a.wait(lgkm=0)
    a.v("v_lshrrev_b32", vT[5], 2, l)
    a.v("v_lshlrev_b32", vT[5], 10, vT[5])
    a.v("v_and_b32", vT[6], 3, l)
    a.v("v_lshl_add_u32", vT[5], vT[6], 4, vT[5])
    a.s("s_lshr_b32", sT0, sWG, 4)
    a.s("s_lshl_b32", sT0, sT0, 18)
    a.s("s_lshl_b32", sT1, sWV, 16)
    a.s("s_add_u32", sT0, sT0, sT1)
    a.s("s_and_b32", sT1, sWG, 15)
    a.s("s_lshl_b32", sT1, sT1, 6)
    a.s("s_add_u32", sT0, sT0, sT1)
    for i in range(4):
        a.bload(4, vr(RAW_O + 4 * i, 4), vT[5], S_WO, sT0, 0)
        if i < 3:
            a.s("s_add_u32", sT0, sT0, 16384)
    issue_w16(a, RAW_G, "G")
    a.v("v_lshlrev_b32", vT[5], 10, vTID)
    a.s("s_lshl_b32", sT0, sWG, 2)
    for i in range(7):
        a.bload(1, vr(RAW_D + i), vT[5], S_WD, sT0, 0)
        if i < 6:
            a.s("s_add_u32", sT0, sT0, 262144)
    issue_w16(a, RAW_Q, "Q")
    a.barrier()
    a.s("s_lshl_b32", sT0, sWV, 3)
    a.v("v_mov_b32", vT[3], sT0)
    a.s("s_lshl_b32", sT0, sWV, 9)
    a.v("v_lshl_add_u32", vT[4], l, 3, sT0)
    mlr = [8, 10, 12, 14]
    orr = [16, 18, 20, 22]
    for w in range(4):
        a.ds_read(2, vr(mlr[w], 2), vT[3], sc + SC_ML + w * 32)
        a.ds_read(2, vr(orr[w], 2), vT[4], sc + SC_O + w * 2048)
    a.wait(lgkm=0)
    Mg = vr(88)
    Lg = vr(89)
    a.v("v_max3_f32", Mg, vr(8), vr(10), vr(12))
    a.v("v_max_f32", Mg, Mg, vr(14))
    for w in range(4):
        a.v("v_sub_f32", vr(mlr[w]), vr(mlr[w]), Mg)
        a.v("v_mul_f32", vr(mlr[w]), sLOG2E, vr(mlr[w]))
        a.v("v_exp_f32", vr(mlr[w]), vr(mlr[w]))
    a.v("v_mul_f32", Lg, vr(8), vr(9))
    a.v("v_mul_f32", vr(90), vr(8), vr(16))
    a.v("v_mul_f32", vr(91), vr(8), vr(17))
    for w in range(1, 4):
        a.v("v_fmac_f32", Lg, vr(mlr[w]), vr(mlr[w] + 1))
        a.v("v_fmac_f32", vr(90), vr(mlr[w]), vr(orr[w]))
        a.v("v_fmac_f32", vr(91), vr(mlr[w]), vr(orr[w] + 1))
    for r in (88, 89, 90, 91):
        a.v("v_min_u32", vr(r), SENT_FIX, vr(r))
    a.s("s_lshr_b32", sT0, sWG, 5)
    a.s("s_lshl_b32", sT0, sT0, 2)
    a.s("s_add_u32", sT0, sT0, sWV)
    a.s("s_lshl_b32", sT0, sT0, 5)
    a.s("s_and_b32", sT1, sWG, 31)
    a.s("s_add_u32", sT0, sT0, sT1)
    a.s("s_lshl_b32", sT1, sT0, 9)
    a.s("s_add_u32", sT1, sT1, sLAY)
    a.s("s_add_u32", sT1, sT1, hex(PO))
    a.v("v_lshlrev_b32", vT[4], 3, l)
    a.bstore(2, "v[90:91]", vT[4], S_WS, sT1, 0, "sc1")
    a.s("s_lshl_b32", sT1, sT0, 3)
    a.s("s_add_u32", sT1, sT1, sLAY)
    a.s("s_add_u32", sT1, sT1, hex(ML))
    a.v("v_mov_b32", vT[4], 0)
    set_exec(a, 1, 0)
    a.bstore(2, "v[88:89]", vT[4], S_WS, sT1, 0, "sc1")
    exec_all(a)

    a.wait(vm=0)
    unpack(a, RAW_O, 16, UU)
    a.s("s_lshr_b32", sT2, sWG, 4)
    a.s("s_lshl_b32", sT2, sT2, 1)
    a.s("s_lshr_b32", sT3, sWV, 1)
    a.s("s_add_u32", sT2, sT2, sT3)
    a.v("v_and_b32", vT[3], 127, vTID)
    a.v("v_lshlrev_b32", vT[3], 2, vT[3])
    a.v("v_and_b32", vT[4], 31, vTID)
    a.v("v_lshlrev_b32", vT[4], 3, vT[4])
    a.s("s_lshl_b32", sT3, sT2, 14)
    a.s("s_add_u32", sT3, sT3, sLAY)
    a.s("s_add_u32", sT3, sT3, hex(PO))
    a.s("s_lshl_b32", sT4, sT2, 8)
    a.s("s_add_u32", sT4, sT4, sLAY)
    a.s("s_add_u32", sT4, sT4, hex(ML))
    mlp = "v[6:7]"

    def loadsO():
        a.bload(2, mlp, vT[4], S_WS, sT4, 0, "sc1")
        for c in range(32):
            if c % 8 == 0:
                a.s("s_add_u32", sT0, sT3, (c // 8) * 4096)
            a.bload(1, vr(GATH[c]), vT[3], S_WS, sT0, (c % 8) * 512, "sc1")
    poll(a, loadsO, [vr(r) for r in GATH] + ["v6", "v7"])
    mx, t2 = vT[0], vT[1]
    a.v("v_mov_b32", mx, vM)
    row_allreduce(a, "v_max_f32", [mx])
    a.v("v_mov_b32", t2, mx)
    a.v("v_permlane16_swap_b32", mx, t2)
    a.v("v_max_f32", mx, mx, t2)
    a.v("v_sub_f32", vM, vM, mx)
    a.v("v_mul_f32", vM, sLOG2E, vM)
    a.v("v_exp_f32", vM, vM)
    a.v("v_mul_f32", vL, vL, vM)
    row_allreduce(a, "v_add_f32", [vL])
    a.v("v_mov_b32", t2, vL)
    a.v("v_permlane16_swap_b32", vL, t2)
    a.v("v_add_f32", vL, vL, t2)
    a.v("v_rcp_f32", vL, vL)
    a.v("v_mul_f32", vM, vM, vL)
    for c in range(32):
        a.v("v_readlane_b32", sr(SW0 + c), vM, c)
    o0, o1 = vT[0], vT[1]
    a.v("v_mul_f32", o0, sr(SW0 + 0), vr(GATH[0]))
    a.v("v_mul_f32", o1, sr(SW0 + 1), vr(GATH[1]))
    for c in range(2, 32, 2):
        a.v("v_fmac_f32", o0, sr(SW0 + c), vr(GATH[c]))
        a.v("v_fmac_f32", o1, sr(SW0 + c + 1), vr(GATH[c + 1]))
    a.v("v_add_f32", o0, o0, o1)
    round_one(a, o0, vT[2])
    a.v("v_and_b32", vT[3], 0x3c, vTID)
    for i in range(4):
        a.v("v_add_u32", vT[4 + i], 64 * i, vT[3])
    for i in range(4):
        a.ds_bpermute(vr(8 + i), vT[4 + i], o0)
    a.wait(lgkm=0)
    acc = RAW_O
    for k in range(8):
        a.v("v_mul_f32", vr(acc + k), vr(8), vr(UU + k))
    for i in range(1, 4):
        for k in range(8):
            a.v("v_fmac_f32", vr(acc + k), vr(8 + i), vr(UU + 8 * i + k))
    for ctrl in ("row_ror:4", "row_ror:8"):
        for k in range(8):
            a.dpp("v_add_f32", vr(acc + k), vr(acc + k), vr(acc + k), ctrl=ctrl)
    a.v("v_lshrrev_b32", vT[3], 4, vTID)
    a.v("v_lshlrev_b32", vT[3], 7, vT[3])
    a.v("v_and_b32", vT[4], 3, vTID)
    a.v("v_lshl_add_u32", vT[3], vT[4], 5, vT[3])
    set_exec(a, 0x000f000f, 0x000f000f)
    a.ds_write(4, vT[3], vr(acc, 4), sc + SC_GO)
    a.ds_write(4, vT[3], vr(acc + 4, 4), sc + SC_GO + 16)
    exec_all(a)
    a.wait(lgkm=0)
    a.barrier()
    a.s("s_cmp_lg_u32", sWV, 0)
    a.s("s_cbranch_scc1", "L_skipO")
    a.v("v_and_b32", vT[3], 31, vTID)
    a.v("v_lshlrev_b32", vT[3], 2, vT[3])
    lds_sum16(a, vT[3], sc + SC_GO, 128, [vr(8 + i) for i in range(16)], vT[0])
    a.v("v_min_u32", vT[0], SENT_FIX, vT[0])
    a.s("s_lshr_b32", sT0, sWG, 4)
    a.s("s_lshl_b32", sT0, sT0, 11)
    a.s("s_and_b32", sT1, sWG, 15)
    a.s("s_lshl_b32", sT1, sT1, 7)
    a.s("s_add_u32", sT0, sT0, sT1)
    a.s("s_add_u32", sT0, sT0, sLAY)
    a.s("s_add_u32", sT0, sT0, hex(YP))
    set_exec(a, 0xffffffff, 0)
    a.bstore(1, vT[0], vT[3], S_WS, sT0, 0, "sc1")
    exec_all(a)
    a.label("L_skipO")

    unpack(a, RAW_G, 16, UU)
    a.v("v_lshlrev_b32", vT[3], 3, vTID)
    a.s("s_add_u32", sT3, sLAY, hex(YP))

    def loadsG():
        for p in range(16):
            if p % 2 == 0:
                a.s("s_add_u32", sT0, sT3, (p // 2) * 4096)
            a.bload(2, vr(GATH[2 * p], 2), vT[3], S_WS, sT0, (p % 2) * 2048, "sc1")
    poll(a, loadsG, [vr(r) for r in GATH])
    n = 16
    while n > 1:
        for i in range(n // 2):
            for h in range(2):
                a.v("v_add_f32", vr(GATH[2 * i + h]), vr(GATH[2 * i + h]), vr(GATH[2 * (i + n // 2) + h]))
        n //= 2
    round_pair(a, vr(GATH[0]), vr(GATH[1]), vT[0])
    a.v("v_add_f32", vX0, vX0, vr(GATH[0]))
    a.v("v_add_f32", vX1, vX1, vr(GATH[1]))
    round_pair(a, vX0, vX1, vT[0])
    a.ds_write(2, vT[3], "v[4:5]", sc + SC_X)
    layernorm(a, sc, SC_R1, SC_R2, 8, vM, vL)
    a.s("s_cmp_ge_u32", sWG, 224)
    a.s("s_cbranch_scc1", "L_skipG")
    gemv16(a, sc, SC_GG, RAW_G, vM, vL, 8, vT[0])
    a.s("s_cmp_lg_u32", sWV, 0)
    a.s("s_cbranch_scc1", "L_skipG")
    a.dpp("v_mov_b32", vT[1], vT[0], ctrl="row_ror:8")
    round_pair(a, vT[0], vT[1], vT[2])
    a.v("v_cmp_lt_f32", "vcc", 0, vT[0])
    a.v("v_cndmask_b32", vT[2], 0, "1.0", "vcc")
    a.v("v_mul_f32", vT[0], vT[0], vT[2])
    a.v("v_mul_f32", vT[0], vT[0], vT[1])
    round_one(a, vT[0], vT[2])
    a.v("v_min_u32", vT[0], SENT_FIX, vT[0])
    a.v("v_lshlrev_b32", vT[3], 2, vTID)
    a.s("s_lshl_b32", sT0, sWG, 5)
    a.s("s_add_u32", sT0, sT0, sLAY)
    a.s("s_add_u32", sT0, sT0, hex(HB))
    set_exec(a, 0xff, 0)
    a.bstore(1, vT[0], vT[3], S_WS, sT0, 0, "sc1")
    exec_all(a)
    a.label("L_skipG")

    unpack(a, RAW_D, 7, UU)
    a.v("v_lshlrev_b32", vT[3], 2, vTID)
    a.s("s_add_u32", sT3, sLAY, hex(HB))
    a.s("s_add_u32", sT4, sT3, 4096)

    def loadsD():
        for i in range(7):
            a.bload(1, vr(8 + i), vT[3], S_WS, sT3 if i < 4 else sT4, (i % 4) * 1024, "sc1")
    poll(a, loadsD, [vr(8 + i) for i in range(7)])
    a.v("v_mul_f32", vM, vr(8), vr(UU))
    a.v("v_mul_f32", vL, vr(8), vr(UU + 1))
    for i in range(1, 7):
        a.v("v_fmac_f32", vM, vr(8 + i), vr(UU + 2 * i))
        a.v("v_fmac_f32", vL, vr(8 + i), vr(UU + 2 * i + 1))
    row_allreduce(a, "v_add_f32", [vM, vL])
    a.v("v_lshrrev_b32", vT[3], 4, vTID)
    a.v("v_lshlrev_b32", vT[3], 3, vT[3])
    set_exec(a, 0x00010001, 0x00010001)
    a.ds_write(2, vT[3], "v[6:7]", sc + SC_GD)
    exec_all(a)
    a.wait(lgkm=0)
    a.barrier()
    a.s("s_cmp_lg_u32", sWV, 0)
    a.s("s_cbranch_scc1", "L_skipD")
    a.v("v_and_b32", vT[3], 1, vTID)
    a.v("v_lshlrev_b32", vT[3], 2, vT[3])
    lds_sum16(a, vT[3], sc + SC_GD, 8, [vr(8 + i) for i in range(16)], vT[0])
    round_one(a, vT[0], vT[1])
    a.s("s_cmp_lg_u32", sLAYER, 0)
    a.s("s_cbranch_scc1", "L_final")
    a.v("v_min_u32", vT[0], SENT_FIX, vT[0])
    a.s("s_lshl_b32", sT0, sWG, 3)
    a.s("s_add_u32", sT0, sT0, hex(DP))
    set_exec(a, 3, 0)
    a.bstore(1, vT[0], vT[3], S_WS, sT0, 0, "sc1")
    exec_all(a)
    a.s("s_branch", "L_skipD")
    a.label("L_final")
    a.s("s_lshl_b32", sT0, sWG, 3)
    a.v("v_add_u32", vT[3], sT0, vT[3])
    a.ds_read(1, vT[1], vT[3], sc + SC_X)
    a.wait(lgkm=0)
    a.v("v_add_f32", vT[0], vT[0], vT[1])
    a.dpp("v_mov_b32", vT[1], vT[0], ctrl="quad_perm:[1,1,1,1]")
    a.v("v_cvt_pk_bf16_f32", vT[0], vT[0], vT[1])
    a.s("s_lshl_b32", sT0, sWG, 2)
    a.v("v_mov_b32", vT[3], 0)
    set_exec(a, 1, 0)
    a.bstore(1, vT[0], vT[3], S_OUT, sT0, 0)
    exec_all(a)
    a.label("L_skipD")
    a.s("s_cmp_lg_u32", sLAYER, 0)
    a.s("s_cbranch_scc1", "L_end")

    unpack(a, RAW_Q, 16, UU)
    a.v("v_lshlrev_b32", vT[3], 3, vTID)
    a.s("s_mov_b32", sT3, hex(DP))

    def loadsQ():
        a.bload(2, "v[8:9]", vT[3], S_WS, sT3, 0, "sc1")
    poll(a, loadsQ, ["v8", "v9"])
    a.v("v_add_f32", vX0, vX0, "v8")
    a.v("v_add_f32", vX1, vX1, "v9")
    round_pair(a, vX0, vX1, vT[0])
    layernorm(a, sc, SC_R3, SC_R4, 8, vM, vL)
    gemv16(a, sc, SC_GQ, RAW_Q, vM, vL, 8, vT[0])
    a.s("s_cmp_lg_u32", sWV, 0)
    a.s("s_cbranch_scc1", "L_skipQ")
    q_publish(a, vT[0], hex(LSTR + QB))
    a.label("L_skipQ")
    a.s("s_mov_b32", sLAYER, 1)
    a.s("s_mov_b32", sLAY, hex(LSTR))
    a.s("s_mov_b32", sRLB, sKVB)
    a.s("s_lshr_b32", sT2, sWG, 5)
    a.s("s_lshl_b32", sT2, sT2, 10)
    a.s("s_add_u32", sQB, sT2, hex(LSTR + QB))

    def loadsq():
        a.bload(4, vr(VQ, 4), vKOFF, S_WS, sQB, 0, "sc1")
    poll(a, loadsq, [vr(VQ + i) for i in range(4)])
    a.s("s_branch", "L_pass")
    a.label("L_end", pad=False)
    a.raw("  s_endpgm")
    return a.text()


def gen_init():
    a = Asm()
    sc = 0
    kn = "init_kernel"
    a.raw(f".globl {kn}\n.p2align 8\n.type {kn},@function\n{kn}:")
    prologue_common(a, "L_iend")
    load_x(a)
    issue_w16(a, RAW_Q, "Q")
    for i in range(4):
        a.v("v_mov_b32", vr(8 + i), -1)
    a.v("v_lshlrev_b32", vT[4], 4, vTID)
    a.s("s_mul_i32", sT0, sWG, 2304)
    a.s("s_add_u32", sT1, sT0, hex(LSTR))
    a.v("v_cmp_gt_u32", "vcc", 144, vTID)
    a.s("s_and_saveexec_b64", "s[96:97]", "vcc")
    a.s("s_cbranch_execz", "L_iskip")
    a.bstore(4, "v[8:11]", vT[4], S_WS, sT0, 0)
    a.bstore(4, "v[8:11]", vT[4], S_WS, sT1, 0)
    a.label("L_iskip")
    exec_all(a)
    a.wait(vm=0)
    unpack_x(a)
    unpack(a, RAW_Q, 16, UU)
    layernorm(a, sc, SC_R3, SC_R4, 8, vM, vL)
    gemv16(a, sc, SC_GQ, RAW_Q, vM, vL, 8, vT[0])
    a.s("s_cmp_lg_u32", sWV, 0)
    a.s("s_cbranch_scc1", "L_iend")
    q_publish(a, vT[0], hex(Q0))
    a.label("L_iend", pad=False)
    a.raw("  s_endpgm")
    return a.text()


def kd(name, nv, acc):
    return f""".amdhsa_kernel {name}
  .amdhsa_next_free_vgpr {nv}
  .amdhsa_next_free_sgpr 102
  .amdhsa_accum_offset {acc}
  .amdhsa_group_segment_fixed_size 0
  .amdhsa_kernarg_size 96
  .amdhsa_user_sgpr_count 2
  .amdhsa_user_sgpr_kernarg_segment_ptr 1
  .amdhsa_system_sgpr_workgroup_id_x 1
.end_amdhsa_kernel
"""


def main():
    ref = open(f"cdna_kernels/{NAME}.s.ref").read()
    head = []
    for line in ref.splitlines():
        if line.startswith("; @launch"):
            break
        head.append(line)
    out = "\n".join(head) + "\n"
    out += f"; @launch kernel=init_kernel grid=(256,1,1) block=(256,1,1) lds={SC_END}\n"
    out += "; @launch kernel=main_kernel grid=(256,1,1) block=(256,1,1) lds=163840\n"
    out += '.amdgcn_target "amdgcn-amd-amdhsa--gfx950"\n.text\n'
    out += gen_init()
    out += gen_main()
    out += '.section .rodata,"a"\n.p2align 6\n'
    out += kd("init_kernel", 128, 128)
    out += ".p2align 6\n"
    out += kd("main_kernel", 512, 256)
    dst = sys.argv[1] if len(sys.argv) > 1 else f"cdna_kernels/{NAME}.s"
    open(dst, "w").write(out)
    print("wrote", dst, len(out), "bytes")


if __name__ == "__main__":
    main()
```

```python
import sys
from asmlib import *

NAME = "interleave_layers__gqa_block_cached__glu_gated_reglu__decode"
EMU_ROUND = True
import os
STAMPS = bool(int(os.environ.get("STAMPS", "0")))

LSTR = 0x100000
QP, DPP, YP, GP, ML, PO, ZONE = 0x0, 0x10000, 0x18000, 0x20000, 0x3C000, 0x40000, 0xC0000
Q0 = 0x200000
WS_BYTES = 0x300000

SC_O = 0
SC_ML = 8192
SC_GO = 9216
SC_X1 = 11264
SC_X2 = 13312
SC_RG = 15360
SC_RD = 17408
SC_RQ = 17920
SC_END = 18944

S_K, S_V, S_WQ, S_WO, S_WG, S_WU, S_WD, S_WS, S_X, S_OUT = [sr(8 + 4 * i, 4) for i in range(10)]
sWG, sWV = "s2", "s3"
sLAYER, sKVB, sRLB, sT0, sT1, sLAY, sQB, sTO = "s48", "s49", "s50", "s51", "s52", "s53", "s54", "s55"
sC, sLOG2E, sSELLO, sSELHI, sT2, sLDSW, sT3, sT4 = "s56", "s57", "s58", "s59", "s60", "s61", "s62", "s63"
SW0 = 64
sWR, sWRG = "s4", "s5"

vTID, vKOFF, vVOFF, vLDS = "v0", "v1", "v2", "v3"
vX0, vX1 = "v4", "v5"
vM, vL = "v6", "v7"
VQ = 8
VP = 12
VPB = (16, 20)
vT = [f"v{24+i}" for i in range(8)]
VO = 32
VD = 64
VTMP = 96
VV = 128

RAW_O, RAW_G, RAW_Q, RAW_D = 32, 48, 64, 80
UU = 96
GATH = list(range(8, 24)) + list(range(32, 48))

C_SCALE = 0x3DB504F3
LOG2E = 0x3FB8AA3B
SENT_FIX = "0xfffffffe"


def f32bits(x):
    import struct
    return struct.unpack("<I", struct.pack("<f", x))[0]


assert f32bits(128 ** -0.5) == C_SCALE, hex(f32bits(128 ** -0.5))


def set_exec(a, lo, hi):
    a.s("s_mov_b32", "exec_lo", hex(lo))
    a.s("s_mov_b32", "exec_hi", hex(hi))


def exec_all(a):
    a.s("s_mov_b64", "exec", "-1")


def round_pair(a, x0, x1, tmp):
    a.v("v_cvt_pk_bf16_f32", tmp, x0, x1)
    a.v("v_lshlrev_b32", x0, 16, tmp)
    a.v("v_and_b32", x1, "0xffff0000", tmp)


def round_one(a, x0, tmp):
    a.v("v_cvt_pk_bf16_f32", tmp, x0, x0)
    a.v("v_lshlrev_b32", x0, 16, tmp)


def row_allreduce(a, op, regs):
    for ctrl in ("quad_perm:[1,0,3,2]", "quad_perm:[2,3,0,1]", "row_half_mirror", "row_mirror"):
        for r in regs:
            a.dpp(op, r, r, r, ctrl=ctrl)


def prologue_common(a, lbl_end):
    a.s("s_cmp_ge_u32", sWG, 256)
    a.s("s_cbranch_scc1", lbl_end)
    a.raw("  s_load_dwordx16 s[64:79], s[0:1], 0")
    a.raw("  s_load_dwordx8 s[80:87], s[0:1], 64")
    a.v("v_lshrrev_b32", vT[0], 6, vTID)
    a.v("v_readfirstlane_b32", sWV, vT[0])
    a.raw("  s_waitcnt lgkmcnt(0)")
    srds = [(8, 66, 0x8000000), (12, 68, 0x8000000), (16, 70, 0x400000), (20, 72, 0x400000),
            (24, 76, 512 * 1792 * 2), (28, 78, 512 * 1792 * 2), (32, 80, 1792 * 512 * 2),
            (36, 86, WS_BYTES), (40, 64, 1024), (44, 82, 1024)]
    for d, p, n in srds:
        a.s("s_mov_b32", sr(d), sr(p))
        a.s("s_and_b32", sr(d + 1), sr(p + 1), "0xffff")
        a.s("s_mov_b32", sr(d + 2), hex(n))
        a.s("s_mov_b32", sr(d + 3), "0x00020000")
    a.s("s_mov_b32", sC, hex(C_SCALE))
    a.s("s_mov_b32", sLOG2E, hex(LOG2E))
    a.s("s_mov_b32", sSELLO, "0x05040100")
    a.s("s_mov_b32", sSELHI, "0x07060302")
    a.s("s_mov_b32", sTO, hex(1 << 18))
    a.s("s_and_b32", sT0, sWG, 7)
    a.s("s_lshr_b32", sT1, sWG, 3)
    a.s("s_lshl_b32", sWR, sT0, 5)
    a.s("s_add_u32", sWR, sWR, sT1)
    a.s("s_mul_i32", sWRG, sT0, 28)
    a.s("s_add_u32", sWRG, sWRG, sT1)
    l = vT[0]
    a.v("v_and_b32", l, 63, vTID)
    a.v("v_lshlrev_b32", vVOFF, 4, l)
    a.v("v_bfe_u32", vT[1], l, 2, 2)
    a.v("v_lshlrev_b32", vKOFF, 8, vT[1])
    a.v("v_lshrrev_b32", vT[2], 4, l)
    a.v("v_lshl_add_u32", vKOFF, vT[2], 6, vKOFF)
    a.v("v_and_b32", vT[3], 3, l)
    a.v("v_lshl_add_u32", vKOFF, vT[3], 4, vKOFF)
    a.s("s_lshl_b32", sLDSW, sWV, 15)
    a.s("s_add_u32", sLDSW, sLDSW, 32768)
    a.v("v_add_u32", vLDS, sLDSW, vVOFF)


def load_x(a):
    a.v("v_lshlrev_b32", vT[4], 2, vTID)
    a.bload(1, vX0, vT[4], S_X, 0)


def unpack_x(a):
    a.v("v_and_b32", vX1, "0xffff0000", vX0)
    a.v("v_lshlrev_b32", vX0, 16, vX0)


def lane_voff(a, dst, sh_c, rowbytes, tmp):
    a.v("v_and_b32", tmp, 63, vTID)
    a.v("v_lshrrev_b32", dst, sh_c, tmp)
    a.s("s_mov_b32", sT4, rowbytes)
    a.v("v_mul_lo_u32", dst, dst, sT4)
    a.v("v_and_b32", tmp, (1 << sh_c) - 1, tmp)
    a.v("v_lshl_add_u32", dst, tmp, 4, dst)


def g_block(a, rb, cb):
    a.s("s_mul_i32", rb, sWR, 2341)
    a.s("s_lshr_b32", rb, rb, 16)
    a.s("s_mul_i32", cb, rb, 28)
    a.s("s_sub_u32", cb, sWR, cb)


def issue_wQ(a, raw):
    lane_voff(a, vT[5], 3, 8192, vT[6])
    a.s("s_lshr_b32", sT0, sWR, 6)
    a.s("s_lshl_b32", sT0, sT0, 20)
    a.s("s_lshl_b32", sT1, sWV, 18)
    a.s("s_add_u32", sT0, sT0, sT1)
    a.s("s_and_b32", sT1, sWR, 63)
    a.s("s_lshl_b32", sT1, sT1, 7)
    a.s("s_add_u32", sT0, sT0, sT1)
    for i in range(4):
        a.bload(4, vr(raw + 4 * i, 4), vT[5], S_WQ, sT0, 0)
        if i < 3:
            a.s("s_add_u32", sT0, sT0, 65536)


def issue_wG(a, raw):
    lane_voff(a, vT[5], 3, 3584, vT[6])
    g_block(a, sT2, sT3)
    a.s("s_lshl_b32", sT0, sT2, 2)
    a.s("s_add_u32", sT0, sT0, sWV)
    a.s("s_mul_i32", sT0, sT0, 16 * 3584)
    a.s("s_lshl_b32", sT1, sT3, 7)
    a.s("s_add_u32", sT0, sT0, sT1)
    a.s("s_add_u32", sT1, sT0, 8 * 3584)
    a.bload(4, vr(raw + 0, 4), vT[5], S_WG, sT0, 0)
    a.bload(4, vr(raw + 4, 4), vT[5], S_WG, sT1, 0)
    a.bload(4, vr(raw + 8, 4), vT[5], S_WU, sT0, 0)
    a.bload(4, vr(raw + 12, 4), vT[5], S_WU, sT1, 0)


def issue_wD(a, raw):
    lane_voff(a, vT[5], 2, 1024, vT[6])
    a.s("s_lshr_b32", sT0, sWR, 4)
    a.s("s_lshl_b32", sT0, sT0, 2)
    a.s("s_add_u32", sT0, sT0, sWV)
    a.s("s_mul_i32", sT0, sT0, 28 * 1024)
    a.s("s_and_b32", sT1, sWR, 15)
    a.s("s_lshl_b32", sT1, sT1, 6)
    a.s("s_add_u32", sT0, sT0, sT1)
    a.s("s_add_u32", sT1, sT0, 16384)
    a.bload(4, vr(raw + 0, 4), vT[5], S_WD, sT0, 0)
    a.bload(4, vr(raw + 4, 4), vT[5], S_WD, sT1, 0)


def issue_wO(a, raw):
    lane_voff(a, vT[5], 2, 1024, vT[6])
    a.s("s_lshr_b32", sT0, sWR, 4)
    a.s("s_lshl_b32", sT0, sT0, 18)
    a.s("s_lshl_b32", sT1, sWV, 16)
    a.s("s_add_u32", sT0, sT0, sT1)
    a.s("s_and_b32", sT1, sWR, 15)
    a.s("s_lshl_b32", sT1, sT1, 6)
    a.s("s_add_u32", sT0, sT0, sT1)
    for i in range(4):
        a.bload(4, vr(raw + 4 * i, 4), vT[5], S_WO, sT0, 0)
        if i < 3:
            a.s("s_add_u32", sT0, sT0, 16384)


def unpack(a, raw, n, dst):
    for i in range(n):
        a.v("v_lshlrev_b32", vr(dst + 2 * i), 16, vr(raw + i))
        a.v("v_and_b32", vr(dst + 2 * i + 1), "0xffff0000", vr(raw + i))


def lds_sum16(a, addr, base, stride, regs, out):
    for p in range(16):
        a.ds_read(1, regs[p], addr, base + p * stride)
    a.wait(lgkm=0)
    n = 16
    while n > 1:
        for i in range(n // 2):
            a.v("v_add_f32", regs[i], regs[i], regs[i + n // 2])
        n //= 2
    if out != regs[0]:
        a.v("v_mov_b32", out, regs[0])


def wave_allreduce_add(a, x, t):
    row_allreduce(a, "v_add_f32", [x])
    a.v("v_mov_b32", t, x)
    a.v("v_permlane32_swap_b32", x, t)
    a.v("v_add_f32", x, x, t)
    a.v("v_mov_b32", t, x)
    a.v("v_permlane16_swap_b32", x, t)
    a.v("v_add_f32", x, x, t)


def ln_from_lds(a, scx, vrows, offs, outs, tq):
    s, mean, t, tmp, la = vT[0], vT[1], vT[2], vT[3], vT[4]
    a.v("v_and_b32", la, 63, vTID)
    a.v("v_lshlrev_b32", la, 5, la)
    a.ds_read(4, vr(tq, 4), la, scx)
    a.ds_read(4, vr(tq + 4, 4), la, scx + 16)
    for o, off in zip(outs, offs):
        a.ds_read(1, o, vrows, scx + off)
    a.wait(lgkm=len(outs))
    X = [vr(tq + k) for k in range(8)]
    a.v("v_add_f32", s, X[0], X[1])
    a.v("v_add_f32", t, X[2], X[3])
    a.v("v_add_f32", s, s, X[4])
    a.v("v_add_f32", t, t, X[5])
    a.v("v_add_f32", s, s, X[6])
    a.v("v_add_f32", t, t, X[7])
    a.v("v_add_f32", s, s, t)
    wave_allreduce_add(a, s, t)
    a.v("v_mul_f32", mean, hex(f32bits(1.0 / 512)), s)
    for k in range(8):
        a.v("v_sub_f32", X[k], X[k], mean)
    a.v("v_mul_f32", s, X[0], X[0])
    a.v("v_mul_f32", t, X[1], X[1])
    for k in range(2, 8, 2):
        a.v("v_fmac_f32", s, X[k], X[k])
        a.v("v_fmac_f32", t, X[k + 1], X[k + 1])
    a.v("v_add_f32", s, s, t)
    wave_allreduce_add(a, s, t)
    a.v("v_mul_f32", s, hex(f32bits(1.0 / 512)), s)
    round_pair(a, mean, s, tmp)
    a.v("v_add_f32", s, hex(f32bits(1e-5)), s)
    round_one(a, s, tmp)
    a.v("v_sqrt_f32", s, s)
    round_one(a, s, tmp)
    a.v("v_rcp_f32", s, s)
    a.wait(lgkm=0)
    for i in range(0, len(outs), 2):
        a0, a1 = outs[i], outs[i + 1]
        a.v("v_sub_f32", a0, a0, mean)
        a.v("v_sub_f32", a1, a1, mean)
        round_pair(a, a0, a1, tmp)
        a.v("v_mul_f32", a0, a0, s)
        a.v("v_mul_f32", a1, a1, s)
        round_pair(a, a0, a1, tmp)


def reduce8(a, accs, nc):
    for b in accs:
        for k in range(4):
            a.v("v_permlane32_swap_b32", vr(b + k), vr(b + k + 4))
    for b in accs:
        for k in range(4):
            a.v("v_add_f32", vr(b + k), vr(b + k), vr(b + k + 4))
    for b in accs:
        a.v("v_permlane16_swap_b32", vr(b + 0), vr(b + 2))
        a.v("v_permlane16_swap_b32", vr(b + 1), vr(b + 3))
    for b in accs:
        a.v("v_add_f32", vr(b + 0), vr(b + 0), vr(b + 2))
        a.v("v_add_f32", vr(b + 1), vr(b + 1), vr(b + 3))
    steps = {8: ["row_ror:8"], 4: ["row_ror:4", "row_ror:8"]}[nc]
    for ctrl in steps:
        for b in accs:
            a.dpp("v_add_f32", vr(b), vr(b), vr(b), ctrl=ctrl)
            a.dpp("v_add_f32", vr(b + 1), vr(b + 1), vr(b + 1), ctrl=ctrl)


def red_addr(a, dst, nc, wvstride, tmp):
    a.v("v_and_b32", tmp, nc - 1, vTID)
    a.v("v_lshlrev_b32", dst, 5, tmp)
    a.v("v_bfe_u32", tmp, vTID, 4, 2)
    a.v("v_lshl_add_u32", dst, tmp, 3, dst)
    a.s("s_mul_i32", sT4, sWV, wvstride)
    a.v("v_add_u32", dst, sT4, dst)


def sum4_lds(a, addr, base, stride, regs, out):
    for p in range(4):
        a.ds_read(1, regs[p], addr, base + p * stride)
    a.wait(lgkm=0)
    a.v("v_add_f32", regs[0], regs[0], regs[1])
    a.v("v_add_f32", regs[2], regs[2], regs[3])
    a.v("v_add_f32", out, regs[0], regs[2])


def q_gemv(a, scx, base_s, lbl):
    a.v("v_bfe_u32", vT[5], vTID, 3, 3)
    a.v("v_lshlrev_b32", vT[5], 2, vT[5])
    a.s("s_lshr_b32", sT0, sWR, 6)
    a.s("s_lshl_b32", sT0, sT0, 9)
    a.s("s_lshl_b32", sT1, sWV, 7)
    a.s("s_add_u32", sT0, sT0, sT1)
    a.v("v_add_u32", vT[5], sT0, vT[5])
    A = [vr(16 + i) for i in range(4)]
    ln_from_lds(a, scx, vT[5], [32 * i for i in range(4)], A, 8)
    acc = 32
    for k in range(8):
        a.v("v_mul_f32", vr(acc + k), A[0], vr(UU + k))
    for i in range(1, 4):
        for k in range(8):
            a.v("v_fmac_f32", vr(acc + k), A[i], vr(UU + 8 * i + k))
    reduce8(a, [acc], 8)
    red_addr(a, vT[5], 8, 256, vT[6])
    set_exec(a, 0x00ff00ff, 0x00ff00ff)
    a.ds_write(2, vT[5], vr(acc, 2), SC_RQ)
    exec_all(a)
    a.wait(lgkm=0)
    a.barrier()
    a.s("s_cmp_lg_u32", sWV, 0)
    a.s("s_cbranch_scc1", lbl)
    a.v("v_lshlrev_b32", vT[5], 2, vTID)
    sum4_lds(a, vT[5], SC_RQ, 256, [vr(8 + i) for i in range(4)], vT[0])
    a.v("v_min_u32", vT[0], SENT_FIX, vT[0])
    a.s("s_lshr_b32", sT0, sWR, 6)
    a.s("s_lshl_b32", sT0, sT0, 14)
    a.s("s_and_b32", sT1, sWR, 63)
    a.s("s_lshl_b32", sT1, sT1, 8)
    a.s("s_add_u32", sT0, sT0, sT1)
    a.s("s_add_u32", sT0, sT0, base_s)
    a.bstore(1, vT[0], vT[5], S_WS, sT0, 0, "sc1")
    a.label(lbl)


QG = 64


def q_gather_issue(a):
    a.v("v_lshlrev_b32", vT[3], 1, vKOFF)
    for p in range(4):
        a.s("s_add_u32", sT0, sQB, p * 16384)
        a.bload(4, vr(QG + 8 * p, 4), vT[3], S_WS, sT0, 0, "sc1")
        a.bload(4, vr(QG + 8 * p + 4, 4), vT[3], S_WS, sT0, 16, "sc1")


def q_gather_sum(a):
    for k in range(8):
        a.v("v_add_f32", vr(QG + k), vr(QG + k), vr(QG + 8 + k))
        a.v("v_add_f32", vr(QG + 16 + k), vr(QG + 16 + k), vr(QG + 24 + k))
    for k in range(8):
        a.v("v_add_f32", vr(QG + k), vr(QG + k), vr(QG + 16 + k))
    for e in range(4):
        a.v("v_cvt_pk_bf16_f32", vr(VQ + e), vr(QG + 2 * e), vr(QG + 2 * e + 1))


def gather16_add_x(a, base_off, scx):
    a.v("v_lshlrev_b32", vT[3], 3, vTID)
    a.s("s_add_u32", sT3, sLAY, hex(base_off))

    def loads():
        for p in range(16):
            if p % 2 == 0:
                a.s("s_add_u32", sT0, sT3, (p // 2) * 4096)
            a.bload(2, vr(GATH[2 * p], 2), vT[3], S_WS, sT0, (p % 2) * 2048, "sc1")
    poll(a, loads, [vr(r) for r in GATH])
    n = 16
    while n > 1:
        for i in range(n // 2):
            for h in range(2):
                a.v("v_add_f32", vr(GATH[2 * i + h]), vr(GATH[2 * i + h]), vr(GATH[2 * (i + n // 2) + h]))
        n //= 2
    round_pair(a, vr(GATH[0]), vr(GATH[1]), vT[0])
    a.v("v_add_f32", vX0, vX0, vr(GATH[0]))
    a.v("v_add_f32", vX1, vX1, vr(GATH[1]))
    round_pair(a, vX0, vX1, vT[0])
    if scx is not None:
        a.ds_write(2, vT[3], "v[4:5]", scx)


def stamp(a, idx, layered=True):
    if not STAMPS:
        return
    a.raw("  s_memrealtime s[98:99]")
    a.s("s_lshl_b32", "s100", sWG, 2)
    a.s("s_add_u32", "s100", "s100", sWV)
    a.s("s_lshl_b32", "s100", "s100", 7)
    a.s("s_add_u32", "s100", "s100", hex(0x280000 + idx * 4))
    if layered:
        a.s("s_lshl_b32", "s101", sLAYER, 6)
        a.s("s_add_u32", "s100", "s100", "s101")
    a.raw("  s_waitcnt lgkmcnt(0)")
    a.v("v_mov_b32", vT[7], "s98")
    a.v("v_mov_b32", vT[6], 0)
    set_exec(a, 1, 0)
    a.bstore(1, vT[7], vT[6], S_WS, "s100", 0)
    exec_all(a)


_pollid = [0]


def poll(a, issue_loads, regs):
    _pollid[0] += 1
    n = _pollid[0]
    a.label(f"L_poll{n}")
    issue_loads()
    a.wait(vm=0)
    acc = vT[7]
    rs = list(regs)
    a.v("v_max_u32", acc, rs[0], rs[1] if len(rs) > 1 else rs[0])
    rs = rs[2:]
    while rs:
        if len(rs) >= 2:
            a.v("v_max3_u32", acc, acc, rs[0], rs[1])
            rs = rs[2:]
        else:
            a.v("v_max_u32", acc, acc, rs[0])
            rs = rs[1:]
    a.v("v_cmp_eq_u32", "vcc", -1, acc)
    a.nop(1)
    a.s("s_cbranch_vccz", f"L_pdone{n}")
    a.s("s_sub_u32", sTO, sTO, 1)
    a.s("s_cmp_le_i32", sTO, 0)
    a.s("s_cbranch_scc1", f"L_pdone{n}")
    a.s("s_sleep", 1)
    a.s("s_branch", f"L_poll{n}")
    a.label(f"L_pdone{n}")


def slot_kreg(s, i):
    return ar(32 * s + 4 * i, 4)


def slot_vraw(s, i):
    if s < 4:
        return vr(VV + 32 * s + 4 * i, 4)
    return ar(192 + 32 * (s - 4) + 4 * i, 4)


def issue_slot(a, s, sbase, toff):
    a.wait(vm=47)
    a.s("s_add_u32", sT0, sbase, toff)
    a.s("s_add_u32", sT1, sbase, toff + 4096)
    if s < 6:
        for i in range(8):
            a.bload(4, slot_kreg(s, i), vKOFF, S_K, sT0 if i < 4 else sT1, (i % 4) * 1024, "nt")
        for i in range(8):
            a.bload(4, slot_vraw(s, i), vVOFF, S_V, sT0 if i < 4 else sT1, (i % 4) * 1024, "nt")
    else:
        for half, (srd, voff) in enumerate(((S_K, vKOFF), (S_V, vVOFF))):
            for hi in range(2):
                a.s("s_add_u32", "m0", sLDSW, (s - 6) * 16384 + half * 8192 + hi * 4096)
                for i in range(4):
                    a.bload_lds(voff, srd, sT0 if hi == 0 else sT1, i * 1024, "nt")


def tile(a, s):
    a.comment(f"---- tile slot {s}")
    lds = s >= 6
    if lds:
        for i in range(8):
            a.ds_read(4, vr(VTMP + 4 * i, 4), vLDS, (s - 6) * 16384 + i * 1024)
        a.wait(lgkm=0)
        kf = lambda i: vr(VTMP + 4 * i, 4)
    else:
        kf = lambda i: slot_kreg(s, i)
    for i in range(8):
        a.mfma(vr(VD + 4 * i, 4), kf(i), vr(VQ, 4), 0)
    if lds:
        for i in range(8):
            a.ds_read(4, vr(VTMP + 4 * i, 4), vLDS, (s - 6) * 16384 + 8192 + i * 1024)
        vsrc = lambda i, d: vr(VTMP + 4 * i + d)
    elif s >= 4:
        for i in range(32):
            a.v("v_accvgpr_read_b32", vr(VTMP + i), ar(192 + 32 * (s - 4) + i))
        vsrc = lambda i, d: vr(VTMP + 4 * i + d)
    else:
        vsrc = lambda i, d: vr(VV + 32 * s + 4 * i + d)

    def perms(m):
        d = m // 2
        sel = sSELLO if m % 2 == 0 else sSELHI
        b = VPB[m % 2]
        for e in range(4):
            a.v("v_perm_b32", vr(b + e), vsrc(2 * e + 1, d), vsrc(2 * e, d), sel)

    if not lds:
        perms(0)
        perms(1)
    S = [vr(VD + 4 * i) for i in range(8)]
    for i in range(8):
        a.dpp("v_mov_b32", S[i], S[i], ctrl="quad_perm:[0,0,0,0]")
    for r in (1, 2, 3):
        for i in range(8):
            a.dpp("v_add_f32", S[i], vr(VD + 4 * i + r), S[i], ctrl=f"quad_perm:[{r},{r},{r},{r}]")
    if EMU_ROUND:
        for i in range(0, 8, 2):
            round_pair(a, S[i], S[i + 1], vr(VD + 4 * i + 1))
        for i in range(8):
            a.v("v_mul_f32", S[i], sC, S[i])
        for i in range(0, 8, 2):
            round_pair(a, S[i], S[i + 1], vr(VD + 4 * i + 1))
    else:
        for i in range(8):
            a.v("v_mul_f32", S[i], sC, S[i])
    tm, t2, alpha, mneg, ps = vT[0], vT[1], vT[2], vT[3], vT[4]
    a.v("v_max3_f32", tm, S[0], S[1], S[2])
    a.v("v_max3_f32", t2, S[3], S[4], S[5])
    a.v("v_max3_f32", tm, tm, S[6], S[7])
    a.v("v_max3_f32", tm, tm, t2, vM)
    a.v("v_mov_b32", t2, tm)
    a.v("v_permlane32_swap_b32", tm, t2)
    a.v("v_max_f32", tm, tm, t2)
    a.v("v_mov_b32", t2, tm)
    a.v("v_permlane16_swap_b32", tm, t2)
    a.v("v_max_f32", tm, tm, t2)
    a.v("v_sub_f32", alpha, vM, tm)
    a.v("v_mul_f32", alpha, sLOG2E, alpha)
    a.v("v_exp_f32", alpha, alpha)
    a.v("v_mov_b32", vM, tm)
    a.v("v_mul_f32", mneg, sLOG2E, tm)
    for i in range(8):
        a.v("v_fma_f32", S[i], S[i], sLOG2E, "-" + mneg)
    for i in range(8):
        a.v("v_exp_f32", S[i], S[i])
    for i in range(32):
        a.v("v_mul_f32", vr(VO + i), alpha, vr(VO + i))
    a.v("v_mul_f32", vL, alpha, vL)
    a.v("v_add_f32", ps, S[0], S[1])
    a.v("v_add_f32", t2, S[2], S[3])
    a.v("v_add_f32", ps, ps, S[4])
    a.v("v_add_f32", t2, t2, S[5])
    a.v("v_add_f32", ps, ps, S[6])
    a.v("v_add_f32", t2, t2, S[7])
    a.v("v_add_f32", vL, vL, ps)
    a.v("v_add_f32", vL, vL, t2)
    for e in range(4):
        a.v("v_cvt_pk_bf16_f32", vr(VP + e), S[2 * e], S[2 * e + 1])
    if lds:
        a.wait(lgkm=0)
        perms(0)
        perms(1)
    for m in range(8):
        a.mfma(vr(VO + 4 * m, 4), vr(VPB[m % 2], 4), vr(VP, 4), vr(VO + 4 * m, 4))
        if m + 2 < 8:
            perms(m + 2)


def gen_main():
    a = Asm()
    sc = 0
    kn = "main_kernel"
    a.raw(f".globl {kn}\n.p2align 8\n.type {kn},@function\n{kn}:")
    prologue_common(a, "L_end")
    stamp(a, 0, False)
    load_x(a)
    a.s("s_lshr_b32", sT2, sWG, 5)
    a.s("s_lshl_b32", sT2, sT2, 11)
    a.s("s_add_u32", sQB, sT2, hex(Q0))
    q_gather_issue(a)
    a.s("s_lshl_b32", sKVB, sWG, 19)
    a.s("s_lshl_b32", sT2, sWV, 13)
    a.s("s_add_u32", sKVB, sKVB, sT2)
    a.s("s_add_u32", sRLB, sKVB, 8 * 32768)
    a.s("s_mov_b32", sLAYER, 0)
    a.s("s_mov_b32", sLAY, 0)
    for s in range(8):
        issue_slot(a, s, sKVB, s * 32768)
    unpack_x(a)
    q_gather_sum(a)

    a.label("L_pass")
    stamp(a, 1)
    a.v("v_mov_b32", vM, "0xff7fffff")
    a.v("v_mov_b32", vL, 0)
    for i in range(32):
        a.v("v_mov_b32", vr(VO + i), 0)
    for s in range(8):
        tile(a, s)
        issue_slot(a, s, sRLB, s * 32768)
    for s in range(8):
        a.wait(vm=min(63, 16 * (7 - s)))
        tile(a, s)

    stamp(a, 2)
    t2 = vT[1]
    a.v("v_mov_b32", t2, vL)
    a.v("v_permlane32_swap_b32", vL, t2)
    a.v("v_add_f32", vL, vL, t2)
    a.v("v_mov_b32", t2, vL)
    a.v("v_permlane16_swap_b32", vL, t2)
    a.v("v_add_f32", vL, vL, t2)
    l = vT[0]
    a.v("v_and_b32", l, 63, vTID)
    a.v("v_bfe_u32", vT[2], l, 2, 2)
    a.s("s_lshl_b32", sT0, sWV, 5)
    a.v("v_lshl_add_u32", vT[3], vT[2], 3, sT0)
    a.s("s_lshl_b32", sT0, sWV, 11)
    a.v("v_lshl_add_u32", vT[4], vT[2], 9, sT0)
    a.v("v_lshrrev_b32", vT[5], 4, l)
    a.v("v_lshl_add_u32", vT[4], vT[5], 7, vT[4])
    set_exec(a, 0x11111111, 0x11111111)
    a.ds_write(2, vT[3], "v[6:7]", sc + SC_ML)
    for m in range(8):
        for r in range(4):
            a.ds_write(1, vT[4], vr(VO + 4 * m + r), sc + SC_O + (8 * r + m) * 4)
    exec_all(a)
    a.wait(lgkm=0)
    a.barrier()
    a.s("s_lshl_b32", sT0, sWV, 3)
    a.v("v_mov_b32", vT[3], sT0)
    a.s("s_lshl_b32", sT0, sWV, 9)
    a.v("v_lshl_add_u32", vT[4], l, 3, sT0)
    mlr = [8, 10, 12, 14]
    orr = [16, 18, 20, 22]
    for w in range(4):
        a.ds_read(2, vr(mlr[w], 2), vT[3], sc + SC_ML + w * 32)
        a.ds_read(2, vr(orr[w], 2), vT[4], sc + SC_O + w * 2048)
    a.wait(lgkm=0)
    Mg = vr(88)
    Lg = vr(89)
    a.v("v_max3_f32", Mg, vr(8), vr(10), vr(12))
    a.v("v_max_f32", Mg, Mg, vr(14))
    for w in range(4):
        a.v("v_sub_f32", vr(mlr[w]), vr(mlr[w]), Mg)
        a.v("v_mul_f32", vr(mlr[w]), sLOG2E, vr(mlr[w]))
        a.v("v_exp_f32", vr(mlr[w]), vr(mlr[w]))
    a.v("v_mul_f32", Lg, vr(8), vr(9))
    a.v("v_mul_f32", vr(90), vr(8), vr(16))
    a.v("v_mul_f32", vr(91), vr(8), vr(17))
    for w in range(1, 4):
        a.v("v_fmac_f32", Lg, vr(mlr[w]), vr(mlr[w] + 1))
        a.v("v_fmac_f32", vr(90), vr(mlr[w]), vr(orr[w]))
        a.v("v_fmac_f32", vr(91), vr(mlr[w]), vr(orr[w] + 1))
    for r in (88, 89, 90, 91):
        a.v("v_min_u32", vr(r), SENT_FIX, vr(r))
    a.s("s_lshr_b32", sT0, sWG, 5)
    a.s("s_lshl_b32", sT0, sT0, 2)
    a.s("s_add_u32", sT0, sT0, sWV)
    a.s("s_lshl_b32", sT0, sT0, 5)
    a.s("s_and_b32", sT1, sWG, 31)
    a.s("s_add_u32", sT0, sT0, sT1)
    a.s("s_lshl_b32", sT1, sT0, 9)
    a.s("s_add_u32", sT1, sT1, sLAY)
    a.s("s_add_u32", sT1, sT1, hex(PO))
    a.v("v_lshlrev_b32", vT[4], 3, l)
    a.bstore(2, "v[90:91]", vT[4], S_WS, sT1, 0, "sc1")
    a.s("s_lshl_b32", sT1, sT0, 3)
    a.s("s_add_u32", sT1, sT1, sLAY)
    a.s("s_add_u32", sT1, sT1, hex(ML))
    a.v("v_mov_b32", vT[4], 0)
    set_exec(a, 1, 0)
    a.bstore(2, "v[88:89]", vT[4], S_WS, sT1, 0, "sc1")
    exec_all(a)

    issue_wO(a, RAW_O)
    issue_wG(a, RAW_G)
    issue_wD(a, RAW_D)
    issue_wQ(a, RAW_Q)

    stamp(a, 3)
    GO = list(range(8, 24)) + list(range(96, 112))
    a.s("s_lshr_b32", sT2, sWR, 4)
    a.s("s_lshl_b32", sT2, sT2, 1)
    a.s("s_lshr_b32", sT3, sWV, 1)
    a.s("s_add_u32", sT2, sT2, sT3)
    a.v("v_and_b32", vT[3], 127, vTID)
    a.v("v_lshlrev_b32", vT[3], 2, vT[3])
    a.v("v_and_b32", vT[4], 31, vTID)
    a.v("v_lshlrev_b32", vT[4], 3, vT[4])
    a.s("s_lshl_b32", sT3, sT2, 14)
    a.s("s_add_u32", sT3, sT3, sLAY)
    a.s("s_add_u32", sT3, sT3, hex(PO))
    a.s("s_lshl_b32", sT4, sT2, 8)
    a.s("s_add_u32", sT4, sT4, sLAY)
    a.s("s_add_u32", sT4, sT4, hex(ML))
    mlp = "v[6:7]"

    def loadsO():
        a.bload(2, mlp, vT[4], S_WS, sT4, 0, "sc1")
        for c in range(32):
            if c % 8 == 0:
                a.s("s_add_u32", sT0, sT3, (c // 8) * 4096)
            a.bload(1, vr(GO[c]), vT[3], S_WS, sT0, (c % 8) * 512, "sc1")
    poll(a, loadsO, [vr(r) for r in GO] + ["v6", "v7"])
    mx, t2 = vT[0], vT[1]
    a.v("v_mov_b32", mx, vM)
    row_allreduce(a, "v_max_f32", [mx])
    a.v("v_mov_b32", t2, mx)
    a.v("v_permlane16_swap_b32", mx, t2)
    a.v("v_max_f32", mx, mx, t2)
    a.v("v_sub_f32", vM, vM, mx)
    a.v("v_mul_f32", vM, sLOG2E, vM)
    a.v("v_exp_f32", vM, vM)
    a.v("v_mul_f32", vL, vL, vM)
    row_allreduce(a, "v_add_f32", [vL])
    a.v("v_mov_b32", t2, vL)
    a.v("v_permlane16_swap_b32", vL, t2)
    a.v("v_add_f32", vL, vL, t2)
    a.v("v_rcp_f32", vL, vL)
    a.v("v_mul_f32", vM, vM, vL)
    for c in range(32):
        a.v("v_readlane_b32", sr(SW0 + c), vM, c)
    o0, o1 = vT[0], vT[1]
    a.v("v_mul_f32", o0, sr(SW0 + 0), vr(GO[0]))
    a.v("v_mul_f32", o1, sr(SW0 + 1), vr(GO[1]))
    for c in range(2, 32, 2):
        a.v("v_fmac_f32", o0, sr(SW0 + c), vr(GO[c]))
        a.v("v_fmac_f32", o1, sr(SW0 + c + 1), vr(GO[c + 1]))
    a.v("v_add_f32", o0, o0, o1)
    round_one(a, o0, vT[2])
    a.v("v_and_b32", vT[3], 0x3c, vTID)
    for i in range(4):
        a.v("v_add_u32", vT[4 + i], 64 * i, vT[3])
    for i in range(4):
        a.ds_bpermute(vr(8 + i), vT[4 + i], o0)
    unpack(a, RAW_O, 16, UU)
    a.wait(lgkm=0)
    acc = RAW_O
    for k in range(8):
        a.v("v_mul_f32", vr(acc + k), vr(8), vr(UU + k))
    for i in range(1, 4):
        for k in range(8):
            a.v("v_fmac_f32", vr(acc + k), vr(8 + i), vr(UU + 8 * i + k))
    for ctrl in ("row_ror:4", "row_ror:8"):
        for k in range(8):
            a.dpp("v_add_f32", vr(acc + k), vr(acc + k), vr(acc + k), ctrl=ctrl)
    a.v("v_lshrrev_b32", vT[3], 4, vTID)
    a.v("v_lshlrev_b32", vT[3], 7, vT[3])
    a.v("v_and_b32", vT[4], 3, vTID)
    a.v("v_lshl_add_u32", vT[3], vT[4], 5, vT[3])
    set_exec(a, 0x000f000f, 0x000f000f)
    a.ds_write(4, vT[3], vr(acc, 4), sc + SC_GO)
    a.ds_write(4, vT[3], vr(acc + 4, 4), sc + SC_GO + 16)
    exec_all(a)
    a.wait(lgkm=0)
    a.barrier()
    a.s("s_cmp_lg_u32", sWV, 0)
    a.s("s_cbranch_scc1", "L_skipO")
    a.v("v_and_b32", vT[3], 31, vTID)
    a.v("v_lshlrev_b32", vT[3], 2, vT[3])
    lds_sum16(a, vT[3], sc + SC_GO, 128, [vr(8 + i) for i in range(16)], vT[0])
    a.v("v_min_u32", vT[0], SENT_FIX, vT[0])
    a.s("s_lshr_b32", sT0, sWR, 4)
    a.s("s_lshl_b32", sT0, sT0, 11)
    a.s("s_and_b32", sT1, sWR, 15)
    a.s("s_lshl_b32", sT1, sT1, 7)
    a.s("s_add_u32", sT0, sT0, sT1)
    a.s("s_add_u32", sT0, sT0, sLAY)
    a.s("s_add_u32", sT0, sT0, hex(YP))
    set_exec(a, 0xffffffff, 0)
    a.bstore(1, vT[0], vT[3], S_WS, sT0, 0, "sc1")
    exec_all(a)
    a.label("L_skipO")

    stamp(a, 4)
    unpack(a, RAW_G, 16, UU)
    gather16_add_x(a, YP, SC_X1)
    a.s("s_cmp_ge_u32", sWR, 224)
    a.s("s_cbranch_scc1", "L_skipG")
    a.wait(lgkm=0)
    a.barrier()
    g_block(a, sT2, sT3)
    a.v("v_bfe_u32", vT[5], vTID, 3, 3)
    a.v("v_lshlrev_b32", vT[5], 2, vT[5])
    a.s("s_lshl_b32", sT0, sT2, 2)
    a.s("s_add_u32", sT0, sT0, sWV)
    a.s("s_lshl_b32", sT0, sT0, 6)
    a.v("v_add_u32", vT[5], sT0, vT[5])
    A = [vr(16), vr(17)]
    ln_from_lds(a, SC_X1, vT[5], [0, 32], A, 8)
    ag, au = 32, 40
    for k in range(8):
        a.v("v_mul_f32", vr(ag + k), A[0], vr(UU + k))
        a.v("v_mul_f32", vr(au + k), A[0], vr(UU + 16 + k))
    for k in range(8):
        a.v("v_fmac_f32", vr(ag + k), A[1], vr(UU + 8 + k))
        a.v("v_fmac_f32", vr(au + k), A[1], vr(UU + 24 + k))
    reduce8(a, [ag, au], 8)
    red_addr(a, vT[5], 8, 512, vT[6])
    set_exec(a, 0x00ff00ff, 0x00ff00ff)
    a.ds_write(2, vT[5], vr(ag, 2), SC_RG)
    a.ds_write(2, vT[5], vr(au, 2), SC_RG + 256)
    exec_all(a)
    a.wait(lgkm=0)
    a.barrier()
    a.s("s_cmp_ge_u32", sWV, 2)
    a.s("s_cbranch_scc1", "L_skipG")
    a.v("v_lshlrev_b32", vT[5], 2, vTID)
    sum4_lds(a, vT[5], SC_RG, 512, [vr(8 + i) for i in range(4)], vT[0])
    a.v("v_min_u32", vT[0], SENT_FIX, vT[0])
    a.v("v_and_b32", vT[5], 63, vTID)
    a.v("v_lshlrev_b32", vT[5], 2, vT[5])
    a.s("s_mul_i32", sT0, sT2, 14336)
    a.s("s_mul_i32", sT1, sWV, 7168)
    a.s("s_add_u32", sT0, sT0, sT1)
    a.s("s_lshl_b32", sT1, sT3, 8)
    a.s("s_add_u32", sT0, sT0, sT1)
    a.s("s_add_u32", sT0, sT0, sLAY)
    a.s("s_add_u32", sT0, sT0, hex(GP))
    a.bstore(1, vT[0], vT[5], S_WS, sT0, 0, "sc1")
    a.label("L_skipG")

    stamp(a, 5)
    unpack(a, RAW_D, 8, UU)
    a.v("v_and_b32", vT[4], 31, vTID)
    a.v("v_min_u32", vT[3], 27, vT[4])
    a.v("v_lshlrev_b32", vT[3], 2, vT[3])
    a.v("v_bfe_u32", vT[5], vTID, 5, 1)
    a.s("s_mov_b32", sT4, 7168)
    a.v("v_mul_lo_u32", vT[5], vT[5], sT4)
    a.v("v_add_u32", vT[3], vT[3], vT[5])
    a.s("s_lshr_b32", sT3, sWR, 4)
    a.s("s_lshl_b32", sT3, sT3, 2)
    a.s("s_add_u32", sT3, sT3, sWV)
    a.s("s_mul_i32", sT3, sT3, 112)
    a.s("s_add_u32", sT3, sT3, sLAY)
    a.s("s_add_u32", sT3, sT3, hex(GP))

    def loadsD():
        for p in range(8):
            a.s("s_add_u32", sT0, sT3, p * 14336)
            a.bload(1, vr(8 + p), vT[3], S_WS, sT0, 0, "sc1")
    poll(a, loadsD, [vr(8 + i) for i in range(8)])
    for n in (4, 2, 1):
        for i in range(n):
            a.v("v_add_f32", vr(8 + i), vr(8 + i), vr(8 + i + n))
    g_, u_ = vr(8), vr(9)
    round_one(a, g_, vT[0])
    a.v("v_mov_b32", u_, g_)
    a.v("v_permlane32_swap_b32", g_, u_)
    a.v("v_cmp_lt_f32", "vcc", 0, g_)
    a.v("v_cndmask_b32", vT[0], 0, "1.0", "vcc")
    a.v("v_mul_f32", g_, g_, vT[0])
    a.v("v_mul_f32", g_, g_, u_)
    round_one(a, g_, vT[0])
    a.v("v_cmp_gt_u32", "vcc", 28, vT[4])
    a.v("v_cndmask_b32", g_, 0, g_, "vcc")
    a.v("v_and_b32", vT[3], 0x3c, vTID)
    a.v("v_add_u32", vT[5], 64, vT[3])
    a.ds_bpermute(vr(10), vT[3], g_)
    a.ds_bpermute(vr(11), vT[5], g_)
    a.wait(lgkm=0)
    acc = 32
    for k in range(8):
        a.v("v_mul_f32", vr(acc + k), vr(10), vr(UU + k))
    for k in range(8):
        a.v("v_fmac_f32", vr(acc + k), vr(11), vr(UU + 8 + k))
    reduce8(a, [acc], 4)
    red_addr(a, vT[5], 4, 128, vT[6])
    set_exec(a, 0x000f000f, 0x000f000f)
    a.ds_write(2, vT[5], vr(acc, 2), SC_RD)
    exec_all(a)
    a.wait(lgkm=0)
    a.barrier()
    a.s("s_cmp_lg_u32", sWV, 0)
    a.s("s_cbranch_scc1", "L_skipD")
    a.v("v_and_b32", vT[5], 31, vTID)
    a.v("v_lshlrev_b32", vT[5], 2, vT[5])
    sum4_lds(a, vT[5], SC_RD, 128, [vr(8 + i) for i in range(4)], vT[0])
    a.v("v_min_u32", vT[0], SENT_FIX, vT[0])
    a.s("s_lshr_b32", sT0, sWR, 4)
    a.s("s_lshl_b32", sT0, sT0, 11)
    a.s("s_and_b32", sT1, sWR, 15)
    a.s("s_lshl_b32", sT1, sT1, 7)
    a.s("s_add_u32", sT0, sT0, sT1)
    a.s("s_add_u32", sT0, sT0, sLAY)
    a.s("s_add_u32", sT0, sT0, hex(DPP))
    set_exec(a, 0xffffffff, 0)
    a.bstore(1, vT[0], vT[5], S_WS, sT0, 0, "sc1")
    exec_all(a)
    a.label("L_skipD")
    stamp(a, 6)
    a.s("s_mul_i32", sT0, sWG, sLAYER)
    a.s("s_cmp_lg_u32", sT0, 0)
    a.s("s_cbranch_scc1", "L_end")

    unpack(a, RAW_Q, 16, UU)
    gather16_add_x(a, DPP, SC_X2)
    a.s("s_cmp_eq_u32", sLAYER, 0)
    a.s("s_cbranch_scc1", "L_stQ")
    a.v("v_cvt_pk_bf16_f32", vT[0], vX0, vX1)
    a.v("v_lshlrev_b32", vT[3], 2, vTID)
    a.bstore(1, vT[0], vT[3], S_OUT, 0, 0)
    stamp(a, 7)
    a.s("s_branch", "L_end")
    a.label("L_stQ")
    a.wait(lgkm=0)
    a.barrier()
    q_gemv(a, SC_X2, hex(LSTR + QP), "L_skipQ")
    stamp(a, 7)
    a.s("s_mov_b32", sLAYER, 1)
    a.s("s_mov_b32", sLAY, hex(LSTR))
    a.s("s_mov_b32", sRLB, sKVB)
    a.s("s_lshr_b32", sT2, sWG, 5)
    a.s("s_lshl_b32", sT2, sT2, 11)
    a.s("s_add_u32", sQB, sT2, hex(LSTR + QP))
    poll(a, lambda: q_gather_issue(a), [vr(QG + i) for i in range(32)])
    q_gather_sum(a)
    a.s("s_branch", "L_pass")
    a.label("L_end", pad=False)
    a.raw("  s_endpgm")
    return a.text()


def gen_init():
    a = Asm()
    kn = "init_kernel"
    a.raw(f".globl {kn}\n.p2align 8\n.type {kn},@function\n{kn}:")
    prologue_common(a, "L_iend")
    load_x(a)
    issue_wQ(a, RAW_Q)
    for i in range(4):
        a.v("v_mov_b32", vr(8 + i), -1)
    a.v("v_lshlrev_b32", vT[4], 4, vTID)
    a.s("s_mul_i32", sT0, sWG, 3072)
    a.s("s_add_u32", sT1, sT0, hex(LSTR))
    a.s("s_cmp_ge_u32", sWV, 3)
    a.s("s_cbranch_scc1", "L_iskip")
    a.bstore(4, "v[8:11]", vT[4], S_WS, sT0, 0)
    a.bstore(4, "v[8:11]", vT[4], S_WS, sT1, 0)
    a.label("L_iskip")
    a.wait(vm=0)
    unpack_x(a)
    unpack(a, RAW_Q, 16, UU)
    a.v("v_lshlrev_b32", vT[3], 3, vTID)
    a.ds_write(2, vT[3], "v[4:5]", SC_X2)
    a.wait(lgkm=0)
    a.barrier()
    q_gemv(a, SC_X2, hex(Q0), "L_iskipQ")
    a.label("L_iend", pad=False)
    a.raw("  s_endpgm")
    return a.text()


def kd(name, nv, acc):
    return f""".amdhsa_kernel {name}
  .amdhsa_next_free_vgpr {nv}
  .amdhsa_next_free_sgpr 102
  .amdhsa_accum_offset {acc}
  .amdhsa_group_segment_fixed_size 0
  .amdhsa_kernarg_size 96
  .amdhsa_user_sgpr_count 2
  .amdhsa_user_sgpr_kernarg_segment_ptr 1
  .amdhsa_system_sgpr_workgroup_id_x 1
.end_amdhsa_kernel
"""


def main():
    ref = open(f"cdna_kernels/{NAME}.s.ref").read()
    head = []
    for line in ref.splitlines():
        if line.startswith("; @launch"):
            break
        head.append(line)
    out = "\n".join(head) + "\n"
    out += f"; @launch kernel=init_kernel grid=(256,1,1) block=(256,1,1) lds={SC_END}\n"
    out += "; @launch kernel=main_kernel grid=(256,1,1) block=(256,1,1) lds=163840\n"
    out += '.amdgcn_target "amdgcn-amd-amdhsa--gfx950"\n.text\n'
    out += gen_init()
    out += gen_main()
    out += '.section .rodata,"a"\n.p2align 6\n'
    out += kd("init_kernel", 128, 128)
    out += ".p2align 6\n"
    out += kd("main_kernel", 512, 256)
    dst = sys.argv[1] if len(sys.argv) > 1 else f"cdna_kernels/{NAME}.s"
    open(dst, "w").write(out)
    print("wrote", dst, len(out), "bytes")


if __name__ == "__main__":
    main()
```

```python
import re

TRANS = ("v_exp_f32", "v_log_f32", "v_rcp_f32", "v_rsq_f32", "v_sqrt_f32", "v_sin_f32", "v_cos_f32")


def regs_of(tok):
    tok = tok.strip()
    if tok.startswith("-"):
        tok = tok[1:]
    m = re.fullmatch(r"abs\((.*)\)", tok)
    if m:
        tok = m.group(1)
    m = re.fullmatch(r"([vas])(\d+)", tok)
    if m:
        return {(m.group(1), int(m.group(2)))}
    m = re.fullmatch(r"([vas])\[(\d+):(\d+)\]", tok)
    if m:
        return {(m.group(1), i) for i in range(int(m.group(2)), int(m.group(3)) + 1)}
    if tok in ("vcc", "vcc_lo", "vcc_hi"):
        return {("vcc", 0)}
    if tok == "m0":
        return {("m0", 0)}
    if tok == "exec":
        return {("exec", 0)}
    return set()


class Ins:
    __slots__ = ("kind", "w", "r", "rc", "op", "store_data")

    def __init__(self, kind, w=(), r=(), rc=(), op="", store_data=()):
        self.kind = kind
        self.w = set(w)
        self.r = set(r)
        self.rc = set(rc)
        self.op = op
        self.store_data = set(store_data)


class Asm:
    def __init__(self):
        self.lines = []
        self.hist = []

    def raw(self, text):
        self.lines.append(text)

    def comment(self, text):
        self.lines.append("  ; " + text)

    def label(self, name, pad=True):
        if pad:
            self.nop(10)
        self.lines.append(name + ":")

    def nop(self, n):
        while n > 0:
            k = min(n, 16)
            self.lines.append(f"  s_nop {k-1}")
            self.hist.append((Ins("nop"), k))
            n -= k
        self.hist = self.hist[-40:]

    def _need(self, new, is_dpp=False, is_perm=False, is_rdlane=False, lanesel=(), ldsdma=False):
        need = 0
        dist = 0
        vg = lambda s: {x for x in s if x[0] in ("v", "a")}
        sg = lambda s: {x for x in s if x[0] in ("s", "vcc")}
        for ins, st in reversed(self.hist):
            req = 0
            k = ins.kind
            if k in ("valu", "trans", "dot"):
                wv = vg(ins.w)
                ws = sg(ins.w)
                if is_dpp and wv & new.r:
                    req = max(req, 2)
                if is_perm and wv & new.r:
                    req = max(req, 2)
                if is_rdlane and wv & new.r:
                    req = max(req, 1)
                if k == "trans" and new.kind in ("valu", "dot") and wv & new.r:
                    req = max(req, 1)
                if k == "dot" and new.kind != "nop" and new.op != ins.op and (wv & (new.r | new.w)):
                    req = max(req, 3)
                if k == "dot" and new.op == ins.op and (wv & (new.r - new.rc)):
                    req = max(req, 3)
                if new.kind == "mfma" and wv & new.r:
                    req = max(req, 2)
                if ws and new.kind in ("valu", "trans", "dot") and ws & new.r:
                    req = max(req, 2)
                if ws and new.kind == "vmem" and ws & new.r:
                    req = max(req, 5)
                if ws and lanesel and ws & set(lanesel):
                    req = max(req, 4)
                if ws and new.kind == "salu" and ws & new.r:
                    req = max(req, 1)
                if ("exec", 0) in ins.w:
                    req = max(req, 5)
            if k == "mfma":
                d = ins.w
                if new.kind == "mfma":
                    ab = new.r - new.rc
                    if d & ab:
                        req = max(req, 8)
                    if d & new.rc and d != new.rc:
                        req = max(req, 6)
                    if d & new.w and d != new.w:
                        req = max(req, 8)
                elif new.kind in ("valu", "trans", "dot", "vmem", "ds"):
                    if d & (new.r | new.w):
                        req = max(req, 8)
                if new.kind in ("valu", "trans", "dot") and ins.rc & new.w:
                    req = max(req, 3)
            if k == "salu" and ("m0", 0) in ins.w and ldsdma:
                req = max(req, 1)
            if k == "vmem" and ins.store_data and (ins.store_data & new.w):
                req = max(req, 2)
            if req > dist:
                need = max(need, req - dist)
            dist += st
            if dist > 24:
                break
        return need

    def _push(self, text, ins, **kw):
        n = self._need(ins, **kw)
        if n:
            self.nop(n)
        self.lines.append("  " + text)
        self.hist.append((ins, 1))
        self.hist = self.hist[-40:]

    def v(self, op, *ops, mods=""):
        ops = [str(o) for o in ops]
        text = op + " " + ", ".join(ops) + ((" " + mods) if mods else "")
        base = op.replace("_dpp", "").replace("_e32", "").replace("_e64", "")
        w = regs_of(ops[0])
        r = set()
        for o in ops[1:]:
            r |= regs_of(o)
        is_dpp = ("quad_perm" in mods) or ("row_" in mods)
        is_perm = base.startswith("v_permlane")
        is_rd = base in ("v_readlane_b32", "v_readfirstlane_b32")
        lanesel = ()
        rc = set()
        kind = "valu"
        if base in TRANS:
            kind = "trans"
        if base.startswith("v_dot2"):
            kind = "dot"
            rc = regs_of(ops[3])
        if base.startswith("v_fmac") or is_dpp:
            r |= w
        if is_perm:
            w |= regs_of(ops[1])
            r |= regs_of(ops[0])
        if base == "v_cndmask_b32" and len(ops) == 3:
            r |= {("vcc", 0)}
        if base in ("v_add_co_u32", "v_addc_co_u32"):
            w |= regs_of(ops[1])
        if base == "v_readlane_b32":
            lanesel = regs_of(ops[2])
        self._push(text, Ins(kind, w, r, rc, base), is_dpp=is_dpp, is_perm=is_perm, is_rdlane=is_rd, lanesel=lanesel)

    def dpp(self, op, dst, s0, s1=None, ctrl=""):
        mods = ctrl + " row_mask:0xf bank_mask:0xf"
        if s1 is None:
            self.v(op + "_dpp", dst, s0, mods=mods)
        else:
            self.v(op + "_dpp", dst, s0, s1, mods=mods)

    def mfma(self, d, a, b, c):
        text = f"v_mfma_f32_16x16x32_bf16 {d}, {a}, {b}, {c}"
        rc = regs_of(str(c))
        self._push(text, Ins("mfma", regs_of(d), regs_of(a) | regs_of(b) | rc, rc, "mfma"))

    def s(self, op, *ops):
        ops = [str(o) for o in ops]
        text = op + (" " + ", ".join(ops) if ops else "")
        w = regs_of(ops[0]) if ops and not op.startswith(("s_cmp", "s_cbranch", "s_branch", "s_waitcnt", "s_barrier", "s_sleep", "s_setprio")) else set()
        r = set()
        for o in ops[1:] if w else ops:
            r |= regs_of(o)
        if op.startswith("s_cbranch_vcc"):
            r |= {("vcc", 0)}
        self._push(text, Ins("salu", w, r, op=op))

    def wait(self, vm=None, lgkm=None):
        parts = []
        if vm is not None:
            assert 0 <= vm <= 63
            parts.append(f"vmcnt({vm})")
        if lgkm is not None:
            assert 0 <= lgkm <= 15
            parts.append(f"lgkmcnt({lgkm})")
        self._push("s_waitcnt " + " ".join(parts), Ins("other"))

    def barrier(self):
        self._push("s_barrier", Ins("other"))

    def bload(self, width, dst, voff, srd, soff, offset=0, flags=""):
        sfx = {1: "", 2: "x2", 4: "x4"}[width]
        assert 0 <= offset <= 4095, offset
        text = f"buffer_load_dword{sfx} {dst}, {voff}, {srd}, {soff} offen"
        if offset:
            text += f" offset:{offset}"
        if flags:
            text += " " + flags
        self._push(text, Ins("vmem", regs_of(dst), regs_of(voff) | regs_of(srd) | regs_of(str(soff))))

    def bload_lds(self, voff, srd, soff, offset=0, flags=""):
        assert 0 <= offset <= 4095, offset
        text = f"buffer_load_dwordx4 {voff}, {srd}, {soff} offen"
        if offset:
            text += f" offset:{offset}"
        if flags:
            text += " " + flags
        text += " lds"
        self._push(text, Ins("vmem", (), regs_of(voff) | regs_of(srd) | regs_of(str(soff))), ldsdma=True)

    def bstore(self, width, data, voff, srd, soff, offset=0, flags=""):
        sfx = {1: "", 2: "x2", 4: "x4"}[width]
        assert 0 <= offset <= 4095, offset
        text = f"buffer_store_dword{sfx} {data}, {voff}, {srd}, {soff} offen"
        if offset:
            text += f" offset:{offset}"
        if flags:
            text += " " + flags
        self._push(text, Ins("vmem", (), regs_of(data) | regs_of(voff) | regs_of(srd) | regs_of(str(soff)),
                             store_data=regs_of(data)))

    def batomic_add(self, data, voff, srd, soff, flags=""):
        text = f"buffer_atomic_add {data}, {voff}, {srd}, {soff} offen"
        if flags:
            text += " " + flags
        self._push(text, Ins("vmem", (), regs_of(data) | regs_of(voff) | regs_of(srd) | regs_of(str(soff)),
                             store_data=regs_of(data)))

    def ds_read(self, width, dst, addr, offset=0):
        sfx = {1: "b32", 2: "b64", 4: "b128"}[width]
        assert 0 <= offset <= 65535
        text = f"ds_read_{sfx} {dst}, {addr}" + (f" offset:{offset}" if offset else "")
        self._push(text, Ins("ds", regs_of(dst), regs_of(addr)))

    def ds_write(self, width, addr, data, offset=0):
        sfx = {1: "b32", 2: "b64", 4: "b128"}[width]
        assert 0 <= offset <= 65535
        text = f"ds_write_{sfx} {addr}, {data}" + (f" offset:{offset}" if offset else "")
        self._push(text, Ins("ds", (), regs_of(addr) | regs_of(data)))

    def ds_bpermute(self, dst, addr, src):
        self._push(f"ds_bpermute_b32 {dst}, {addr}, {src}", Ins("ds", regs_of(dst), regs_of(addr) | regs_of(src)))

    def text(self):
        return "\n".join(self.lines) + "\n"


def vr(b, n=1):
    return f"v{b}" if n == 1 else f"v[{b}:{b+n-1}]"


def ar(b, n=1):
    return f"a{b}" if n == 1 else f"a[{b}:{b+n-1}]"


def sr(b, n=1):
    return f"s{b}" if n == 1 else f"s[{b}:{b+n-1}]"
```

```python
import sys
from asmlib import *

NAME = "interleave_layers__gqa_block_cached__glu_gated_reglu__decode"
EMU_ROUND = True
import os
STAMPS = bool(int(os.environ.get("STAMPS", "0")))
SINGLE = bool(int(os.environ.get("SINGLE", "1")))

LSTR = 0x100000
QP, DPP, YP, GP, ML, PO, ZONE = 0x0, 0x10000, 0x18000, 0x20000, 0x3C000, 0x40000, 0xC0000
Q0 = 0x200000
WS_BYTES = 0x300000

SC_O = 0
SC_ML = 8192
SC_GO = 9216
SC_X1 = 11264
SC_X2 = 13312
SC_RG = 15360
SC_RD = 17408
SC_RQ = 17920
SC_Q = 18944
SC_QF = 19968
SC_END = 20224

S_K, S_V, S_WQ, S_WO, S_WG, S_WU, S_WD, S_WS, S_X, S_OUT = [sr(8 + 4 * i, 4) for i in range(10)]
sWG, sWV = "s2", "s3"
sLAYER, sKVB, sRLB, sT0, sT1, sLAY, sQB, sTO = "s48", "s49", "s50", "s51", "s52", "s53", "s54", "s55"
sC, sLOG2E, sSELLO, sSELHI, sT2, sLDSW, sT3, sT4 = "s56", "s57", "s58", "s59", "s60", "s61", "s62", "s63"
SW0 = 64
S_DBG = sr(88, 4)
sWR, sWRG = "s4", "s5"

vTID, vKOFF, vVOFF, vLDS = "v0", "v1", "v2", "v3"
vX0, vX1 = "v4", "v5"
vM, vL = "v6", "v7"
VQ = 8
VP = 12
VPB = (16, 20)
vT = [f"v{24+i}" for i in range(8)]
VO = 32
VD = 64
VTMP = 96
VV = 128

RAW_O, RAW_G, RAW_Q, RAW_D = 32, 48, 64, 80
UU = 96
GATH = list(range(8, 24)) + list(range(32, 48))

C_SCALE = 0x3DB504F3
LOG2E = 0x3FB8AA3B
SENT_FIX = "0xfffffffe"


def f32bits(x):
    import struct
    return struct.unpack("<I", struct.pack("<f", x))[0]


assert f32bits(128 ** -0.5) == C_SCALE, hex(f32bits(128 ** -0.5))


def set_exec(a, lo, hi):
    a.s("s_mov_b32", "exec_lo", hex(lo))
    a.s("s_mov_b32", "exec_hi", hex(hi))


def exec_all(a):
    a.s("s_mov_b64", "exec", "-1")


def round_pair(a, x0, x1, tmp):
    a.v("v_cvt_pk_bf16_f32", tmp, x0, x1)
    a.v("v_lshlrev_b32", x0, 16, tmp)
    a.v("v_and_b32", x1, "0xffff0000", tmp)


def round_one(a, x0, tmp):
    a.v("v_cvt_pk_bf16_f32", tmp, x0, x0)
    a.v("v_lshlrev_b32", x0, 16, tmp)


def row_allreduce(a, op, regs):
    for ctrl in ("quad_perm:[1,0,3,2]", "quad_perm:[2,3,0,1]", "row_half_mirror", "row_mirror"):
        for r in regs:
            a.dpp(op, r, r, r, ctrl=ctrl)


def prologue_common(a, lbl_end):
    a.s("s_cmp_ge_u32", sWG, 256)
    a.s("s_cbranch_scc1", lbl_end)
    a.raw("  s_load_dwordx16 s[64:79], s[0:1], 0")
    a.raw("  s_load_dwordx8 s[80:87], s[0:1], 64")
    a.v("v_lshrrev_b32", vT[0], 6, vTID)
    a.v("v_readfirstlane_b32", sWV, vT[0])
    a.raw("  s_waitcnt lgkmcnt(0)")
    srds = [(8, 66, 0x8000000), (12, 68, 0x8000000), (16, 70, 0x400000), (20, 72, 0x400000),
            (24, 76, 512 * 1792 * 2), (28, 78, 512 * 1792 * 2), (32, 80, 1792 * 512 * 2),
            (36, 86, WS_BYTES), (40, 64, 1024), (44, 82, 1024), (88, 84, 256)]
    for d, p, n in srds:
        a.s("s_mov_b32", sr(d), sr(p))
        a.s("s_and_b32", sr(d + 1), sr(p + 1), "0xffff")
        a.s("s_mov_b32", sr(d + 2), hex(n))
        a.s("s_mov_b32", sr(d + 3), "0x00020000")
    a.s("s_mov_b32", sC, hex(C_SCALE))
    a.s("s_mov_b32", sLOG2E, hex(LOG2E))
    a.s("s_mov_b32", sSELLO, "0x05040100")
    a.s("s_mov_b32", sSELHI, "0x07060302")
    a.s("s_mov_b32", sTO, hex(1 << 18))
    a.s("s_and_b32", sT0, sWG, 7)
    a.s("s_lshr_b32", sT1, sWG, 3)
    a.s("s_lshl_b32", sWR, sT0, 5)
    a.s("s_add_u32", sWR, sWR, sT1)
    a.s("s_mul_i32", sWRG, sT0, 28)
    a.s("s_add_u32", sWRG, sWRG, sT1)
    l = vT[0]
    a.v("v_and_b32", l, 63, vTID)
    a.v("v_lshlrev_b32", vVOFF, 4, l)
    a.v("v_bfe_u32", vT[1], l, 2, 2)
    a.v("v_lshlrev_b32", vKOFF, 8, vT[1])
    a.v("v_lshrrev_b32", vT[2], 4, l)
    a.v("v_lshl_add_u32", vKOFF, vT[2], 6, vKOFF)
    a.v("v_and_b32", vT[3], 3, l)
    a.v("v_lshl_add_u32", vKOFF, vT[3], 4, vKOFF)
    a.s("s_lshl_b32", sLDSW, sWV, 15)
    a.s("s_add_u32", sLDSW, sLDSW, 32768)
    a.v("v_add_u32", vLDS, sLDSW, vVOFF)


def load_x(a):
    a.v("v_lshlrev_b32", vT[4], 2, vTID)
    a.bload(1, vX0, vT[4], S_X, 0)


def unpack_x(a):
    a.v("v_and_b32", vX1, "0xffff0000", vX0)
    a.v("v_lshlrev_b32", vX0, 16, vX0)


def lane_voff(a, dst, sh_c, rowbytes, tmp):
    a.v("v_and_b32", tmp, 63, vTID)
    a.v("v_lshrrev_b32", dst, sh_c, tmp)
    a.s("s_mov_b32", sT4, rowbytes)
    a.v("v_mul_lo_u32", dst, dst, sT4)
    a.v("v_and_b32", tmp, (1 << sh_c) - 1, tmp)
    a.v("v_lshl_add_u32", dst, tmp, 4, dst)


def g_block(a, rb, cb):
    a.s("s_mul_i32", rb, sWR, 2341)
    a.s("s_lshr_b32", rb, rb, 16)
    a.s("s_mul_i32", cb, rb, 28)
    a.s("s_sub_u32", cb, sWR, cb)


def issue_wQ(a, raw):
    lane_voff(a, vT[5], 3, 8192, vT[6])
    a.s("s_lshr_b32", sT0, sWR, 6)
    a.s("s_lshl_b32", sT0, sT0, 20)
    a.s("s_lshl_b32", sT1, sWV, 18)
    a.s("s_add_u32", sT0, sT0, sT1)
    a.s("s_and_b32", sT1, sWR, 63)
    a.s("s_lshl_b32", sT1, sT1, 7)
    a.s("s_add_u32", sT0, sT0, sT1)
    for i in range(4):
        a.bload(4, vr(raw + 4 * i, 4), vT[5], S_WQ, sT0, 0)
        if i < 3:
            a.s("s_add_u32", sT0, sT0, 65536)


def issue_wG(a, raw):
    lane_voff(a, vT[5], 3, 3584, vT[6])
    g_block(a, sT2, sT3)
    a.s("s_lshl_b32", sT0, sT2, 2)
    a.s("s_add_u32", sT0, sT0, sWV)
    a.s("s_mul_i32", sT0, sT0, 16 * 3584)
    a.s("s_lshl_b32", sT1, sT3, 7)
    a.s("s_add_u32", sT0, sT0, sT1)
    a.s("s_add_u32", sT1, sT0, 8 * 3584)
    a.bload(4, vr(raw + 0, 4), vT[5], S_WG, sT0, 0)
    a.bload(4, vr(raw + 4, 4), vT[5], S_WG, sT1, 0)
    a.bload(4, vr(raw + 8, 4), vT[5], S_WU, sT0, 0)
    a.bload(4, vr(raw + 12, 4), vT[5], S_WU, sT1, 0)


def issue_wD(a, raw):
    lane_voff(a, vT[5], 2, 1024, vT[6])
    a.s("s_lshr_b32", sT0, sWR, 4)
    a.s("s_lshl_b32", sT0, sT0, 2)
    a.s("s_add_u32", sT0, sT0, sWV)
    a.s("s_mul_i32", sT0, sT0, 28 * 1024)
    a.s("s_and_b32", sT1, sWR, 15)
    a.s("s_lshl_b32", sT1, sT1, 6)
    a.s("s_add_u32", sT0, sT0, sT1)
    a.s("s_add_u32", sT1, sT0, 16384)
    a.bload(4, vr(raw + 0, 4), vT[5], S_WD, sT0, 0)
    a.bload(4, vr(raw + 4, 4), vT[5], S_WD, sT1, 0)


def issue_wO(a, raw):
    lane_voff(a, vT[5], 2, 1024, vT[6])
    a.s("s_lshr_b32", sT0, sWR, 4)
    a.s("s_lshl_b32", sT0, sT0, 18)
    a.s("s_lshl_b32", sT1, sWV, 16)
    a.s("s_add_u32", sT0, sT0, sT1)
    a.s("s_and_b32", sT1, sWR, 15)
    a.s("s_lshl_b32", sT1, sT1, 6)
    a.s("s_add_u32", sT0, sT0, sT1)
    for i in range(4):
        a.bload(4, vr(raw + 4 * i, 4), vT[5], S_WO, sT0, 0)
        if i < 3:
            a.s("s_add_u32", sT0, sT0, 16384)


def unpack(a, raw, n, dst):
    for i in range(n):
        a.v("v_lshlrev_b32", vr(dst + 2 * i), 16, vr(raw + i))
        a.v("v_and_b32", vr(dst + 2 * i + 1), "0xffff0000", vr(raw + i))


def lds_sum16(a, addr, base, stride, regs, out):
    for p in range(16):
        a.ds_read(1, regs[p], addr, base + p * stride)
    a.wait(lgkm=0)
    n = 16
    while n > 1:
        for i in range(n // 2):
            a.v("v_add_f32", regs[i], regs[i], regs[i + n // 2])
        n //= 2
    if out != regs[0]:
        a.v("v_mov_b32", out, regs[0])


def wave_allreduce_add(a, x, t):
    row_allreduce(a, "v_add_f32", [x])
    a.v("v_mov_b32", t, x)
    a.v("v_permlane32_swap_b32", x, t)
    a.v("v_add_f32", x, x, t)
    a.v("v_mov_b32", t, x)
    a.v("v_permlane16_swap_b32", x, t)
    a.v("v_add_f32", x, x, t)


def ln_from_lds(a, scx, vrows, offs, outs, tq):
    s, mean, t, tmp, la = vT[0], vT[1], vT[2], vT[3], vT[4]
    a.v("v_and_b32", la, 63, vTID)
    a.v("v_lshlrev_b32", la, 5, la)
    a.ds_read(4, vr(tq, 4), la, scx)
    a.ds_read(4, vr(tq + 4, 4), la, scx + 16)
    for o, off in zip(outs, offs):
        a.ds_read(1, o, vrows, scx + off)
    a.wait(lgkm=len(outs))
    X = [vr(tq + k) for k in range(8)]
    a.v("v_add_f32", s, X[0], X[1])
    a.v("v_add_f32", t, X[2], X[3])
    a.v("v_add_f32", s, s, X[4])
    a.v("v_add_f32", t, t, X[5])
    a.v("v_add_f32", s, s, X[6])
    a.v("v_add_f32", t, t, X[7])
    a.v("v_add_f32", s, s, t)
    wave_allreduce_add(a, s, t)
    a.v("v_mul_f32", mean, hex(f32bits(1.0 / 512)), s)
    for k in range(8):
        a.v("v_sub_f32", X[k], X[k], mean)
    a.v("v_mul_f32", s, X[0], X[0])
    a.v("v_mul_f32", t, X[1], X[1])
    for k in range(2, 8, 2):
        a.v("v_fmac_f32", s, X[k], X[k])
        a.v("v_fmac_f32", t, X[k + 1], X[k + 1])
    a.v("v_add_f32", s, s, t)
    wave_allreduce_add(a, s, t)
    a.v("v_mul_f32", s, hex(f32bits(1.0 / 512)), s)
    round_pair(a, mean, s, tmp)
    a.v("v_add_f32", s, hex(f32bits(1e-5)), s)
    round_one(a, s, tmp)
    a.v("v_sqrt_f32", s, s)
    round_one(a, s, tmp)
    a.v("v_rcp_f32", s, s)
    a.wait(lgkm=0)
    for i in range(0, len(outs), 2):
        a0, a1 = outs[i], outs[i + 1]
        a.v("v_sub_f32", a0, a0, mean)
        a.v("v_sub_f32", a1, a1, mean)
        round_pair(a, a0, a1, tmp)
        a.v("v_mul_f32", a0, a0, s)
        a.v("v_mul_f32", a1, a1, s)
        round_pair(a, a0, a1, tmp)


def reduce8(a, accs, nc):
    for b in accs:
        for k in range(4):
            a.v("v_permlane32_swap_b32", vr(b + k), vr(b + k + 4))
    for b in accs:
        for k in range(4):
            a.v("v_add_f32", vr(b + k), vr(b + k), vr(b + k + 4))
    for b in accs:
        a.v("v_permlane16_swap_b32", vr(b + 0), vr(b + 2))
        a.v("v_permlane16_swap_b32", vr(b + 1), vr(b + 3))
    for b in accs:
        a.v("v_add_f32", vr(b + 0), vr(b + 0), vr(b + 2))
        a.v("v_add_f32", vr(b + 1), vr(b + 1), vr(b + 3))
    steps = {8: ["row_ror:8"], 4: ["row_ror:4", "row_ror:8"]}[nc]
    for ctrl in steps:
        for b in accs:
            a.dpp("v_add_f32", vr(b), vr(b), vr(b), ctrl=ctrl)
            a.dpp("v_add_f32", vr(b + 1), vr(b + 1), vr(b + 1), ctrl=ctrl)


def red_addr(a, dst, nc, wvstride, tmp):
    a.v("v_and_b32", tmp, nc - 1, vTID)
    a.v("v_lshlrev_b32", dst, 5, tmp)
    a.v("v_bfe_u32", tmp, vTID, 4, 2)
    a.v("v_lshl_add_u32", dst, tmp, 3, dst)
    a.s("s_mul_i32", sT4, sWV, wvstride)
    a.v("v_add_u32", dst, sT4, dst)


def sum4_lds(a, addr, base, stride, regs, out):
    for p in range(4):
        a.ds_read(1, regs[p], addr, base + p * stride)
    a.wait(lgkm=0)
    a.v("v_add_f32", regs[0], regs[0], regs[1])
    a.v("v_add_f32", regs[2], regs[2], regs[3])
    a.v("v_add_f32", out, regs[0], regs[2])


def q_gemv(a, scx, base_s, lbl):
    a.v("v_bfe_u32", vT[5], vTID, 3, 3)
    a.v("v_lshlrev_b32", vT[5], 2, vT[5])
    a.s("s_lshr_b32", sT0, sWR, 6)
    a.s("s_lshl_b32", sT0, sT0, 9)
    a.s("s_lshl_b32", sT1, sWV, 7)
    a.s("s_add_u32", sT0, sT0, sT1)
    a.v("v_add_u32", vT[5], sT0, vT[5])
    A = [vr(16 + i) for i in range(4)]
    ln_from_lds(a, scx, vT[5], [32 * i for i in range(4)], A, 8)
    acc = 32
    for k in range(8):
        a.v("v_mul_f32", vr(acc + k), A[0], vr(UU + k))
    for i in range(1, 4):
        for k in range(8):
            a.v("v_fmac_f32", vr(acc + k), A[i], vr(UU + 8 * i + k))
    reduce8(a, [acc], 8)
    red_addr(a, vT[5], 8, 256, vT[6])
    set_exec(a, 0x00ff00ff, 0x00ff00ff)
    a.ds_write(2, vT[5], vr(acc, 2), SC_RQ)
    exec_all(a)
    a.wait(lgkm=0)
    a.barrier()
    a.s("s_cmp_lg_u32", sWV, 0)
    a.s("s_cbranch_scc1", lbl)
    a.v("v_lshlrev_b32", vT[5], 2, vTID)
    sum4_lds(a, vT[5], SC_RQ, 256, [vr(8 + i) for i in range(4)], vT[0])
    a.v("v_min_u32", vT[0], SENT_FIX, vT[0])
    a.s("s_lshr_b32", sT0, sWR, 6)
    a.s("s_lshl_b32", sT0, sT0, 14)
    a.s("s_and_b32", sT1, sWR, 63)
    a.s("s_lshl_b32", sT1, sT1, 8)
    a.s("s_add_u32", sT0, sT0, sT1)
    a.s("s_add_u32", sT0, sT0, base_s)
    a.bstore(1, vT[0], vT[5], S_WS, sT0, 0, "sc1")
    a.label(lbl)


QG = 64


def q_gather_issue(a):
    a.v("v_lshlrev_b32", vT[3], 1, vKOFF)
    for p in range(4):
        a.s("s_add_u32", sT0, sQB, p * 16384)
        a.bload(4, vr(QG + 8 * p, 4), vT[3], S_WS, sT0, 0, "sc1")
        a.bload(4, vr(QG + 8 * p + 4, 4), vT[3], S_WS, sT0, 16, "sc1")


def q_gather_sum(a):
    for k in range(8):
        a.v("v_add_f32", vr(QG + k), vr(QG + k), vr(QG + 8 + k))
        a.v("v_add_f32", vr(QG + 16 + k), vr(QG + 16 + k), vr(QG + 24 + k))
    for k in range(8):
        a.v("v_add_f32", vr(QG + k), vr(QG + k), vr(QG + 16 + k))
    for e in range(4):
        a.v("v_cvt_pk_bf16_f32", vr(VQ + e), vr(QG + 2 * e), vr(QG + 2 * e + 1))


def gather16_add_x(a, base_off, scx):
    a.v("v_lshlrev_b32", vT[3], 3, vTID)
    a.s("s_add_u32", sT3, sLAY, hex(base_off))

    def loads():
        for p in range(16):
            if p % 2 == 0:
                a.s("s_add_u32", sT0, sT3, (p // 2) * 4096)
            a.bload(2, vr(GATH[2 * p], 2), vT[3], S_WS, sT0, (p % 2) * 2048, "sc1")
    poll(a, loads, [vr(r) for r in GATH])
    n = 16
    while n > 1:
        for i in range(n // 2):
            for h in range(2):
                a.v("v_add_f32", vr(GATH[2 * i + h]), vr(GATH[2 * i + h]), vr(GATH[2 * (i + n // 2) + h]))
        n //= 2
    round_pair(a, vr(GATH[0]), vr(GATH[1]), vT[0])
    a.v("v_add_f32", vX0, vX0, vr(GATH[0]))
    a.v("v_add_f32", vX1, vX1, vr(GATH[1]))
    round_pair(a, vX0, vX1, vT[0])
    if scx is not None:
        a.ds_write(2, vT[3], "v[4:5]", scx)


def stamp(a, idx, layered=True):
    if not STAMPS:
        return
    a.raw("  s_memrealtime s[98:99]")
    a.s("s_lshl_b32", "s100", sWG, 2)
    a.s("s_add_u32", "s100", "s100", sWV)
    a.s("s_lshl_b32", "s100", "s100", 7)
    a.s("s_add_u32", "s100", "s100", hex(0x280000 + idx * 4))
    if layered:
        a.s("s_lshl_b32", "s101", sLAYER, 6)
        a.s("s_add_u32", "s100", "s100", "s101")
    a.raw("  s_waitcnt lgkmcnt(0)")
    a.v("v_mov_b32", vT[7], "s98")
    a.v("v_mov_b32", vT[6], 0)
    set_exec(a, 1, 0)
    a.bstore(1, vT[7], vT[6], S_WS, "s100", 0)
    exec_all(a)


_pollid = [0]


def poll(a, issue_loads, regs):
    _pollid[0] += 1
    n = _pollid[0]
    a.label(f"L_poll{n}")
    issue_loads()
    a.wait(vm=0)
    sent_check(a, regs)
    a.s("s_cbranch_vccz", f"L_pdone{n}")
    a.s("s_sub_u32", sTO, sTO, 1)
    a.s("s_cmp_le_i32", sTO, 0)
    a.s("s_cbranch_scc1", f"L_pdone{n}")
    a.s("s_sleep", 1)
    a.s("s_branch", f"L_poll{n}")
    a.label(f"L_pdone{n}")


def sent_check(a, regs):
    acc = vT[7]
    rs = list(regs)
    a.v("v_max_u32", acc, rs[0], rs[1] if len(rs) > 1 else rs[0])
    rs = rs[2:]
    while rs:
        if len(rs) >= 2:
            a.v("v_max3_u32", acc, acc, rs[0], rs[1])
            rs = rs[2:]
        else:
            a.v("v_max_u32", acc, acc, rs[0])
            rs = rs[1:]
    a.v("v_cmp_eq_u32", "vcc", -1, acc)
    a.nop(1)


def slot_kreg(s, i):
    return ar(32 * s + 4 * i, 4)


def slot_vraw(s, i):
    if s < 4:
        return vr(VV + 32 * s + 4 * i, 4)
    return ar(192 + 32 * (s - 4) + 4 * i, 4)


def issue_slot(a, s, sbase, toff):
    a.wait(vm=47)
    a.s("s_add_u32", sT0, sbase, toff)
    a.s("s_add_u32", sT1, sbase, toff + 4096)
    if s < 6:
        for i in range(8):
            a.bload(4, slot_kreg(s, i), vKOFF, S_K, sT0 if i < 4 else sT1, (i % 4) * 1024, "nt")
        for i in range(8):
            a.bload(4, slot_vraw(s, i), vVOFF, S_V, sT0 if i < 4 else sT1, (i % 4) * 1024, "nt")
    else:
        for half, (srd, voff) in enumerate(((S_K, vKOFF), (S_V, vVOFF))):
            for hi in range(2):
                a.s("s_add_u32", "m0", sLDSW, (s - 6) * 16384 + half * 8192 + hi * 4096)
                for i in range(4):
                    a.bload_lds(voff, srd, sT0 if hi == 0 else sT1, i * 1024, "nt")


def tile(a, s):
    a.comment(f"---- tile slot {s}")
    lds = s >= 6
    if lds:
        for i in range(8):
            a.ds_read(4, vr(VTMP + 4 * i, 4), vLDS, (s - 6) * 16384 + i * 1024)
        a.wait(lgkm=0)
        kf = lambda i: vr(VTMP + 4 * i, 4)
    else:
        kf = lambda i: slot_kreg(s, i)
    for i in range(8):
        a.mfma(vr(VD + 4 * i, 4), kf(i), vr(VQ, 4), 0)
    if lds:
        for i in range(8):
            a.ds_read(4, vr(VTMP + 4 * i, 4), vLDS, (s - 6) * 16384 + 8192 + i * 1024)
        vsrc = lambda i, d: vr(VTMP + 4 * i + d)
    elif s >= 4:
        for i in range(32):
            a.v("v_accvgpr_read_b32", vr(VTMP + i), ar(192 + 32 * (s - 4) + i))
        vsrc = lambda i, d: vr(VTMP + 4 * i + d)
    else:
        vsrc = lambda i, d: vr(VV + 32 * s + 4 * i + d)

    def perms(m):
        d = m // 2
        sel = sSELLO if m % 2 == 0 else sSELHI
        b = VPB[m % 2]
        for e in range(4):
            a.v("v_perm_b32", vr(b + e), vsrc(2 * e + 1, d), vsrc(2 * e, d), sel)

    if not lds:
        perms(0)
        perms(1)
    S = [vr(VD + 4 * i) for i in range(8)]
    for i in range(8):
        a.dpp("v_mov_b32", S[i], S[i], ctrl="quad_perm:[0,0,0,0]")
    for r in (1, 2, 3):
        for i in range(8):
            a.dpp("v_add_f32", S[i], vr(VD + 4 * i + r), S[i], ctrl=f"quad_perm:[{r},{r},{r},{r}]")
    if EMU_ROUND:
        for i in range(0, 8, 2):
            round_pair(a, S[i], S[i + 1], vr(VD + 4 * i + 1))
        for i in range(8):
            a.v("v_mul_f32", S[i], sC, S[i])
        for i in range(0, 8, 2):
            round_pair(a, S[i], S[i + 1], vr(VD + 4 * i + 1))
    else:
        for i in range(8):
            a.v("v_mul_f32", S[i], sC, S[i])
    tm, t2, alpha, mneg, ps = vT[0], vT[1], vT[2], vT[3], vT[4]
    a.v("v_max3_f32", tm, S[0], S[1], S[2])
    a.v("v_max3_f32", t2, S[3], S[4], S[5])
    a.v("v_max3_f32", tm, tm, S[6], S[7])
    a.v("v_max3_f32", tm, tm, t2, vM)
    a.v("v_mov_b32", t2, tm)
    a.v("v_permlane32_swap_b32", tm, t2)
    a.v("v_max_f32", tm, tm, t2)
    a.v("v_mov_b32", t2, tm)
    a.v("v_permlane16_swap_b32", tm, t2)
    a.v("v_max_f32", tm, tm, t2)
    a.v("v_sub_f32", alpha, vM, tm)
    a.v("v_mul_f32", alpha, sLOG2E, alpha)
    a.v("v_exp_f32", alpha, alpha)
    a.v("v_mov_b32", vM, tm)
    a.v("v_mul_f32", mneg, sLOG2E, tm)
    for i in range(8):
        a.v("v_fma_f32", S[i], S[i], sLOG2E, "-" + mneg)
    for i in range(8):
        a.v("v_exp_f32", S[i], S[i])
    for i in range(32):
        a.v("v_mul_f32", vr(VO + i), alpha, vr(VO + i))
    a.v("v_mul_f32", vL, alpha, vL)
    a.v("v_add_f32", ps, S[0], S[1])
    a.v("v_add_f32", t2, S[2], S[3])
    a.v("v_add_f32", ps, ps, S[4])
    a.v("v_add_f32", t2, t2, S[5])
    a.v("v_add_f32", ps, ps, S[6])
    a.v("v_add_f32", t2, t2, S[7])
    a.v("v_add_f32", vL, vL, ps)
    a.v("v_add_f32", vL, vL, t2)
    for e in range(4):
        a.v("v_cvt_pk_bf16_f32", vr(VP + e), S[2 * e], S[2 * e + 1])
    if lds:
        a.wait(lgkm=0)
        perms(0)
        perms(1)
    for m in range(8):
        a.mfma(vr(VO + 4 * m, 4), vr(VPB[m % 2], 4), vr(VP, 4), vr(VO + 4 * m, 4))
        if m + 2 < 8:
            perms(m + 2)


def gen_main():
    a = Asm()
    sc = 0
    kn = NAME + "_kernel" if SINGLE else "main_kernel"
    a.raw(f".globl {kn}\n.p2align 8\n.type {kn},@function\n{kn}:")
    prologue_common(a, "L_end")
    stamp(a, 0, False)
    load_x(a)
    a.s("s_lshr_b32", sT2, sWG, 5)
    a.s("s_lshl_b32", sT2, sT2, 11)
    a.s("s_add_u32", sQB, sT2, hex(Q0))
    a.s("s_lshl_b32", sKVB, sWG, 19)
    a.s("s_lshl_b32", sT2, sWV, 13)
    a.s("s_add_u32", sKVB, sKVB, sT2)
    a.s("s_add_u32", sRLB, sKVB, 8 * 32768)
    a.s("s_mov_b32", sLAYER, 0)
    a.s("s_mov_b32", sLAY, 0)
    if not SINGLE:
        q_gather_issue(a)
        for s in range(8):
            issue_slot(a, s, sKVB, s * 32768)
        unpack_x(a)
        q_gather_sum(a)
    else:
        issue_wQ(a, RAW_Q)
        for i in range(4):
            a.v("v_mov_b32", vr(8 + i), -1)
        a.v("v_mov_b32", vr(12), 0)
        a.v("v_lshlrev_b32", vT[4], 4, vTID)
        a.s("s_mul_i32", sT0, sWG, 3072)
        a.s("s_add_u32", sT1, sT0, hex(LSTR))
        a.s("s_cmp_ge_u32", sWV, 3)
        a.s("s_cbranch_scc1", "L_clr_done")
        a.bstore(4, "v[8:11]", vT[4], S_WS, sT0, 0, "sc1")
        a.bstore(4, "v[8:11]", vT[4], S_WS, sT1, 0, "sc1")
        a.s("s_cmp_lg_u32", sWV, 0)
        a.s("s_cbranch_scc1", "L_clr_done")
        a.v("v_lshlrev_b32", vT[4], 2, vTID)
        a.s("s_lshr_b32", sT0, sWR, 6)
        a.s("s_lshl_b32", sT0, sT0, 14)
        a.s("s_and_b32", sT1, sWR, 63)
        a.s("s_lshl_b32", sT1, sT1, 8)
        a.s("s_add_u32", sT0, sT0, sT1)
        a.s("s_add_u32", sT0, sT0, hex(Q0))
        a.bstore(1, vr(8), vT[4], S_WS, sT0, 0, "sc1")
        a.ds_write(1, vr(12), vr(12), SC_QF)
        a.label("L_clr_done")
        for s in range(3):
            issue_slot(a, s, sKVB, s * 32768)
        a.wait(vm=48)
        unpack_x(a)
        unpack(a, RAW_Q, 16, UU)
        a.v("v_lshlrev_b32", vT[3], 3, vTID)
        a.ds_write(2, vT[3], "v[4:5]", SC_X2)
        a.wait(lgkm=0)
        a.barrier()
        a.s("s_cmp_lg_u32", sWV, 0)
        a.s("s_cbranch_scc1", "L_noat")
        a.v("v_mov_b32", vT[4], 1)
        set_exec(a, 1, 0)
        a.batomic_add(vT[4], vr(12), S_DBG, 0, "sc1")
        exec_all(a)
        a.label("L_noat")
        q_gemv(a, SC_X2, hex(Q0), "L_skipQ0")
        a.s("s_cmp_lg_u32", sWV, 0)
        a.s("s_cbranch_scc1", "L_w123")
        a.v("v_mov_b32", vT[4], 0)
        a.label("L_cnt")
        a.bload(1, vT[0], vT[4], S_DBG, 0, 0, "sc1")
        a.wait(vm=0)
        a.v("v_readfirstlane_b32", sT0, vT[0])
        a.s("s_cmp_ge_u32", sT0, 256)
        a.s("s_cbranch_scc1", "L_cntok")
        a.s("s_sub_u32", sTO, sTO, 1)
        a.s("s_cmp_le_i32", sTO, 0)
        a.s("s_cbranch_scc1", "L_cntok")
        a.s("s_sleep", 2)
        a.s("s_branch", "L_cnt")
        a.label("L_cntok")
        q_gather_issue(a)
        for s in range(3, 6):
            issue_slot(a, s, sKVB, s * 32768)
        a.wait(vm=48)
        sent_check(a, [vr(QG + i) for i in range(32)])
        a.s("s_cbranch_vccz", "L_qok")
        poll(a, lambda: q_gather_issue(a), [vr(QG + i) for i in range(32)])
        a.label("L_qok")
        q_gather_sum(a)
        a.v("v_mov_b32", vT[4], 1)
        a.v("v_mov_b32", vT[5], 0)
        a.ds_write(4, vVOFF, vr(VQ, 4), SC_Q)
        a.ds_write(1, vT[5], vT[4], SC_QF)
        for s in range(6, 8):
            issue_slot(a, s, sKVB, s * 32768)
        a.s("s_branch", "L_pass")
        a.label("L_w123")
        for s in range(3, 8):
            issue_slot(a, s, sKVB, s * 32768)
        a.v("v_mov_b32", vT[5], 0)
        a.label("L_qf")
        a.ds_read(1, vT[4], vT[5], SC_QF)
        a.wait(lgkm=0)
        a.v("v_readfirstlane_b32", sT0, vT[4])
        a.s("s_cmp_lg_u32", sT0, 0)
        a.s("s_cbranch_scc1", "L_qfok")
        a.s("s_sub_u32", sTO, sTO, 1)
        a.s("s_cmp_le_i32", sTO, 0)
        a.s("s_cbranch_scc1", "L_qfok")
        a.s("s_sleep", 1)
        a.s("s_branch", "L_qf")
        a.label("L_qfok")
        a.ds_read(4, vr(VQ, 4), vVOFF, SC_Q)
        a.wait(lgkm=0)

    a.label("L_pass")
    stamp(a, 1)
    a.v("v_mov_b32", vM, "0xff7fffff")
    a.v("v_mov_b32", vL, 0)
    for i in range(32):
        a.v("v_mov_b32", vr(VO + i), 0)
    for s in range(8):
        tile(a, s)
        issue_slot(a, s, sRLB, s * 32768)
    for s in range(8):
        a.wait(vm=min(63, 16 * (7 - s)))
        tile(a, s)

    stamp(a, 2)
    t2 = vT[1]
    a.v("v_mov_b32", t2, vL)
    a.v("v_permlane32_swap_b32", vL, t2)
    a.v("v_add_f32", vL, vL, t2)
    a.v("v_mov_b32", t2, vL)
    a.v("v_permlane16_swap_b32", vL, t2)
    a.v("v_add_f32", vL, vL, t2)
    l = vT[0]
    a.v("v_and_b32", l, 63, vTID)
    a.v("v_bfe_u32", vT[2], l, 2, 2)
    a.s("s_lshl_b32", sT0, sWV, 5)
    a.v("v_lshl_add_u32", vT[3], vT[2], 3, sT0)
    a.s("s_lshl_b32", sT0, sWV, 11)
    a.v("v_lshl_add_u32", vT[4], vT[2], 9, sT0)
    a.v("v_lshrrev_b32", vT[5], 4, l)
    a.v("v_lshl_add_u32", vT[4], vT[5], 7, vT[4])
    set_exec(a, 0x11111111, 0x11111111)
    a.ds_write(2, vT[3], "v[6:7]", sc + SC_ML)
    for m in range(8):
        for r in range(4):
            a.ds_write(1, vT[4], vr(VO + 4 * m + r), sc + SC_O + (8 * r + m) * 4)
    exec_all(a)
    a.wait(lgkm=0)
    a.barrier()
    a.s("s_lshl_b32", sT0, sWV, 3)
    a.v("v_mov_b32", vT[3], sT0)
    a.s("s_lshl_b32", sT0, sWV, 9)
    a.v("v_lshl_add_u32", vT[4], l, 3, sT0)
    mlr = [8, 10, 12, 14]
    orr = [16, 18, 20, 22]
    for w in range(4):
        a.ds_read(2, vr(mlr[w], 2), vT[3], sc + SC_ML + w * 32)
        a.ds_read(2, vr(orr[w], 2), vT[4], sc + SC_O + w * 2048)
    a.wait(lgkm=0)
    Mg = vr(88)
    Lg = vr(89)
    a.v("v_max3_f32", Mg, vr(8), vr(10), vr(12))
    a.v("v_max_f32", Mg, Mg, vr(14))
    for w in range(4):
        a.v("v_sub_f32", vr(mlr[w]), vr(mlr[w]), Mg)
        a.v("v_mul_f32", vr(mlr[w]), sLOG2E, vr(mlr[w]))
        a.v("v_exp_f32", vr(mlr[w]), vr(mlr[w]))
    a.v("v_mul_f32", Lg, vr(8), vr(9))
    a.v("v_mul_f32", vr(90), vr(8), vr(16))
    a.v("v_mul_f32", vr(91), vr(8), vr(17))
    for w in range(1, 4):
        a.v("v_fmac_f32", Lg, vr(mlr[w]), vr(mlr[w] + 1))
        a.v("v_fmac_f32", vr(90), vr(mlr[w]), vr(orr[w]))
        a.v("v_fmac_f32", vr(91), vr(mlr[w]), vr(orr[w] + 1))
    for r in (88, 89, 90, 91):
        a.v("v_min_u32", vr(r), SENT_FIX, vr(r))
    a.s("s_lshr_b32", sT0, sWG, 5)
    a.s("s_lshl_b32", sT0, sT0, 2)
    a.s("s_add_u32", sT0, sT0, sWV)
    a.s("s_lshl_b32", sT0, sT0, 5)
    a.s("s_and_b32", sT1, sWG, 31)
    a.s("s_add_u32", sT0, sT0, sT1)
    a.s("s_lshl_b32", sT1, sT0, 9)
    a.s("s_add_u32", sT1, sT1, sLAY)
    a.s("s_add_u32", sT1, sT1, hex(PO))
    a.v("v_lshlrev_b32", vT[4], 3, l)
    a.bstore(2, "v[90:91]", vT[4], S_WS, sT1, 0, "sc1")
    a.s("s_lshl_b32", sT1, sT0, 3)
    a.s("s_add_u32", sT1, sT1, sLAY)
    a.s("s_add_u32", sT1, sT1, hex(ML))
    a.v("v_mov_b32", vT[4], 0)
    set_exec(a, 1, 0)
    a.bstore(2, "v[88:89]", vT[4], S_WS, sT1, 0, "sc1")
    exec_all(a)

    issue_wO(a, RAW_O)
    issue_wG(a, RAW_G)
    issue_wD(a, RAW_D)
    issue_wQ(a, RAW_Q)

    stamp(a, 3)
    GO = list(range(8, 24)) + list(range(96, 112))
    a.s("s_lshr_b32", sT2, sWR, 4)
    a.s("s_lshl_b32", sT2, sT2, 1)
    a.s("s_lshr_b32", sT3, sWV, 1)
    a.s("s_add_u32", sT2, sT2, sT3)
    a.v("v_and_b32", vT[3], 127, vTID)
    a.v("v_lshlrev_b32", vT[3], 2, vT[3])
    a.v("v_and_b32", vT[4], 31, vTID)
    a.v("v_lshlrev_b32", vT[4], 3, vT[4])
    a.s("s_lshl_b32", sT3, sT2, 14)
    a.s("s_add_u32", sT3, sT3, sLAY)
    a.s("s_add_u32", sT3, sT3, hex(PO))
    a.s("s_lshl_b32", sT4, sT2, 8)
    a.s("s_add_u32", sT4, sT4, sLAY)
    a.s("s_add_u32", sT4, sT4, hex(ML))
    mlp = "v[6:7]"

    def loadsO():
        a.bload(2, mlp, vT[4], S_WS, sT4, 0, "sc1")
        for c in range(32):
            if c % 8 == 0:
                a.s("s_add_u32", sT0, sT3, (c // 8) * 4096)
            a.bload(1, vr(GO[c]), vT[3], S_WS, sT0, (c % 8) * 512, "sc1")
    poll(a, loadsO, [vr(r) for r in GO] + ["v6", "v7"])
    mx, t2 = vT[0], vT[1]
    a.v("v_mov_b32", mx, vM)
    row_allreduce(a, "v_max_f32", [mx])
    a.v("v_mov_b32", t2, mx)
    a.v("v_permlane16_swap_b32", mx, t2)
    a.v("v_max_f32", mx, mx, t2)
    a.v("v_sub_f32", vM, vM, mx)
    a.v("v_mul_f32", vM, sLOG2E, vM)
    a.v("v_exp_f32", vM, vM)
    a.v("v_mul_f32", vL, vL, vM)
    row_allreduce(a, "v_add_f32", [vL])
    a.v("v_mov_b32", t2, vL)
    a.v("v_permlane16_swap_b32", vL, t2)
    a.v("v_add_f32", vL, vL, t2)
    a.v("v_rcp_f32", vL, vL)
    a.v("v_mul_f32", vM, vM, vL)
    for c in range(32):
        a.v("v_readlane_b32", sr(SW0 + c), vM, c)
    o0, o1 = vT[0], vT[1]
    a.v("v_mul_f32", o0, sr(SW0 + 0), vr(GO[0]))
    a.v("v_mul_f32", o1, sr(SW0 + 1), vr(GO[1]))
    for c in range(2, 32, 2):
        a.v("v_fmac_f32", o0, sr(SW0 + c), vr(GO[c]))
        a.v("v_fmac_f32", o1, sr(SW0 + c + 1), vr(GO[c + 1]))
    a.v("v_add_f32", o0, o0, o1)
    round_one(a, o0, vT[2])
    a.v("v_and_b32", vT[3], 0x3c, vTID)
    for i in range(4):
        a.v("v_add_u32", vT[4 + i], 64 * i, vT[3])
    for i in range(4):
        a.ds_bpermute(vr(8 + i), vT[4 + i], o0)
    unpack(a, RAW_O, 16, UU)
    a.wait(lgkm=0)
    acc = RAW_O
    for k in range(8):
        a.v("v_mul_f32", vr(acc + k), vr(8), vr(UU + k))
    for i in range(1, 4):
        for k in range(8):
            a.v("v_fmac_f32", vr(acc + k), vr(8 + i), vr(UU + 8 * i + k))
    for ctrl in ("row_ror:4", "row_ror:8"):
        for k in range(8):
            a.dpp("v_add_f32", vr(acc + k), vr(acc + k), vr(acc + k), ctrl=ctrl)
    a.v("v_lshrrev_b32", vT[3], 4, vTID)
    a.v("v_lshlrev_b32", vT[3], 7, vT[3])
    a.v("v_and_b32", vT[4], 3, vTID)
    a.v("v_lshl_add_u32", vT[3], vT[4], 5, vT[3])
    set_exec(a, 0x000f000f, 0x000f000f)
    a.ds_write(4, vT[3], vr(acc, 4), sc + SC_GO)
    a.ds_write(4, vT[3], vr(acc + 4, 4), sc + SC_GO + 16)
    exec_all(a)
    a.wait(lgkm=0)
    a.barrier()
    a.s("s_cmp_lg_u32", sWV, 0)
    a.s("s_cbranch_scc1", "L_skipO")
    a.v("v_and_b32", vT[3], 31, vTID)
    a.v("v_lshlrev_b32", vT[3], 2, vT[3])
    lds_sum16(a, vT[3], sc + SC_GO, 128, [vr(8 + i) for i in range(16)], vT[0])
    a.v("v_min_u32", vT[0], SENT_FIX, vT[0])
    a.s("s_lshr_b32", sT0, sWR, 4)
    a.s("s_lshl_b32", sT0, sT0, 11)
    a.s("s_and_b32", sT1, sWR, 15)
    a.s("s_lshl_b32", sT1, sT1, 7)
    a.s("s_add_u32", sT0, sT0, sT1)
    a.s("s_add_u32", sT0, sT0, sLAY)
    a.s("s_add_u32", sT0, sT0, hex(YP))
    set_exec(a, 0xffffffff, 0)
    a.bstore(1, vT[0], vT[3], S_WS, sT0, 0, "sc1")
    exec_all(a)
    a.label("L_skipO")

    stamp(a, 4)
    unpack(a, RAW_G, 16, UU)
    gather16_add_x(a, YP, SC_X1)
    a.s("s_cmp_ge_u32", sWR, 224)
    a.s("s_cbranch_scc1", "L_skipG")
    a.wait(lgkm=0)
    a.barrier()
    g_block(a, sT2, sT3)
    a.v("v_bfe_u32", vT[5], vTID, 3, 3)
    a.v("v_lshlrev_b32", vT[5], 2, vT[5])
    a.s("s_lshl_b32", sT0, sT2, 2)
    a.s("s_add_u32", sT0, sT0, sWV)
    a.s("s_lshl_b32", sT0, sT0, 6)
    a.v("v_add_u32", vT[5], sT0, vT[5])
    A = [vr(16), vr(17)]
    ln_from_lds(a, SC_X1, vT[5], [0, 32], A, 8)
    ag, au = 32, 40
    for k in range(8):
        a.v("v_mul_f32", vr(ag + k), A[0], vr(UU + k))
        a.v("v_mul_f32", vr(au + k), A[0], vr(UU + 16 + k))
    for k in range(8):
        a.v("v_fmac_f32", vr(ag + k), A[1], vr(UU + 8 + k))
        a.v("v_fmac_f32", vr(au + k), A[1], vr(UU + 24 + k))
    reduce8(a, [ag, au], 8)
    red_addr(a, vT[5], 8, 512, vT[6])
    set_exec(a, 0x00ff00ff, 0x00ff00ff)
    a.ds_write(2, vT[5], vr(ag, 2), SC_RG)
    a.ds_write(2, vT[5], vr(au, 2), SC_RG + 256)
    exec_all(a)
    a.wait(lgkm=0)
    a.barrier()
    a.s("s_cmp_ge_u32", sWV, 2)
    a.s("s_cbranch_scc1", "L_skipG")
    a.v("v_lshlrev_b32", vT[5], 2, vTID)
    sum4_lds(a, vT[5], SC_RG, 512, [vr(8 + i) for i in range(4)], vT[0])
    a.v("v_min_u32", vT[0], SENT_FIX, vT[0])
    a.v("v_and_b32", vT[5], 63, vTID)
    a.v("v_lshlrev_b32", vT[5], 2, vT[5])
    a.s("s_mul_i32", sT0, sT2, 14336)
    a.s("s_mul_i32", sT1, sWV, 7168)
    a.s("s_add_u32", sT0, sT0, sT1)
    a.s("s_lshl_b32", sT1, sT3, 8)
    a.s("s_add_u32", sT0, sT0, sT1)
    a.s("s_add_u32", sT0, sT0, sLAY)
    a.s("s_add_u32", sT0, sT0, hex(GP))
    a.bstore(1, vT[0], vT[5], S_WS, sT0, 0, "sc1")
    a.label("L_skipG")

    stamp(a, 5)
    unpack(a, RAW_D, 8, UU)
    a.v("v_and_b32", vT[4], 31, vTID)
    a.v("v_min_u32", vT[3], 27, vT[4])
    a.v("v_lshlrev_b32", vT[3], 2, vT[3])
    a.v("v_bfe_u32", vT[5], vTID, 5, 1)
    a.s("s_mov_b32", sT4, 7168)
    a.v("v_mul_lo_u32", vT[5], vT[5], sT4)
    a.v("v_add_u32", vT[3], vT[3], vT[5])
    a.s("s_lshr_b32", sT3, sWR, 4)
    a.s("s_lshl_b32", sT3, sT3, 2)
    a.s("s_add_u32", sT3, sT3, sWV)
    a.s("s_mul_i32", sT3, sT3, 112)
    a.s("s_add_u32", sT3, sT3, sLAY)
    a.s("s_add_u32", sT3, sT3, hex(GP))

    def loadsD():
        for p in range(8):
            a.s("s_add_u32", sT0, sT3, p * 14336)
            a.bload(1, vr(8 + p), vT[3], S_WS, sT0, 0, "sc1")
    poll(a, loadsD, [vr(8 + i) for i in range(8)])
    for n in (4, 2, 1):
        for i in range(n):
            a.v("v_add_f32", vr(8 + i), vr(8 + i), vr(8 + i + n))
    g_, u_ = vr(8), vr(9)
    round_one(a, g_, vT[0])
    a.v("v_mov_b32", u_, g_)
    a.v("v_permlane32_swap_b32", g_, u_)
    a.v("v_cmp_lt_f32", "vcc", 0, g_)
    a.v("v_cndmask_b32", vT[0], 0, "1.0", "vcc")
    a.v("v_mul_f32", g_, g_, vT[0])
    a.v("v_mul_f32", g_, g_, u_)
    round_one(a, g_, vT[0])
    a.v("v_cmp_gt_u32", "vcc", 28, vT[4])
    a.v("v_cndmask_b32", g_, 0, g_, "vcc")
    a.v("v_and_b32", vT[3], 0x3c, vTID)
    a.v("v_add_u32", vT[5], 64, vT[3])
    a.ds_bpermute(vr(10), vT[3], g_)
    a.ds_bpermute(vr(11), vT[5], g_)
    a.wait(lgkm=0)
    acc = 32
    for k in range(8):
        a.v("v_mul_f32", vr(acc + k), vr(10), vr(UU + k))
    for k in range(8):
        a.v("v_fmac_f32", vr(acc + k), vr(11), vr(UU + 8 + k))
    reduce8(a, [acc], 4)
    red_addr(a, vT[5], 4, 128, vT[6])
    set_exec(a, 0x000f000f, 0x000f000f)
    a.ds_write(2, vT[5], vr(acc, 2), SC_RD)
    exec_all(a)
    a.wait(lgkm=0)
    a.barrier()
    a.s("s_cmp_lg_u32", sWV, 0)
    a.s("s_cbranch_scc1", "L_skipD")
    a.v("v_and_b32", vT[5], 31, vTID)
    a.v("v_lshlrev_b32", vT[5], 2, vT[5])
    sum4_lds(a, vT[5], SC_RD, 128, [vr(8 + i) for i in range(4)], vT[0])
    a.v("v_min_u32", vT[0], SENT_FIX, vT[0])
    a.s("s_lshr_b32", sT0, sWR, 4)
    a.s("s_lshl_b32", sT0, sT0, 11)
    a.s("s_and_b32", sT1, sWR, 15)
    a.s("s_lshl_b32", sT1, sT1, 7)
    a.s("s_add_u32", sT0, sT0, sT1)
    a.s("s_add_u32", sT0, sT0, sLAY)
    a.s("s_add_u32", sT0, sT0, hex(DPP))
    set_exec(a, 0xffffffff, 0)
    a.bstore(1, vT[0], vT[5], S_WS, sT0, 0, "sc1")
    exec_all(a)
    a.label("L_skipD")
    stamp(a, 6)
    a.s("s_mul_i32", sT0, sWG, sLAYER)
    a.s("s_cmp_lg_u32", sT0, 0)
    a.s("s_cbranch_scc1", "L_end")

    unpack(a, RAW_Q, 16, UU)
    gather16_add_x(a, DPP, SC_X2)
    a.s("s_cmp_eq_u32", sLAYER, 0)
    a.s("s_cbranch_scc1", "L_stQ")
    a.v("v_cvt_pk_bf16_f32", vT[0], vX0, vX1)
    a.v("v_lshlrev_b32", vT[3], 2, vTID)
    a.bstore(1, vT[0], vT[3], S_OUT, 0, 0)
    stamp(a, 7)
    a.s("s_branch", "L_end")
    a.label("L_stQ")
    a.wait(lgkm=0)
    a.barrier()
    q_gemv(a, SC_X2, hex(LSTR + QP), "L_skipQ")
    stamp(a, 7)
    a.s("s_mov_b32", sLAYER, 1)
    a.s("s_mov_b32", sLAY, hex(LSTR))
    a.s("s_mov_b32", sRLB, sKVB)
    a.s("s_lshr_b32", sT2, sWG, 5)
    a.s("s_lshl_b32", sT2, sT2, 11)
    a.s("s_add_u32", sQB, sT2, hex(LSTR + QP))
    poll(a, lambda: q_gather_issue(a), [vr(QG + i) for i in range(32)])
    q_gather_sum(a)
    a.s("s_branch", "L_pass")
    a.label("L_end", pad=False)
    a.raw("  s_endpgm")
    return a.text()


def gen_init():
    a = Asm()
    kn = "init_kernel"
    a.raw(f".globl {kn}\n.p2align 8\n.type {kn},@function\n{kn}:")
    prologue_common(a, "L_iend")
    load_x(a)
    issue_wQ(a, RAW_Q)
    for i in range(4):
        a.v("v_mov_b32", vr(8 + i), -1)
    a.v("v_lshlrev_b32", vT[4], 4, vTID)
    a.s("s_mul_i32", sT0, sWG, 3072)
    a.s("s_add_u32", sT1, sT0, hex(LSTR))
    a.s("s_cmp_ge_u32", sWV, 3)
    a.s("s_cbranch_scc1", "L_iskip")
    a.bstore(4, "v[8:11]", vT[4], S_WS, sT0, 0)
    a.bstore(4, "v[8:11]", vT[4], S_WS, sT1, 0)
    a.label("L_iskip")
    a.wait(vm=0)
    unpack_x(a)
    unpack(a, RAW_Q, 16, UU)
    a.v("v_lshlrev_b32", vT[3], 3, vTID)
    a.ds_write(2, vT[3], "v[4:5]", SC_X2)
    a.wait(lgkm=0)
    a.barrier()
    q_gemv(a, SC_X2, hex(Q0), "L_iskipQ")
    a.label("L_iend", pad=False)
    a.raw("  s_endpgm")
    return a.text()


def kd(name, nv, acc):
    return f""".amdhsa_kernel {name}
  .amdhsa_next_free_vgpr {nv}
  .amdhsa_next_free_sgpr 102
  .amdhsa_accum_offset {acc}
  .amdhsa_group_segment_fixed_size 0
  .amdhsa_kernarg_size 96
  .amdhsa_user_sgpr_count 2
  .amdhsa_user_sgpr_kernarg_segment_ptr 1
  .amdhsa_system_sgpr_workgroup_id_x 1
.end_amdhsa_kernel
"""


def main():
    ref = open(f"cdna_kernels/{NAME}.s.ref").read()
    head = []
    for line in ref.splitlines():
        if line.startswith("; @launch"):
            break
        head.append(line)
    out = "\n".join(head) + "\n"
    if SINGLE:
        out += "; @launch grid=(256,1,1) block=(256,1,1) lds=163840\n"
    else:
        out += f"; @launch kernel=init_kernel grid=(256,1,1) block=(256,1,1) lds={SC_END}\n"
        out += "; @launch kernel=main_kernel grid=(256,1,1) block=(256,1,1) lds=163840\n"
    out += '.amdgcn_target "amdgcn-amd-amdhsa--gfx950"\n.text\n'
    if not SINGLE:
        out += gen_init()
    out += gen_main()
    out += '.section .rodata,"a"\n.p2align 6\n'
    if not SINGLE:
        out += kd("init_kernel", 128, 128)
        out += ".p2align 6\n"
    out += kd(NAME + "_kernel" if SINGLE else "main_kernel", 512, 256)
    dst = sys.argv[1] if len(sys.argv) > 1 else f"cdna_kernels/{NAME}.s"
    open(dst, "w").write(out)
    print("wrote", dst, len(out), "bytes")


if __name__ == "__main__":
    main()
```

```python
import sys
from asmlib import *

NAME = "interleave_layers__gqa_block_cached__glu_gated_reglu__decode"
EMU_ROUND = True
import os
STAMPS = int(os.environ.get("STAMPS", "0"))
SINGLE = bool(int(os.environ.get("SINGLE", "1")))

LSTR = 0x100000
QP, DPP, YP, GP, ML, PO, ZONE = 0x0, 0x10000, 0x18000, 0x20000, 0x3C000, 0x40000, 0xC0000
Q0 = 0x200000
WS_BYTES = 0x300000

SC_O = 0
SC_ML = 8192
SC_GO = 9216
SC_X1 = 11264
SC_X2 = 13312
SC_RG = 15360
SC_RD = 17408
SC_RQ = 17920
SC_Q = 18944
SC_QF = 19968
SC_END = 20224

S_K, S_V, S_WQ, S_WO, S_WG, S_WU, S_WD, S_WS, S_X, S_OUT = [sr(8 + 4 * i, 4) for i in range(10)]
sWG, sWV = "s2", "s3"
sLAYER, sKVB, sRLB, sT0, sT1, sLAY, sQB, sTO = "s48", "s49", "s50", "s51", "s52", "s53", "s54", "s55"
sC, sLOG2E, sSELLO, sSELHI, sT2, sLDSW, sT3, sT4 = "s56", "s57", "s58", "s59", "s60", "s61", "s62", "s63"
SW0 = 64
S_DBG = sr(88, 4)
sWR, sWRG = "s4", "s5"

vTID, vKOFF, vVOFF, vLDS = "v0", "v1", "v2", "v3"
vX0, vX1 = "v4", "v5"
vM, vL = "v6", "v7"
VQ = 8
VP = 12
VPB = (16, 20)
vT = [f"v{24+i}" for i in range(8)]
VO = 32
VD = 64
VTMP = 96
VV = 128

RAW_O, RAW_G, RAW_Q, RAW_D = 32, 48, 64, 80
UU = 96
GATH = list(range(8, 24)) + list(range(32, 48))

C_SCALE = 0x3DB504F3
LOG2E = 0x3FB8AA3B
SENT_FIX = "0xfffffffe"


def f32bits(x):
    import struct
    return struct.unpack("<I", struct.pack("<f", x))[0]


assert f32bits(128 ** -0.5) == C_SCALE, hex(f32bits(128 ** -0.5))


def set_exec(a, lo, hi):
    a.s("s_mov_b32", "exec_lo", hex(lo))
    a.s("s_mov_b32", "exec_hi", hex(hi))


def exec_all(a):
    a.s("s_mov_b64", "exec", "-1")


def round_pair(a, x0, x1, tmp):
    a.v("v_cvt_pk_bf16_f32", tmp, x0, x1)
    a.v("v_lshlrev_b32", x0, 16, tmp)
    a.v("v_and_b32", x1, "0xffff0000", tmp)


def round_one(a, x0, tmp):
    a.v("v_cvt_pk_bf16_f32", tmp, x0, x0)
    a.v("v_lshlrev_b32", x0, 16, tmp)


def row_allreduce(a, op, regs):
    for ctrl in ("quad_perm:[1,0,3,2]", "quad_perm:[2,3,0,1]", "row_half_mirror", "row_mirror"):
        for r in regs:
            a.dpp(op, r, r, r, ctrl=ctrl)


def prologue_common(a, lbl_end):
    a.s("s_cmp_ge_u32", sWG, 256)
    a.s("s_cbranch_scc1", lbl_end)
    a.raw("  s_load_dwordx16 s[64:79], s[0:1], 0")
    a.raw("  s_load_dwordx8 s[80:87], s[0:1], 64")
    a.v("v_lshrrev_b32", vT[0], 6, vTID)
    a.v("v_readfirstlane_b32", sWV, vT[0])
    a.raw("  s_waitcnt lgkmcnt(0)")
    srds = [(8, 66, 0x8000000), (12, 68, 0x8000000), (16, 70, 0x400000), (20, 72, 0x400000),
            (24, 76, 512 * 1792 * 2), (28, 78, 512 * 1792 * 2), (32, 80, 1792 * 512 * 2),
            (36, 86, WS_BYTES), (40, 64, 1024), (44, 82, 1024), (88, 84, 256)] + ([(96, 84, 256)] if STAMPS == 2 else [])
    for d, p, n in srds:
        a.s("s_mov_b32", sr(d), sr(p))
        a.s("s_and_b32", sr(d + 1), sr(p + 1), "0xffff")
        a.s("s_mov_b32", sr(d + 2), hex(n))
        a.s("s_mov_b32", sr(d + 3), "0x00020000")
    a.s("s_mov_b32", sC, hex(C_SCALE))
    a.s("s_mov_b32", sLOG2E, hex(LOG2E))
    a.s("s_mov_b32", sSELLO, "0x05040100")
    a.s("s_mov_b32", sSELHI, "0x07060302")
    a.s("s_mov_b32", sTO, hex(1 << 18))
    a.s("s_and_b32", sT0, sWG, 7)
    a.s("s_lshr_b32", sT1, sWG, 3)
    a.s("s_lshl_b32", sWR, sT0, 5)
    a.s("s_add_u32", sWR, sWR, sT1)
    a.s("s_mul_i32", sWRG, sT0, 28)
    a.s("s_add_u32", sWRG, sWRG, sT1)
    l = vT[0]
    a.v("v_and_b32", l, 63, vTID)
    a.v("v_lshlrev_b32", vVOFF, 4, l)
    a.v("v_bfe_u32", vT[1], l, 2, 2)
    a.v("v_lshlrev_b32", vKOFF, 8, vT[1])
    a.v("v_lshrrev_b32", vT[2], 4, l)
    a.v("v_lshl_add_u32", vKOFF, vT[2], 6, vKOFF)
    a.v("v_and_b32", vT[3], 3, l)
    a.v("v_lshl_add_u32", vKOFF, vT[3], 4, vKOFF)
    a.s("s_lshl_b32", sLDSW, sWV, 15)
    a.s("s_add_u32", sLDSW, sLDSW, 32768)
    a.v("v_add_u32", vLDS, sLDSW, vVOFF)


def load_x(a):
    a.v("v_lshlrev_b32", vT[4], 2, vTID)
    a.bload(1, vX0, vT[4], S_X, 0)


def unpack_x(a):
    a.v("v_and_b32", vX1, "0xffff0000", vX0)
    a.v("v_lshlrev_b32", vX0, 16, vX0)


def lane_voff(a, dst, sh_c, rowbytes, tmp):
    a.v("v_and_b32", tmp, 63, vTID)
    a.v("v_lshrrev_b32", dst, sh_c, tmp)
    a.s("s_mov_b32", sT4, rowbytes)
    a.v("v_mul_lo_u32", dst, dst, sT4)
    a.v("v_and_b32", tmp, (1 << sh_c) - 1, tmp)
    a.v("v_lshl_add_u32", dst, tmp, 4, dst)


def g_block(a, rb, cb):
    a.s("s_mul_i32", rb, sWR, 2341)
    a.s("s_lshr_b32", rb, rb, 16)
    a.s("s_mul_i32", cb, rb, 28)
    a.s("s_sub_u32", cb, sWR, cb)


def issue_wQ(a, raw):
    lane_voff(a, vT[5], 3, 8192, vT[6])
    a.s("s_lshr_b32", sT0, sWR, 6)
    a.s("s_lshl_b32", sT0, sT0, 20)
    a.s("s_lshl_b32", sT1, sWV, 18)
    a.s("s_add_u32", sT0, sT0, sT1)
    a.s("s_and_b32", sT1, sWR, 63)
    a.s("s_lshl_b32", sT1, sT1, 7)
    a.s("s_add_u32", sT0, sT0, sT1)
    for i in range(4):
        a.bload(4, vr(raw + 4 * i, 4), vT[5], S_WQ, sT0, 0)
        if i < 3:
            a.s("s_add_u32", sT0, sT0, 65536)


def issue_wG(a, raw):
    lane_voff(a, vT[5], 3, 3584, vT[6])
    g_block(a, sT2, sT3)
    a.s("s_lshl_b32", sT0, sT2, 2)
    a.s("s_add_u32", sT0, sT0, sWV)
    a.s("s_mul_i32", sT0, sT0, 16 * 3584)
    a.s("s_lshl_b32", sT1, sT3, 7)
    a.s("s_add_u32", sT0, sT0, sT1)
    a.s("s_add_u32", sT1, sT0, 8 * 3584)
    a.bload(4, vr(raw + 0, 4), vT[5], S_WG, sT0, 0)
    a.bload(4, vr(raw + 4, 4), vT[5], S_WG, sT1, 0)
    a.bload(4, vr(raw + 8, 4), vT[5], S_WU, sT0, 0)
    a.bload(4, vr(raw + 12, 4), vT[5], S_WU, sT1, 0)


def issue_wD(a, raw):
    lane_voff(a, vT[5], 2, 1024, vT[6])
    a.s("s_lshr_b32", sT0, sWR, 4)
    a.s("s_lshl_b32", sT0, sT0, 2)
    a.s("s_add_u32", sT0, sT0, sWV)
    a.s("s_mul_i32", sT0, sT0, 28 * 1024)
    a.s("s_and_b32", sT1, sWR, 15)
    a.s("s_lshl_b32", sT1, sT1, 6)
    a.s("s_add_u32", sT0, sT0, sT1)
    a.s("s_add_u32", sT1, sT0, 16384)
    a.bload(4, vr(raw + 0, 4), vT[5], S_WD, sT0, 0)
    a.bload(4, vr(raw + 4, 4), vT[5], S_WD, sT1, 0)


def issue_wO(a, raw):
    lane_voff(a, vT[5], 2, 1024, vT[6])
    a.s("s_lshr_b32", sT0, sWR, 4)
    a.s("s_lshl_b32", sT0, sT0, 18)
    a.s("s_lshl_b32", sT1, sWV, 16)
    a.s("s_add_u32", sT0, sT0, sT1)
    a.s("s_and_b32", sT1, sWR, 15)
    a.s("s_lshl_b32", sT1, sT1, 6)
    a.s("s_add_u32", sT0, sT0, sT1)
    for i in range(4):
        a.bload(4, vr(raw + 4 * i, 4), vT[5], S_WO, sT0, 0)
        if i < 3:
            a.s("s_add_u32", sT0, sT0, 16384)


def unpack(a, raw, n, dst):
    for i in range(n):
        a.v("v_lshlrev_b32", vr(dst + 2 * i), 16, vr(raw + i))
        a.v("v_and_b32", vr(dst + 2 * i + 1), "0xffff0000", vr(raw + i))


def lds_sum16(a, addr, base, stride, regs, out):
    for p in range(16):
        a.ds_read(1, regs[p], addr, base + p * stride)
    a.wait(lgkm=0)
    n = 16
    while n > 1:
        for i in range(n // 2):
            a.v("v_add_f32", regs[i], regs[i], regs[i + n // 2])
        n //= 2
    if out != regs[0]:
        a.v("v_mov_b32", out, regs[0])


def wave_allreduce_add(a, x, t):
    row_allreduce(a, "v_add_f32", [x])
    a.v("v_mov_b32", t, x)
    a.v("v_permlane32_swap_b32", x, t)
    a.v("v_add_f32", x, x, t)
    a.v("v_mov_b32", t, x)
    a.v("v_permlane16_swap_b32", x, t)
    a.v("v_add_f32", x, x, t)


def ln_from_lds(a, scx, vrows, offs, outs, tq):
    s, mean, t, tmp, la = vT[0], vT[1], vT[2], vT[3], vT[4]
    a.v("v_and_b32", la, 63, vTID)
    a.v("v_lshlrev_b32", la, 5, la)
    a.ds_read(4, vr(tq, 4), la, scx)
    a.ds_read(4, vr(tq + 4, 4), la, scx + 16)
    for o, off in zip(outs, offs):
        a.ds_read(1, o, vrows, scx + off)
    a.wait(lgkm=len(outs))
    X = [vr(tq + k) for k in range(8)]
    a.v("v_add_f32", s, X[0], X[1])
    a.v("v_add_f32", t, X[2], X[3])
    a.v("v_add_f32", s, s, X[4])
    a.v("v_add_f32", t, t, X[5])
    a.v("v_add_f32", s, s, X[6])
    a.v("v_add_f32", t, t, X[7])
    a.v("v_add_f32", s, s, t)
    wave_allreduce_add(a, s, t)
    a.v("v_mul_f32", mean, hex(f32bits(1.0 / 512)), s)
    for k in range(8):
        a.v("v_sub_f32", X[k], X[k], mean)
    a.v("v_mul_f32", s, X[0], X[0])
    a.v("v_mul_f32", t, X[1], X[1])
    for k in range(2, 8, 2):
        a.v("v_fmac_f32", s, X[k], X[k])
        a.v("v_fmac_f32", t, X[k + 1], X[k + 1])
    a.v("v_add_f32", s, s, t)
    wave_allreduce_add(a, s, t)
    a.v("v_mul_f32", s, hex(f32bits(1.0 / 512)), s)
    round_pair(a, mean, s, tmp)
    a.v("v_add_f32", s, hex(f32bits(1e-5)), s)
    round_one(a, s, tmp)
    a.v("v_sqrt_f32", s, s)
    round_one(a, s, tmp)
    a.v("v_rcp_f32", s, s)
    a.wait(lgkm=0)
    for i in range(0, len(outs), 2):
        a0, a1 = outs[i], outs[i + 1]
        a.v("v_sub_f32", a0, a0, mean)
        a.v("v_sub_f32", a1, a1, mean)
        round_pair(a, a0, a1, tmp)
        a.v("v_mul_f32", a0, a0, s)
        a.v("v_mul_f32", a1, a1, s)
        round_pair(a, a0, a1, tmp)


def reduce8(a, accs, nc):
    for b in accs:
        for k in range(4):
            a.v("v_permlane32_swap_b32", vr(b + k), vr(b + k + 4))
    for b in accs:
        for k in range(4):
            a.v("v_add_f32", vr(b + k), vr(b + k), vr(b + k + 4))
    for b in accs:
        a.v("v_permlane16_swap_b32", vr(b + 0), vr(b + 2))
        a.v("v_permlane16_swap_b32", vr(b + 1), vr(b + 3))
    for b in accs:
        a.v("v_add_f32", vr(b + 0), vr(b + 0), vr(b + 2))
        a.v("v_add_f32", vr(b + 1), vr(b + 1), vr(b + 3))
    steps = {8: ["row_ror:8"], 4: ["row_ror:4", "row_ror:8"]}[nc]
    for ctrl in steps:
        for b in accs:
            a.dpp("v_add_f32", vr(b), vr(b), vr(b), ctrl=ctrl)
            a.dpp("v_add_f32", vr(b + 1), vr(b + 1), vr(b + 1), ctrl=ctrl)


def red_addr(a, dst, nc, wvstride, tmp):
    a.v("v_and_b32", tmp, nc - 1, vTID)
    a.v("v_lshlrev_b32", dst, 5, tmp)
    a.v("v_bfe_u32", tmp, vTID, 4, 2)
    a.v("v_lshl_add_u32", dst, tmp, 3, dst)
    a.s("s_mul_i32", sT4, sWV, wvstride)
    a.v("v_add_u32", dst, sT4, dst)


def sum4_lds(a, addr, base, stride, regs, out):
    for p in range(4):
        a.ds_read(1, regs[p], addr, base + p * stride)
    a.wait(lgkm=0)
    a.v("v_add_f32", regs[0], regs[0], regs[1])
    a.v("v_add_f32", regs[2], regs[2], regs[3])
    a.v("v_add_f32", out, regs[0], regs[2])


def q_gemv(a, scx, base_s, lbl):
    a.v("v_bfe_u32", vT[5], vTID, 3, 3)
    a.v("v_lshlrev_b32", vT[5], 2, vT[5])
    a.s("s_lshr_b32", sT0, sWR, 6)
    a.s("s_lshl_b32", sT0, sT0, 9)
    a.s("s_lshl_b32", sT1, sWV, 7)
    a.s("s_add_u32", sT0, sT0, sT1)
    a.v("v_add_u32", vT[5], sT0, vT[5])
    A = [vr(16 + i) for i in range(4)]
    ln_from_lds(a, scx, vT[5], [32 * i for i in range(4)], A, 8)
    acc = 32
    for k in range(8):
        a.v("v_mul_f32", vr(acc + k), A[0], vr(UU + k))
    for i in range(1, 4):
        for k in range(8):
            a.v("v_fmac_f32", vr(acc + k), A[i], vr(UU + 8 * i + k))
    reduce8(a, [acc], 8)
    red_addr(a, vT[5], 8, 256, vT[6])
    set_exec(a, 0x00ff00ff, 0x00ff00ff)
    a.ds_write(2, vT[5], vr(acc, 2), SC_RQ)
    exec_all(a)
    a.wait(lgkm=0)
    a.barrier()
    a.s("s_cmp_lg_u32", sWV, 0)
    a.s("s_cbranch_scc1", lbl)
    a.v("v_lshlrev_b32", vT[5], 2, vTID)
    sum4_lds(a, vT[5], SC_RQ, 256, [vr(8 + i) for i in range(4)], vT[0])
    a.v("v_min_u32", vT[0], SENT_FIX, vT[0])
    a.s("s_lshr_b32", sT0, sWR, 6)
    a.s("s_lshl_b32", sT0, sT0, 14)
    a.s("s_and_b32", sT1, sWR, 63)
    a.s("s_lshl_b32", sT1, sT1, 8)
    a.s("s_add_u32", sT0, sT0, sT1)
    a.s("s_add_u32", sT0, sT0, base_s)
    a.bstore(1, vT[0], vT[5], S_WS, sT0, 0, "sc1")
    a.label(lbl)


QG = 64


def q_gather_issue(a):
    a.v("v_lshlrev_b32", vT[3], 1, vKOFF)
    for p in range(4):
        a.s("s_add_u32", sT0, sQB, p * 16384)
        a.bload(4, vr(QG + 8 * p, 4), vT[3], S_WS, sT0, 0, "sc1")
        a.bload(4, vr(QG + 8 * p + 4, 4), vT[3], S_WS, sT0, 16, "sc1")


def q_gather_sum(a):
    for k in range(8):
        a.v("v_add_f32", vr(QG + k), vr(QG + k), vr(QG + 8 + k))
        a.v("v_add_f32", vr(QG + 16 + k), vr(QG + 16 + k), vr(QG + 24 + k))
    for k in range(8):
        a.v("v_add_f32", vr(QG + k), vr(QG + k), vr(QG + 16 + k))
    for e in range(4):
        a.v("v_cvt_pk_bf16_f32", vr(VQ + e), vr(QG + 2 * e), vr(QG + 2 * e + 1))


def gather16_add_x(a, base_off, scx):
    a.v("v_lshlrev_b32", vT[3], 3, vTID)
    a.s("s_add_u32", sT3, sLAY, hex(base_off))

    def loads():
        for p in range(16):
            if p % 2 == 0:
                a.s("s_add_u32", sT0, sT3, (p // 2) * 4096)
            a.bload(2, vr(GATH[2 * p], 2), vT[3], S_WS, sT0, (p % 2) * 2048, "sc1")
    poll(a, loads, [vr(r) for r in GATH])
    n = 16
    while n > 1:
        for i in range(n // 2):
            for h in range(2):
                a.v("v_add_f32", vr(GATH[2 * i + h]), vr(GATH[2 * i + h]), vr(GATH[2 * (i + n // 2) + h]))
        n //= 2
    round_pair(a, vr(GATH[0]), vr(GATH[1]), vT[0])
    a.v("v_add_f32", vX0, vX0, vr(GATH[0]))
    a.v("v_add_f32", vX1, vX1, vr(GATH[1]))
    round_pair(a, vX0, vX1, vT[0])
    if scx is not None:
        a.ds_write(2, vT[3], "v[4:5]", scx)


def stamp(a, idx, layered=True):
    if not STAMPS:
        return
    if STAMPS == 2:
        a.raw("  s_memrealtime s[100:101]")
        a.raw("  s_waitcnt lgkmcnt(0)")
        if idx == 0:
            a.s("s_not_b32", "s100", "s100")
        a.v("v_mov_b32", vT[7], "s100")
        a.s("s_lshl_b32", "s101", sLAYER, 5) if layered else a.s("s_mov_b32", "s101", 0)
        a.s("s_add_u32", "s101", "s101", 4 + 4 * idx)
        a.v("v_mov_b32", vT[6], 0)
        set_exec(a, 1, 0)
        a.raw(f"  buffer_atomic_umax {vT[7]}, {vT[6]}, s[96:99], s101 offen sc1")
        exec_all(a)
        a.nop(2)
        return
    a.raw("  s_memrealtime s[98:99]")
    a.s("s_lshl_b32", "s100", sWG, 2)
    a.s("s_add_u32", "s100", "s100", sWV)
    a.s("s_lshl_b32", "s100", "s100", 7)
    a.s("s_add_u32", "s100", "s100", hex(0x280000 + idx * 4))
    if layered:
        a.s("s_lshl_b32", "s101", sLAYER, 6)
        a.s("s_add_u32", "s100", "s100", "s101")
    a.raw("  s_waitcnt lgkmcnt(0)")
    a.v("v_mov_b32", vT[7], "s98")
    a.v("v_mov_b32", vT[6], 0)
    set_exec(a, 1, 0)
    a.bstore(1, vT[7], vT[6], S_WS, "s100", 0)
    exec_all(a)


_pollid = [0]


def poll(a, issue_loads, regs):
    _pollid[0] += 1
    n = _pollid[0]
    a.label(f"L_poll{n}")
    issue_loads()
    a.wait(vm=0)
    sent_check(a, regs)
    a.s("s_cbranch_vccz", f"L_pdone{n}")
    a.s("s_sub_u32", sTO, sTO, 1)
    a.s("s_cmp_le_i32", sTO, 0)
    a.s("s_cbranch_scc1", f"L_pdone{n}")
    a.s("s_sleep", 1)
    a.s("s_branch", f"L_poll{n}")
    a.label(f"L_pdone{n}")


def sent_check(a, regs):
    acc = vT[7]
    rs = list(regs)
    a.v("v_max_u32", acc, rs[0], rs[1] if len(rs) > 1 else rs[0])
    rs = rs[2:]
    while rs:
        if len(rs) >= 2:
            a.v("v_max3_u32", acc, acc, rs[0], rs[1])
            rs = rs[2:]
        else:
            a.v("v_max_u32", acc, acc, rs[0])
            rs = rs[1:]
    a.v("v_cmp_eq_u32", "vcc", -1, acc)
    a.nop(1)


def slot_kreg(s, i):
    return ar(32 * s + 4 * i, 4)


def slot_vraw(s, i):
    if s < 4:
        return vr(VV + 32 * s + 4 * i, 4)
    return ar(192 + 32 * (s - 4) + 4 * i, 4)


def issue_slot(a, s, sbase, toff):
    a.wait(vm=47)
    a.s("s_add_u32", sT0, sbase, toff)
    a.s("s_add_u32", sT1, sbase, toff + 4096)
    if s < 6:
        for i in range(8):
            a.bload(4, slot_kreg(s, i), vKOFF, S_K, sT0 if i < 4 else sT1, (i % 4) * 1024, "nt")
        for i in range(8):
            a.bload(4, slot_vraw(s, i), vVOFF, S_V, sT0 if i < 4 else sT1, (i % 4) * 1024, "nt")
    else:
        for half, (srd, voff) in enumerate(((S_K, vKOFF), (S_V, vVOFF))):
            for hi in range(2):
                a.s("s_add_u32", "m0", sLDSW, (s - 6) * 16384 + half * 8192 + hi * 4096)
                for i in range(4):
                    a.bload_lds(voff, srd, sT0 if hi == 0 else sT1, i * 1024, "nt")


def tile(a, s):
    a.comment(f"---- tile slot {s}")
    lds = s >= 6
    if lds:
        for i in range(8):
            a.ds_read(4, vr(VTMP + 4 * i, 4), vLDS, (s - 6) * 16384 + i * 1024)
        a.wait(lgkm=0)
        kf = lambda i: vr(VTMP + 4 * i, 4)
    else:
        kf = lambda i: slot_kreg(s, i)
    for i in range(8):
        a.mfma(vr(VD + 4 * i, 4), kf(i), vr(VQ, 4), 0)
    if lds:
        for i in range(8):
            a.ds_read(4, vr(VTMP + 4 * i, 4), vLDS, (s - 6) * 16384 + 8192 + i * 1024)
        vsrc = lambda i, d: vr(VTMP + 4 * i + d)
    elif s >= 4:
        for i in range(32):
            a.v("v_accvgpr_read_b32", vr(VTMP + i), ar(192 + 32 * (s - 4) + i))
        vsrc = lambda i, d: vr(VTMP + 4 * i + d)
    else:
        vsrc = lambda i, d: vr(VV + 32 * s + 4 * i + d)

    def perms(m):
        d = m // 2
        sel = sSELLO if m % 2 == 0 else sSELHI
        b = VPB[m % 2]
        for e in range(4):
            a.v("v_perm_b32", vr(b + e), vsrc(2 * e + 1, d), vsrc(2 * e, d), sel)

    if not lds:
        perms(0)
        perms(1)
    S = [vr(VD + 4 * i) for i in range(8)]
    for i in range(8):
        a.dpp("v_mov_b32", S[i], S[i], ctrl="quad_perm:[0,0,0,0]")
    for r in (1, 2, 3):
        for i in range(8):
            a.dpp("v_add_f32", S[i], vr(VD + 4 * i + r), S[i], ctrl=f"quad_perm:[{r},{r},{r},{r}]")
    if EMU_ROUND:
        for i in range(0, 8, 2):
            round_pair(a, S[i], S[i + 1], vr(VD + 4 * i + 1))
        for i in range(8):
            a.v("v_mul_f32", S[i], sC, S[i])
        for i in range(0, 8, 2):
            round_pair(a, S[i], S[i + 1], vr(VD + 4 * i + 1))
    else:
        for i in range(8):
            a.v("v_mul_f32", S[i], sC, S[i])
    tm, t2, alpha, mneg, ps = vT[0], vT[1], vT[2], vT[3], vT[4]
    a.v("v_max3_f32", tm, S[0], S[1], S[2])
    a.v("v_max3_f32", t2, S[3], S[4], S[5])
    a.v("v_max3_f32", tm, tm, S[6], S[7])
    a.v("v_max3_f32", tm, tm, t2, vM)
    a.v("v_mov_b32", t2, tm)
    a.v("v_permlane32_swap_b32", tm, t2)
    a.v("v_max_f32", tm, tm, t2)
    a.v("v_mov_b32", t2, tm)
    a.v("v_permlane16_swap_b32", tm, t2)
    a.v("v_max_f32", tm, tm, t2)
    a.v("v_sub_f32", alpha, vM, tm)
    a.v("v_mul_f32", alpha, sLOG2E, alpha)
    a.v("v_exp_f32", alpha, alpha)
    a.v("v_mov_b32", vM, tm)
    a.v("v_mul_f32", mneg, sLOG2E, tm)
    for i in range(8):
        a.v("v_fma_f32", S[i], S[i], sLOG2E, "-" + mneg)
    for i in range(8):
        a.v("v_exp_f32", S[i], S[i])
    for i in range(32):
        a.v("v_mul_f32", vr(VO + i), alpha, vr(VO + i))
    a.v("v_mul_f32", vL, alpha, vL)
    a.v("v_add_f32", ps, S[0], S[1])
    a.v("v_add_f32", t2, S[2], S[3])
    a.v("v_add_f32", ps, ps, S[4])
    a.v("v_add_f32", t2, t2, S[5])
    a.v("v_add_f32", ps, ps, S[6])
    a.v("v_add_f32", t2, t2, S[7])
    a.v("v_add_f32", vL, vL, ps)
    a.v("v_add_f32", vL, vL, t2)
    for e in range(4):
        a.v("v_cvt_pk_bf16_f32", vr(VP + e), S[2 * e], S[2 * e + 1])
    if lds:
        a.wait(lgkm=0)
        perms(0)
        perms(1)
    for m in range(8):
        a.mfma(vr(VO + 4 * m, 4), vr(VPB[m % 2], 4), vr(VP, 4), vr(VO + 4 * m, 4))
        if m + 2 < 8:
            perms(m + 2)


def gen_main():
    a = Asm()
    sc = 0
    kn = NAME + "_kernel" if SINGLE else "main_kernel"
    a.raw(f".globl {kn}\n.p2align 8\n.type {kn},@function\n{kn}:")
    prologue_common(a, "L_end")
    stamp(a, 0, False)
    load_x(a)
    a.s("s_lshr_b32", sT2, sWG, 5)
    a.s("s_lshl_b32", sT2, sT2, 11)
    a.s("s_add_u32", sQB, sT2, hex(Q0))
    a.s("s_lshl_b32", sKVB, sWG, 19)
    a.s("s_lshl_b32", sT2, sWV, 13)
    a.s("s_add_u32", sKVB, sKVB, sT2)
    a.s("s_add_u32", sRLB, sKVB, 8 * 32768)
    a.s("s_mov_b32", sLAYER, 0)
    a.s("s_mov_b32", sLAY, 0)
    if not SINGLE:
        q_gather_issue(a)
        for s in range(8):
            issue_slot(a, s, sKVB, s * 32768)
        unpack_x(a)
        q_gather_sum(a)
    else:
        issue_wQ(a, RAW_Q)
        for i in range(4):
            a.v("v_mov_b32", vr(8 + i), -1)
        a.v("v_mov_b32", vr(12), 0)
        a.v("v_lshlrev_b32", vT[4], 4, vTID)
        a.s("s_mul_i32", sT0, sWG, 3072)
        a.s("s_add_u32", sT1, sT0, hex(LSTR))
        a.s("s_cmp_ge_u32", sWV, 3)
        a.s("s_cbranch_scc1", "L_clr_done")
        a.bstore(4, "v[8:11]", vT[4], S_WS, sT0, 0, "sc1")
        a.bstore(4, "v[8:11]", vT[4], S_WS, sT1, 0, "sc1")
        a.s("s_cmp_lg_u32", sWV, 0)
        a.s("s_cbranch_scc1", "L_clr_done")
        a.v("v_lshlrev_b32", vT[4], 2, vTID)
        a.s("s_lshr_b32", sT0, sWR, 6)
        a.s("s_lshl_b32", sT0, sT0, 14)
        a.s("s_and_b32", sT1, sWR, 63)
        a.s("s_lshl_b32", sT1, sT1, 8)
        a.s("s_add_u32", sT0, sT0, sT1)
        a.s("s_add_u32", sT0, sT0, hex(Q0))
        a.bstore(1, vr(8), vT[4], S_WS, sT0, 0, "sc1")
        a.ds_write(1, vr(12), vr(12), SC_QF)
        a.label("L_clr_done")
        for s in range(3):
            issue_slot(a, s, sKVB, s * 32768)
        a.wait(vm=48)
        unpack_x(a)
        unpack(a, RAW_Q, 16, UU)
        a.v("v_lshlrev_b32", vT[3], 3, vTID)
        a.ds_write(2, vT[3], "v[4:5]", SC_X2)
        a.wait(lgkm=0)
        a.barrier()
        a.s("s_cmp_lg_u32", sWV, 0)
        a.s("s_cbranch_scc1", "L_noat")
        a.v("v_mov_b32", vT[4], 1)
        set_exec(a, 1, 0)
        a.batomic_add(vT[4], vr(12), S_DBG, 0, "sc1")
        exec_all(a)
        a.label("L_noat")
        q_gemv(a, SC_X2, hex(Q0), "L_skipQ0")
        a.s("s_cmp_lg_u32", sWV, 0)
        a.s("s_cbranch_scc1", "L_w123")
        a.v("v_mov_b32", vT[4], 0)
        a.label("L_cnt")
        a.bload(1, vT[0], vT[4], S_DBG, 0, 0, "sc1")
        a.wait(vm=0)
        a.v("v_readfirstlane_b32", sT0, vT[0])
        a.s("s_cmp_ge_u32", sT0, 256)
        a.s("s_cbranch_scc1", "L_cntok")
        a.s("s_sub_u32", sTO, sTO, 1)
        a.s("s_cmp_le_i32", sTO, 0)
        a.s("s_cbranch_scc1", "L_cntok")
        a.s("s_sleep", 2)
        a.s("s_branch", "L_cnt")
        a.label("L_cntok")
        q_gather_issue(a)
        for s in range(3, 6):
            issue_slot(a, s, sKVB, s * 32768)
        a.wait(vm=48)
        sent_check(a, [vr(QG + i) for i in range(32)])
        a.s("s_cbranch_vccz", "L_qok")
        poll(a, lambda: q_gather_issue(a), [vr(QG + i) for i in range(32)])
        a.label("L_qok")
        q_gather_sum(a)
        a.v("v_mov_b32", vT[4], 1)
        a.v("v_mov_b32", vT[5], 0)
        a.ds_write(4, vVOFF, vr(VQ, 4), SC_Q)
        a.ds_write(1, vT[5], vT[4], SC_QF)
        for s in range(6, 8):
            issue_slot(a, s, sKVB, s * 32768)
        a.s("s_branch", "L_pass")
        a.label("L_w123")
        for s in range(3, 8):
            issue_slot(a, s, sKVB, s * 32768)
        a.v("v_mov_b32", vT[5], 0)
        a.label("L_qf")
        a.ds_read(1, vT[4], vT[5], SC_QF)
        a.wait(lgkm=0)
        a.v("v_readfirstlane_b32", sT0, vT[4])
        a.s("s_cmp_lg_u32", sT0, 0)
        a.s("s_cbranch_scc1", "L_qfok")
        a.s("s_sub_u32", sTO, sTO, 1)
        a.s("s_cmp_le_i32", sTO, 0)
        a.s("s_cbranch_scc1", "L_qfok")
        a.s("s_sleep", 1)
        a.s("s_branch", "L_qf")
        a.label("L_qfok")
        a.ds_read(4, vr(VQ, 4), vVOFF, SC_Q)
        a.wait(lgkm=0)

    a.label("L_pass")
    stamp(a, 1)
    a.v("v_mov_b32", vM, "0xff7fffff")
    a.v("v_mov_b32", vL, 0)
    for i in range(32):
        a.v("v_mov_b32", vr(VO + i), 0)
    for s in range(8):
        tile(a, s)
        issue_slot(a, s, sRLB, s * 32768)
    for s in range(8):
        a.wait(vm=min(63, 16 * (7 - s)))
        tile(a, s)

    stamp(a, 2)
    t2 = vT[1]
    a.v("v_mov_b32", t2, vL)
    a.v("v_permlane32_swap_b32", vL, t2)
    a.v("v_add_f32", vL, vL, t2)
    a.v("v_mov_b32", t2, vL)
    a.v("v_permlane16_swap_b32", vL, t2)
    a.v("v_add_f32", vL, vL, t2)
    l = vT[0]
    a.v("v_and_b32", l, 63, vTID)
    a.v("v_bfe_u32", vT[2], l, 2, 2)
    a.s("s_lshl_b32", sT0, sWV, 5)
    a.v("v_lshl_add_u32", vT[3], vT[2], 3, sT0)
    a.s("s_lshl_b32", sT0, sWV, 11)
    a.v("v_lshl_add_u32", vT[4], vT[2], 9, sT0)
    a.v("v_lshrrev_b32", vT[5], 4, l)
    a.v("v_lshl_add_u32", vT[4], vT[5], 7, vT[4])
    set_exec(a, 0x11111111, 0x11111111)
    a.ds_write(2, vT[3], "v[6:7]", sc + SC_ML)
    for m in range(8):
        for r in range(4):
            a.ds_write(1, vT[4], vr(VO + 4 * m + r), sc + SC_O + (8 * r + m) * 4)
    exec_all(a)
    a.wait(lgkm=0)
    a.barrier()
    a.s("s_lshl_b32", sT0, sWV, 3)
    a.v("v_mov_b32", vT[3], sT0)
    a.s("s_lshl_b32", sT0, sWV, 9)
    a.v("v_lshl_add_u32", vT[4], l, 3, sT0)
    mlr = [8, 10, 12, 14]
    orr = [16, 18, 20, 22]
    for w in range(4):
        a.ds_read(2, vr(mlr[w], 2), vT[3], sc + SC_ML + w * 32)
        a.ds_read(2, vr(orr[w], 2), vT[4], sc + SC_O + w * 2048)
    a.wait(lgkm=0)
    Mg = vr(88)
    Lg = vr(89)
    a.v("v_max3_f32", Mg, vr(8), vr(10), vr(12))
    a.v("v_max_f32", Mg, Mg, vr(14))
    for w in range(4):
        a.v("v_sub_f32", vr(mlr[w]), vr(mlr[w]), Mg)
        a.v("v_mul_f32", vr(mlr[w]), sLOG2E, vr(mlr[w]))
        a.v("v_exp_f32", vr(mlr[w]), vr(mlr[w]))
    a.v("v_mul_f32", Lg, vr(8), vr(9))
    a.v("v_mul_f32", vr(90), vr(8), vr(16))
    a.v("v_mul_f32", vr(91), vr(8), vr(17))
    for w in range(1, 4):
        a.v("v_fmac_f32", Lg, vr(mlr[w]), vr(mlr[w] + 1))
        a.v("v_fmac_f32", vr(90), vr(mlr[w]), vr(orr[w]))
        a.v("v_fmac_f32", vr(91), vr(mlr[w]), vr(orr[w] + 1))
    for r in (88, 89, 90, 91):
        a.v("v_min_u32", vr(r), SENT_FIX, vr(r))
    a.s("s_lshr_b32", sT0, sWG, 5)
    a.s("s_lshl_b32", sT0, sT0, 2)
    a.s("s_add_u32", sT0, sT0, sWV)
    a.s("s_lshl_b32", sT0, sT0, 5)
    a.s("s_and_b32", sT1, sWG, 31)
    a.s("s_add_u32", sT0, sT0, sT1)
    a.s("s_lshl_b32", sT1, sT0, 9)
    a.s("s_add_u32", sT1, sT1, sLAY)
    a.s("s_add_u32", sT1, sT1, hex(PO))
    a.v("v_lshlrev_b32", vT[4], 3, l)
    a.bstore(2, "v[90:91]", vT[4], S_WS, sT1, 0, "sc1")
    a.s("s_lshl_b32", sT1, sT0, 3)
    a.s("s_add_u32", sT1, sT1, sLAY)
    a.s("s_add_u32", sT1, sT1, hex(ML))
    a.v("v_mov_b32", vT[4], 0)
    set_exec(a, 1, 0)
    a.bstore(2, "v[88:89]", vT[4], S_WS, sT1, 0, "sc1")
    exec_all(a)

    issue_wO(a, RAW_O)
    issue_wG(a, RAW_G)
    issue_wD(a, RAW_D)
    issue_wQ(a, RAW_Q)

    stamp(a, 3)
    GO = list(range(8, 24)) + list(range(96, 112))
    a.s("s_lshr_b32", sT2, sWR, 4)
    a.s("s_lshl_b32", sT2, sT2, 1)
    a.s("s_lshr_b32", sT3, sWV, 1)
    a.s("s_add_u32", sT2, sT2, sT3)
    a.v("v_and_b32", vT[3], 127, vTID)
    a.v("v_lshlrev_b32", vT[3], 2, vT[3])
    a.v("v_and_b32", vT[4], 31, vTID)
    a.v("v_lshlrev_b32", vT[4], 3, vT[4])
    a.s("s_lshl_b32", sT3, sT2, 14)
    a.s("s_add_u32", sT3, sT3, sLAY)
    a.s("s_add_u32", sT3, sT3, hex(PO))
    a.s("s_lshl_b32", sT4, sT2, 8)
    a.s("s_add_u32", sT4, sT4, sLAY)
    a.s("s_add_u32", sT4, sT4, hex(ML))
    mlp = "v[6:7]"

    def loadsO():
        a.bload(2, mlp, vT[4], S_WS, sT4, 0, "sc1")
        for c in range(32):
            if c % 8 == 0:
                a.s("s_add_u32", sT0, sT3, (c // 8) * 4096)
            a.bload(1, vr(GO[c]), vT[3], S_WS, sT0, (c % 8) * 512, "sc1")
    poll(a, loadsO, [vr(r) for r in GO] + ["v6", "v7"])
    mx, t2 = vT[0], vT[1]
    a.v("v_mov_b32", mx, vM)
    row_allreduce(a, "v_max_f32", [mx])
    a.v("v_mov_b32", t2, mx)
    a.v("v_permlane16_swap_b32", mx, t2)
    a.v("v_max_f32", mx, mx, t2)
    a.v("v_sub_f32", vM, vM, mx)
    a.v("v_mul_f32", vM, sLOG2E, vM)
    a.v("v_exp_f32", vM, vM)
    a.v("v_mul_f32", vL, vL, vM)
    row_allreduce(a, "v_add_f32", [vL])
    a.v("v_mov_b32", t2, vL)
    a.v("v_permlane16_swap_b32", vL, t2)
    a.v("v_add_f32", vL, vL, t2)
    a.v("v_rcp_f32", vL, vL)
    a.v("v_mul_f32", vM, vM, vL)
    for c in range(32):
        a.v("v_readlane_b32", sr(SW0 + c), vM, c)
    o0, o1 = vT[0], vT[1]
    a.v("v_mul_f32", o0, sr(SW0 + 0), vr(GO[0]))
    a.v("v_mul_f32", o1, sr(SW0 + 1), vr(GO[1]))
    for c in range(2, 32, 2):
        a.v("v_fmac_f32", o0, sr(SW0 + c), vr(GO[c]))
        a.v("v_fmac_f32", o1, sr(SW0 + c + 1), vr(GO[c + 1]))
    a.v("v_add_f32", o0, o0, o1)
    round_one(a, o0, vT[2])
    a.v("v_and_b32", vT[3], 0x3c, vTID)
    for i in range(4):
        a.v("v_add_u32", vT[4 + i], 64 * i, vT[3])
    for i in range(4):
        a.ds_bpermute(vr(8 + i), vT[4 + i], o0)
    unpack(a, RAW_O, 16, UU)
    a.wait(lgkm=0)
    acc = RAW_O
    for k in range(8):
        a.v("v_mul_f32", vr(acc + k), vr(8), vr(UU + k))
    for i in range(1, 4):
        for k in range(8):
            a.v("v_fmac_f32", vr(acc + k), vr(8 + i), vr(UU + 8 * i + k))
    for ctrl in ("row_ror:4", "row_ror:8"):
        for k in range(8):
            a.dpp("v_add_f32", vr(acc + k), vr(acc + k), vr(acc + k), ctrl=ctrl)
    a.v("v_lshrrev_b32", vT[3], 4, vTID)
    a.v("v_lshlrev_b32", vT[3], 7, vT[3])
    a.v("v_and_b32", vT[4], 3, vTID)
    a.v("v_lshl_add_u32", vT[3], vT[4], 5, vT[3])
    set_exec(a, 0x000f000f, 0x000f000f)
    a.ds_write(4, vT[3], vr(acc, 4), sc + SC_GO)
    a.ds_write(4, vT[3], vr(acc + 4, 4), sc + SC_GO + 16)
    exec_all(a)
    a.wait(lgkm=0)
    a.barrier()
    a.s("s_cmp_lg_u32", sWV, 0)
    a.s("s_cbranch_scc1", "L_skipO")
    a.v("v_and_b32", vT[3], 31, vTID)
    a.v("v_lshlrev_b32", vT[3], 2, vT[3])
    lds_sum16(a, vT[3], sc + SC_GO, 128, [vr(8 + i) for i in range(16)], vT[0])
    a.v("v_min_u32", vT[0], SENT_FIX, vT[0])
    a.s("s_lshr_b32", sT0, sWR, 4)
    a.s("s_lshl_b32", sT0, sT0, 11)
    a.s("s_and_b32", sT1, sWR, 15)
    a.s("s_lshl_b32", sT1, sT1, 7)
    a.s("s_add_u32", sT0, sT0, sT1)
    a.s("s_add_u32", sT0, sT0, sLAY)
    a.s("s_add_u32", sT0, sT0, hex(YP))
    set_exec(a, 0xffffffff, 0)
    a.bstore(1, vT[0], vT[3], S_WS, sT0, 0, "sc1")
    exec_all(a)
    a.label("L_skipO")

    stamp(a, 4)
    unpack(a, RAW_G, 16, UU)
    gather16_add_x(a, YP, SC_X1)
    a.s("s_cmp_ge_u32", sWR, 224)
    a.s("s_cbranch_scc1", "L_skipG")
    a.wait(lgkm=0)
    a.barrier()
    g_block(a, sT2, sT3)
    a.v("v_bfe_u32", vT[5], vTID, 3, 3)
    a.v("v_lshlrev_b32", vT[5], 2, vT[5])
    a.s("s_lshl_b32", sT0, sT2, 2)
    a.s("s_add_u32", sT0, sT0, sWV)
    a.s("s_lshl_b32", sT0, sT0, 6)
    a.v("v_add_u32", vT[5], sT0, vT[5])
    A = [vr(16), vr(17)]
    ln_from_lds(a, SC_X1, vT[5], [0, 32], A, 8)
    ag, au = 32, 40
    for k in range(8):
        a.v("v_mul_f32", vr(ag + k), A[0], vr(UU + k))
        a.v("v_mul_f32", vr(au + k), A[0], vr(UU + 16 + k))
    for k in range(8):
        a.v("v_fmac_f32", vr(ag + k), A[1], vr(UU + 8 + k))
        a.v("v_fmac_f32", vr(au + k), A[1], vr(UU + 24 + k))
    reduce8(a, [ag, au], 8)
    red_addr(a, vT[5], 8, 512, vT[6])
    set_exec(a, 0x00ff00ff, 0x00ff00ff)
    a.ds_write(2, vT[5], vr(ag, 2), SC_RG)
    a.ds_write(2, vT[5], vr(au, 2), SC_RG + 256)
    exec_all(a)
    a.wait(lgkm=0)
    a.barrier()
    a.s("s_cmp_ge_u32", sWV, 2)
    a.s("s_cbranch_scc1", "L_skipG")
    a.v("v_lshlrev_b32", vT[5], 2, vTID)
    sum4_lds(a, vT[5], SC_RG, 512, [vr(8 + i) for i in range(4)], vT[0])
    a.v("v_min_u32", vT[0], SENT_FIX, vT[0])
    a.v("v_and_b32", vT[5], 63, vTID)
    a.v("v_lshlrev_b32", vT[5], 2, vT[5])
    a.s("s_mul_i32", sT0, sT2, 14336)
    a.s("s_mul_i32", sT1, sWV, 7168)
    a.s("s_add_u32", sT0, sT0, sT1)
    a.s("s_lshl_b32", sT1, sT3, 8)
    a.s("s_add_u32", sT0, sT0, sT1)
    a.s("s_add_u32", sT0, sT0, sLAY)
    a.s("s_add_u32", sT0, sT0, hex(GP))
    a.bstore(1, vT[0], vT[5], S_WS, sT0, 0, "sc1")
    a.label("L_skipG")

    stamp(a, 5)
    unpack(a, RAW_D, 8, UU)
    a.v("v_and_b32", vT[4], 31, vTID)
    a.v("v_min_u32", vT[3], 27, vT[4])
    a.v("v_lshlrev_b32", vT[3], 2, vT[3])
    a.v("v_bfe_u32", vT[5], vTID, 5, 1)
    a.s("s_mov_b32", sT4, 7168)
    a.v("v_mul_lo_u32", vT[5], vT[5], sT4)
    a.v("v_add_u32", vT[3], vT[3], vT[5])
    a.s("s_lshr_b32", sT3, sWR, 4)
    a.s("s_lshl_b32", sT3, sT3, 2)
    a.s("s_add_u32", sT3, sT3, sWV)
    a.s("s_mul_i32", sT3, sT3, 112)
    a.s("s_add_u32", sT3, sT3, sLAY)
    a.s("s_add_u32", sT3, sT3, hex(GP))

    def loadsD():
        for p in range(8):
            a.s("s_add_u32", sT0, sT3, p * 14336)
            a.bload(1, vr(8 + p), vT[3], S_WS, sT0, 0, "sc1")
    poll(a, loadsD, [vr(8 + i) for i in range(8)])
    for n in (4, 2, 1):
        for i in range(n):
            a.v("v_add_f32", vr(8 + i), vr(8 + i), vr(8 + i + n))
    g_, u_ = vr(8), vr(9)
    round_one(a, g_, vT[0])
    a.v("v_mov_b32", u_, g_)
    a.v("v_permlane32_swap_b32", g_, u_)
    a.v("v_cmp_lt_f32", "vcc", 0, g_)
    a.v("v_cndmask_b32", vT[0], 0, "1.0", "vcc")
    a.v("v_mul_f32", g_, g_, vT[0])
    a.v("v_mul_f32", g_, g_, u_)
    round_one(a, g_, vT[0])
    a.v("v_cmp_gt_u32", "vcc", 28, vT[4])
    a.v("v_cndmask_b32", g_, 0, g_, "vcc")
    a.v("v_and_b32", vT[3], 0x3c, vTID)
    a.v("v_add_u32", vT[5], 64, vT[3])
    a.ds_bpermute(vr(10), vT[3], g_)
    a.ds_bpermute(vr(11), vT[5], g_)
    a.wait(lgkm=0)
    acc = 32
    for k in range(8):
        a.v("v_mul_f32", vr(acc + k), vr(10), vr(UU + k))
    for k in range(8):
        a.v("v_fmac_f32", vr(acc + k), vr(11), vr(UU + 8 + k))
    reduce8(a, [acc], 4)
    red_addr(a, vT[5], 4, 128, vT[6])
    set_exec(a, 0x000f000f, 0x000f000f)
    a.ds_write(2, vT[5], vr(acc, 2), SC_RD)
    exec_all(a)
    a.wait(lgkm=0)
    a.barrier()
    a.s("s_cmp_lg_u32", sWV, 0)
    a.s("s_cbranch_scc1", "L_skipD")
    a.v("v_and_b32", vT[5], 31, vTID)
    a.v("v_lshlrev_b32", vT[5], 2, vT[5])
    sum4_lds(a, vT[5], SC_RD, 128, [vr(8 + i) for i in range(4)], vT[0])
    a.v("v_min_u32", vT[0], SENT_FIX, vT[0])
    a.s("s_lshr_b32", sT0, sWR, 4)
    a.s("s_lshl_b32", sT0, sT0, 11)
    a.s("s_and_b32", sT1, sWR, 15)
    a.s("s_lshl_b32", sT1, sT1, 7)
    a.s("s_add_u32", sT0, sT0, sT1)
    a.s("s_add_u32", sT0, sT0, sLAY)
    a.s("s_add_u32", sT0, sT0, hex(DPP))
    set_exec(a, 0xffffffff, 0)
    a.bstore(1, vT[0], vT[5], S_WS, sT0, 0, "sc1")
    exec_all(a)
    a.label("L_skipD")
    stamp(a, 6)
    a.s("s_mul_i32", sT0, sWG, sLAYER)
    a.s("s_cmp_lg_u32", sT0, 0)
    a.s("s_cbranch_scc1", "L_end")

    unpack(a, RAW_Q, 16, UU)
    gather16_add_x(a, DPP, SC_X2)
    a.s("s_cmp_eq_u32", sLAYER, 0)
    a.s("s_cbranch_scc1", "L_stQ")
    a.v("v_cvt_pk_bf16_f32", vT[0], vX0, vX1)
    a.v("v_lshlrev_b32", vT[3], 2, vTID)
    a.bstore(1, vT[0], vT[3], S_OUT, 0, 0)
    stamp(a, 7)
    a.s("s_branch", "L_end")
    a.label("L_stQ")
    a.wait(lgkm=0)
    a.barrier()
    q_gemv(a, SC_X2, hex(LSTR + QP), "L_skipQ")
    stamp(a, 7)
    a.s("s_mov_b32", sLAYER, 1)
    a.s("s_mov_b32", sLAY, hex(LSTR))
    a.s("s_mov_b32", sRLB, sKVB)
    a.s("s_lshr_b32", sT2, sWG, 5)
    a.s("s_lshl_b32", sT2, sT2, 11)
    a.s("s_add_u32", sQB, sT2, hex(LSTR + QP))
    poll(a, lambda: q_gather_issue(a), [vr(QG + i) for i in range(32)])
    q_gather_sum(a)
    a.s("s_branch", "L_pass")
    a.label("L_end", pad=False)
    a.raw("  s_endpgm")
    return a.text()


def gen_init():
    a = Asm()
    kn = "init_kernel"
    a.raw(f".globl {kn}\n.p2align 8\n.type {kn},@function\n{kn}:")
    prologue_common(a, "L_iend")
    load_x(a)
    issue_wQ(a, RAW_Q)
    for i in range(4):
        a.v("v_mov_b32", vr(8 + i), -1)
    a.v("v_lshlrev_b32", vT[4], 4, vTID)
    a.s("s_mul_i32", sT0, sWG, 3072)
    a.s("s_add_u32", sT1, sT0, hex(LSTR))
    a.s("s_cmp_ge_u32", sWV, 3)
    a.s("s_cbranch_scc1", "L_iskip")
    a.bstore(4, "v[8:11]", vT[4], S_WS, sT0, 0)
    a.bstore(4, "v[8:11]", vT[4], S_WS, sT1, 0)
    a.label("L_iskip")
    a.wait(vm=0)
    unpack_x(a)
    unpack(a, RAW_Q, 16, UU)
    a.v("v_lshlrev_b32", vT[3], 3, vTID)
    a.ds_write(2, vT[3], "v[4:5]", SC_X2)
    a.wait(lgkm=0)
    a.barrier()
    q_gemv(a, SC_X2, hex(Q0), "L_iskipQ")
    a.label("L_iend", pad=False)
    a.raw("  s_endpgm")
    return a.text()


def kd(name, nv, acc):
    return f""".amdhsa_kernel {name}
  .amdhsa_next_free_vgpr {nv}
  .amdhsa_next_free_sgpr 102
  .amdhsa_accum_offset {acc}
  .amdhsa_group_segment_fixed_size 0
  .amdhsa_kernarg_size 96
  .amdhsa_user_sgpr_count 2
  .amdhsa_user_sgpr_kernarg_segment_ptr 1
  .amdhsa_system_sgpr_workgroup_id_x 1
.end_amdhsa_kernel
"""


def main():
    ref = open(f"cdna_kernels/{NAME}.s.ref").read()
    head = []
    for line in ref.splitlines():
        if line.startswith("; @launch"):
            break
        head.append(line)
    out = "\n".join(head) + "\n"
    if SINGLE:
        out += "; @launch grid=(256,1,1) block=(256,1,1) lds=163840\n"
    else:
        out += f"; @launch kernel=init_kernel grid=(256,1,1) block=(256,1,1) lds={SC_END}\n"
        out += "; @launch kernel=main_kernel grid=(256,1,1) block=(256,1,1) lds=163840\n"
    out += '.amdgcn_target "amdgcn-amd-amdhsa--gfx950"\n.text\n'
    if not SINGLE:
        out += gen_init()
    out += gen_main()
    out += '.section .rodata,"a"\n.p2align 6\n'
    if not SINGLE:
        out += kd("init_kernel", 128, 128)
        out += ".p2align 6\n"
    out += kd(NAME + "_kernel" if SINGLE else "main_kernel", 512, 256)
    dst = sys.argv[1] if len(sys.argv) > 1 else f"cdna_kernels/{NAME}.s"
    open(dst, "w").write(out)
    print("wrote", dst, len(out), "bytes")


if __name__ == "__main__":
    main()
```

```python
import sys
from asmlib import *

NAME = "interleave_layers__gqa_block_cached__glu_gated_reglu__decode"
EMU_ROUND = True
import os
STAMPS = int(os.environ.get("STAMPS", "0"))
SINGLE = bool(int(os.environ.get("SINGLE", "1")))

LSTR = 0x100000
QP, DPP, YP, GP, ML, PO, ZONE = 0x0, 0x10000, 0x18000, 0x20000, 0x3C000, 0x40000, 0xC0000
Q0 = 0x200000
WS_BYTES = 0x300000

SC_O = 0
SC_ML = 8192
SC_GO = 9216
SC_X1 = 11264
SC_X2 = 13312
SC_RG = 15360
SC_RD = 17408
SC_RQ = 17920
SC_Q = 18944
SC_QF = 19968
SC_END = 20224

S_K, S_V, S_WQ, S_WO, S_WG, S_WU, S_WD, S_WS, S_X, S_OUT = [sr(8 + 4 * i, 4) for i in range(10)]
sWG, sWV = "s2", "s3"
sLAYER, sKVB, sRLB, sT0, sT1, sLAY, sQB, sTO = "s48", "s49", "s50", "s51", "s52", "s53", "s54", "s55"
sC, sLOG2E, sSELLO, sSELHI, sT2, sLDSW, sT3, sT4 = "s56", "s57", "s58", "s59", "s60", "s61", "s62", "s63"
SW0 = 64
S_DBG = sr(88, 4)
sWR, sWRG = "s4", "s5"

vTID, vKOFF, vVOFF, vLDS = "v0", "v1", "v2", "v3"
vX0, vX1 = "v4", "v5"
vM, vL = "v6", "v7"
VQ = 8
VP = 12
VPB = (16, 20)
vT = [f"v{24+i}" for i in range(8)]
VO = 32
VD = 64
VTMP = 96
VV = 128

RAW_O, RAW_G, RAW_Q, RAW_D = 32, 48, 64, 80
UU = 96
GATH = list(range(8, 24)) + list(range(32, 48))

C_SCALE = 0x3DB504F3
LOG2E = 0x3FB8AA3B
SENT_FIX = "0xfffffffe"


def f32bits(x):
    import struct
    return struct.unpack("<I", struct.pack("<f", x))[0]


assert f32bits(128 ** -0.5) == C_SCALE, hex(f32bits(128 ** -0.5))


def set_exec(a, lo, hi):
    a.s("s_mov_b32", "exec_lo", hex(lo))
    a.s("s_mov_b32", "exec_hi", hex(hi))


def exec_all(a):
    a.s("s_mov_b64", "exec", "-1")


def round_pair(a, x0, x1, tmp):
    a.v("v_cvt_pk_bf16_f32", tmp, x0, x1)
    a.v("v_lshlrev_b32", x0, 16, tmp)
    a.v("v_and_b32", x1, "0xffff0000", tmp)


def round_one(a, x0, tmp):
    a.v("v_cvt_pk_bf16_f32", tmp, x0, x0)
    a.v("v_lshlrev_b32", x0, 16, tmp)


def row_allreduce(a, op, regs):
    for ctrl in ("quad_perm:[1,0,3,2]", "quad_perm:[2,3,0,1]", "row_half_mirror", "row_mirror"):
        for r in regs:
            a.dpp(op, r, r, r, ctrl=ctrl)


def prologue_common(a, lbl_end):
    a.s("s_cmp_ge_u32", sWG, 256)
    a.s("s_cbranch_scc1", lbl_end)
    a.raw("  s_load_dwordx16 s[64:79], s[0:1], 0")
    a.raw("  s_load_dwordx8 s[80:87], s[0:1], 64")
    a.v("v_lshrrev_b32", vT[0], 6, vTID)
    a.v("v_readfirstlane_b32", sWV, vT[0])
    a.raw("  s_waitcnt lgkmcnt(0)")
    srds = [(8, 66, 0x8000000), (12, 68, 0x8000000), (16, 70, 0x400000), (20, 72, 0x400000),
            (24, 76, 512 * 1792 * 2), (28, 78, 512 * 1792 * 2), (32, 80, 1792 * 512 * 2),
            (36, 86, WS_BYTES), (40, 64, 1024), (44, 82, 1024), (88, 84, 256)] + ([(96, 84, 256)] if STAMPS == 2 else [])
    for d, p, n in srds:
        a.s("s_mov_b32", sr(d), sr(p))
        a.s("s_and_b32", sr(d + 1), sr(p + 1), "0xffff")
        a.s("s_mov_b32", sr(d + 2), hex(n))
        a.s("s_mov_b32", sr(d + 3), "0x00020000")
    a.s("s_mov_b32", sC, hex(C_SCALE))
    a.s("s_mov_b32", sLOG2E, hex(LOG2E))
    a.s("s_mov_b32", sSELLO, "0x05040100")
    a.s("s_mov_b32", sSELHI, "0x07060302")
    a.s("s_mov_b32", sTO, hex(1 << 18))
    a.s("s_and_b32", sT0, sWG, 7)
    a.s("s_lshr_b32", sT1, sWG, 3)
    a.s("s_lshl_b32", sWR, sT0, 5)
    a.s("s_add_u32", sWR, sWR, sT1)
    a.s("s_mul_i32", sWRG, sT0, 28)
    a.s("s_add_u32", sWRG, sWRG, sT1)
    l = vT[0]
    a.v("v_and_b32", l, 63, vTID)
    a.v("v_lshlrev_b32", vVOFF, 4, l)
    a.v("v_bfe_u32", vT[1], l, 2, 2)
    a.v("v_lshlrev_b32", vKOFF, 8, vT[1])
    a.v("v_lshrrev_b32", vT[2], 4, l)
    a.v("v_lshl_add_u32", vKOFF, vT[2], 6, vKOFF)
    a.v("v_and_b32", vT[3], 3, l)
    a.v("v_lshl_add_u32", vKOFF, vT[3], 4, vKOFF)
    a.s("s_lshl_b32", sLDSW, sWV, 15)
    a.s("s_add_u32", sLDSW, sLDSW, 32768)
    a.v("v_add_u32", vLDS, sLDSW, vVOFF)


def load_x(a):
    a.v("v_lshlrev_b32", vT[4], 2, vTID)
    a.bload(1, vX0, vT[4], S_X, 0)


def unpack_x(a):
    a.v("v_and_b32", vX1, "0xffff0000", vX0)
    a.v("v_lshlrev_b32", vX0, 16, vX0)


def lane_voff(a, dst, sh_c, rowbytes, tmp):
    a.v("v_and_b32", tmp, 63, vTID)
    a.v("v_lshrrev_b32", dst, sh_c, tmp)
    a.s("s_mov_b32", sT4, rowbytes)
    a.v("v_mul_lo_u32", dst, dst, sT4)
    a.v("v_and_b32", tmp, (1 << sh_c) - 1, tmp)
    a.v("v_lshl_add_u32", dst, tmp, 4, dst)


def g_block(a, rb, cb):
    a.s("s_mul_i32", rb, sWR, 2341)
    a.s("s_lshr_b32", rb, rb, 16)
    a.s("s_mul_i32", cb, rb, 28)
    a.s("s_sub_u32", cb, sWR, cb)


def issue_wQ(a, raw):
    lane_voff(a, vT[5], 3, 8192, vT[6])
    a.s("s_lshr_b32", sT0, sWR, 6)
    a.s("s_lshl_b32", sT0, sT0, 20)
    a.s("s_lshl_b32", sT1, sWV, 18)
    a.s("s_add_u32", sT0, sT0, sT1)
    a.s("s_and_b32", sT1, sWR, 63)
    a.s("s_lshl_b32", sT1, sT1, 7)
    a.s("s_add_u32", sT0, sT0, sT1)
    for i in range(4):
        a.bload(4, vr(raw + 4 * i, 4), vT[5], S_WQ, sT0, 0)
        if i < 3:
            a.s("s_add_u32", sT0, sT0, 65536)


def issue_wG(a, raw):
    lane_voff(a, vT[5], 3, 3584, vT[6])
    g_block(a, sT2, sT3)
    a.s("s_lshl_b32", sT0, sT2, 2)
    a.s("s_add_u32", sT0, sT0, sWV)
    a.s("s_mul_i32", sT0, sT0, 16 * 3584)
    a.s("s_lshl_b32", sT1, sT3, 7)
    a.s("s_add_u32", sT0, sT0, sT1)
    a.s("s_add_u32", sT1, sT0, 8 * 3584)
    a.bload(4, vr(raw + 0, 4), vT[5], S_WG, sT0, 0)
    a.bload(4, vr(raw + 4, 4), vT[5], S_WG, sT1, 0)
    a.bload(4, vr(raw + 8, 4), vT[5], S_WU, sT0, 0)
    a.bload(4, vr(raw + 12, 4), vT[5], S_WU, sT1, 0)


def issue_wD(a, raw):
    lane_voff(a, vT[5], 2, 1024, vT[6])
    a.s("s_lshr_b32", sT0, sWR, 4)
    a.s("s_lshl_b32", sT0, sT0, 2)
    a.s("s_add_u32", sT0, sT0, sWV)
    a.s("s_mul_i32", sT0, sT0, 28 * 1024)
    a.s("s_and_b32", sT1, sWR, 15)
    a.s("s_lshl_b32", sT1, sT1, 6)
    a.s("s_add_u32", sT0, sT0, sT1)
    a.s("s_add_u32", sT1, sT0, 16384)
    a.bload(4, vr(raw + 0, 4), vT[5], S_WD, sT0, 0)
    a.bload(4, vr(raw + 4, 4), vT[5], S_WD, sT1, 0)


def issue_wO(a, raw):
    lane_voff(a, vT[5], 2, 1024, vT[6])
    a.s("s_lshr_b32", sT0, sWR, 4)
    a.s("s_lshl_b32", sT0, sT0, 18)
    a.s("s_lshl_b32", sT1, sWV, 16)
    a.s("s_add_u32", sT0, sT0, sT1)
    a.s("s_and_b32", sT1, sWR, 15)
    a.s("s_lshl_b32", sT1, sT1, 6)
    a.s("s_add_u32", sT0, sT0, sT1)
    for i in range(4):
        a.bload(4, vr(raw + 4 * i, 4), vT[5], S_WO, sT0, 0)
        if i < 3:
            a.s("s_add_u32", sT0, sT0, 16384)


def unpack(a, raw, n, dst):
    for i in range(n):
        a.v("v_lshlrev_b32", vr(dst + 2 * i), 16, vr(raw + i))
        a.v("v_and_b32", vr(dst + 2 * i + 1), "0xffff0000", vr(raw + i))


def lds_sum16(a, addr, base, stride, regs, out):
    for p in range(16):
        a.ds_read(1, regs[p], addr, base + p * stride)
    a.wait(lgkm=0)
    n = 16
    while n > 1:
        for i in range(n // 2):
            a.v("v_add_f32", regs[i], regs[i], regs[i + n // 2])
        n //= 2
    if out != regs[0]:
        a.v("v_mov_b32", out, regs[0])


def wave_allreduce_add(a, x, t):
    row_allreduce(a, "v_add_f32", [x])
    a.v("v_mov_b32", t, x)
    a.v("v_permlane32_swap_b32", x, t)
    a.v("v_add_f32", x, x, t)
    a.v("v_mov_b32", t, x)
    a.v("v_permlane16_swap_b32", x, t)
    a.v("v_add_f32", x, x, t)


def ln_from_lds(a, scx, vrows, offs, outs, tq):
    s, mean, t, tmp, la = vT[0], vT[1], vT[2], vT[3], vT[4]
    a.v("v_and_b32", la, 63, vTID)
    a.v("v_lshlrev_b32", la, 5, la)
    a.ds_read(4, vr(tq, 4), la, scx)
    a.ds_read(4, vr(tq + 4, 4), la, scx + 16)
    for o, off in zip(outs, offs):
        a.ds_read(1, o, vrows, scx + off)
    a.wait(lgkm=len(outs))
    X = [vr(tq + k) for k in range(8)]
    a.v("v_add_f32", s, X[0], X[1])
    a.v("v_add_f32", t, X[2], X[3])
    a.v("v_add_f32", s, s, X[4])
    a.v("v_add_f32", t, t, X[5])
    a.v("v_add_f32", s, s, X[6])
    a.v("v_add_f32", t, t, X[7])
    a.v("v_add_f32", s, s, t)
    wave_allreduce_add(a, s, t)
    a.v("v_mul_f32", mean, hex(f32bits(1.0 / 512)), s)
    for k in range(8):
        a.v("v_sub_f32", X[k], X[k], mean)
    a.v("v_mul_f32", s, X[0], X[0])
    a.v("v_mul_f32", t, X[1], X[1])
    for k in range(2, 8, 2):
        a.v("v_fmac_f32", s, X[k], X[k])
        a.v("v_fmac_f32", t, X[k + 1], X[k + 1])
    a.v("v_add_f32", s, s, t)
    wave_allreduce_add(a, s, t)
    a.v("v_mul_f32", s, hex(f32bits(1.0 / 512)), s)
    round_pair(a, mean, s, tmp)
    a.v("v_add_f32", s, hex(f32bits(1e-5)), s)
    round_one(a, s, tmp)
    a.v("v_sqrt_f32", s, s)
    round_one(a, s, tmp)
    a.v("v_rcp_f32", s, s)
    a.wait(lgkm=0)
    for i in range(0, len(outs), 2):
        a0, a1 = outs[i], outs[i + 1]
        a.v("v_sub_f32", a0, a0, mean)
        a.v("v_sub_f32", a1, a1, mean)
        round_pair(a, a0, a1, tmp)
        a.v("v_mul_f32", a0, a0, s)
        a.v("v_mul_f32", a1, a1, s)
        round_pair(a, a0, a1, tmp)


def reduce8(a, accs, nc):
    for b in accs:
        for k in range(4):
            a.v("v_permlane32_swap_b32", vr(b + k), vr(b + k + 4))
    for b in accs:
        for k in range(4):
            a.v("v_add_f32", vr(b + k), vr(b + k), vr(b + k + 4))
    for b in accs:
        a.v("v_permlane16_swap_b32", vr(b + 0), vr(b + 2))
        a.v("v_permlane16_swap_b32", vr(b + 1), vr(b + 3))
    for b in accs:
        a.v("v_add_f32", vr(b + 0), vr(b + 0), vr(b + 2))
        a.v("v_add_f32", vr(b + 1), vr(b + 1), vr(b + 3))
    steps = {8: ["row_ror:8"], 4: ["row_ror:4", "row_ror:8"]}[nc]
    for ctrl in steps:
        for b in accs:
            a.dpp("v_add_f32", vr(b), vr(b), vr(b), ctrl=ctrl)
            a.dpp("v_add_f32", vr(b + 1), vr(b + 1), vr(b + 1), ctrl=ctrl)


def red_addr(a, dst, nc, wvstride, tmp):
    a.v("v_and_b32", tmp, nc - 1, vTID)
    a.v("v_lshlrev_b32", dst, 5, tmp)
    a.v("v_bfe_u32", tmp, vTID, 4, 2)
    a.v("v_lshl_add_u32", dst, tmp, 3, dst)
    a.s("s_mul_i32", sT4, sWV, wvstride)
    a.v("v_add_u32", dst, sT4, dst)


def sum4_lds(a, addr, base, stride, regs, out):
    for p in range(4):
        a.ds_read(1, regs[p], addr, base + p * stride)
    a.wait(lgkm=0)
    a.v("v_add_f32", regs[0], regs[0], regs[1])
    a.v("v_add_f32", regs[2], regs[2], regs[3])
    a.v("v_add_f32", out, regs[0], regs[2])


def q_gemv(a, scx, base_s, lbl):
    a.v("v_bfe_u32", vT[5], vTID, 3, 3)
    a.v("v_lshlrev_b32", vT[5], 2, vT[5])
    a.s("s_lshr_b32", sT0, sWR, 6)
    a.s("s_lshl_b32", sT0, sT0, 9)
    a.s("s_lshl_b32", sT1, sWV, 7)
    a.s("s_add_u32", sT0, sT0, sT1)
    a.v("v_add_u32", vT[5], sT0, vT[5])
    A = [vr(16 + i) for i in range(4)]
    ln_from_lds(a, scx, vT[5], [32 * i for i in range(4)], A, 8)
    acc = 32
    for k in range(8):
        a.v("v_mul_f32", vr(acc + k), A[0], vr(UU + k))
    for i in range(1, 4):
        for k in range(8):
            a.v("v_fmac_f32", vr(acc + k), A[i], vr(UU + 8 * i + k))
    reduce8(a, [acc], 8)
    red_addr(a, vT[5], 8, 256, vT[6])
    set_exec(a, 0x00ff00ff, 0x00ff00ff)
    a.ds_write(2, vT[5], vr(acc, 2), SC_RQ)
    exec_all(a)
    a.wait(lgkm=0)
    a.barrier()
    a.s("s_cmp_lg_u32", sWV, 0)
    a.s("s_cbranch_scc1", lbl)
    a.v("v_lshlrev_b32", vT[5], 2, vTID)
    sum4_lds(a, vT[5], SC_RQ, 256, [vr(8 + i) for i in range(4)], vT[0])
    a.v("v_min_u32", vT[0], SENT_FIX, vT[0])
    a.s("s_lshr_b32", sT0, sWR, 6)
    a.s("s_lshl_b32", sT0, sT0, 14)
    a.s("s_and_b32", sT1, sWR, 63)
    a.s("s_lshl_b32", sT1, sT1, 8)
    a.s("s_add_u32", sT0, sT0, sT1)
    a.s("s_add_u32", sT0, sT0, base_s)
    a.bstore(1, vT[0], vT[5], S_WS, sT0, 0, "sc1")
    a.label(lbl)


QG = 64


def q_gather_issue(a):
    a.v("v_lshlrev_b32", vT[3], 1, vKOFF)
    for p in range(4):
        a.s("s_add_u32", sT0, sQB, p * 16384)
        a.bload(4, vr(QG + 8 * p, 4), vT[3], S_WS, sT0, 0, "sc1")
        a.bload(4, vr(QG + 8 * p + 4, 4), vT[3], S_WS, sT0, 16, "sc1")


def q_gather_sum(a):
    for k in range(8):
        a.v("v_add_f32", vr(QG + k), vr(QG + k), vr(QG + 8 + k))
        a.v("v_add_f32", vr(QG + 16 + k), vr(QG + 16 + k), vr(QG + 24 + k))
    for k in range(8):
        a.v("v_add_f32", vr(QG + k), vr(QG + k), vr(QG + 16 + k))
    for e in range(4):
        a.v("v_cvt_pk_bf16_f32", vr(VQ + e), vr(QG + 2 * e), vr(QG + 2 * e + 1))


def gather16_add_x(a, base_off, scx):
    a.v("v_lshlrev_b32", vT[3], 3, vTID)
    a.s("s_add_u32", sT3, sLAY, hex(base_off))

    def loads():
        for p in range(16):
            if p % 2 == 0:
                a.s("s_add_u32", sT0, sT3, (p // 2) * 4096)
            a.bload(2, vr(GATH[2 * p], 2), vT[3], S_WS, sT0, (p % 2) * 2048, "sc1")
    poll(a, loads, [vr(r) for r in GATH])
    n = 16
    while n > 1:
        for i in range(n // 2):
            for h in range(2):
                a.v("v_add_f32", vr(GATH[2 * i + h]), vr(GATH[2 * i + h]), vr(GATH[2 * (i + n // 2) + h]))
        n //= 2
    round_pair(a, vr(GATH[0]), vr(GATH[1]), vT[0])
    a.v("v_add_f32", vX0, vX0, vr(GATH[0]))
    a.v("v_add_f32", vX1, vX1, vr(GATH[1]))
    round_pair(a, vX0, vX1, vT[0])
    if scx is not None:
        a.ds_write(2, vT[3], "v[4:5]", scx)


_pollid = [0]


def stamp(a, idx, layered=True):
    if not STAMPS:
        return
    if STAMPS == 2:
        _pollid[0] += 1
        lb = f"L_st{_pollid[0]}"
        a.s("s_and_b32", "s100", sWG, 31)
        a.s("s_or_b32", "s100", "s100", sWV)
        a.s("s_cmp_lg_u32", "s100", 0)
        a.s("s_cbranch_scc1", lb)
        a.raw("  s_memrealtime s[100:101]")
        a.raw("  s_waitcnt lgkmcnt(0)")
        if idx == 0:
            a.s("s_not_b32", "s100", "s100")
        a.v("v_mov_b32", vT[7], "s100")
        a.s("s_lshl_b32", "s101", sLAYER, 5) if layered else a.s("s_mov_b32", "s101", 0)
        a.s("s_add_u32", "s101", "s101", 4 + 4 * idx)
        a.v("v_mov_b32", vT[6], 0)
        set_exec(a, 1, 0)
        a.raw(f"  buffer_atomic_umax {vT[7]}, {vT[6]}, s[96:99], s101 offen sc1")
        exec_all(a)
        a.label(lb)
        return
    a.raw("  s_memrealtime s[98:99]")
    a.s("s_lshl_b32", "s100", sWG, 2)
    a.s("s_add_u32", "s100", "s100", sWV)
    a.s("s_lshl_b32", "s100", "s100", 7)
    a.s("s_add_u32", "s100", "s100", hex(0x280000 + idx * 4))
    if layered:
        a.s("s_lshl_b32", "s101", sLAYER, 6)
        a.s("s_add_u32", "s100", "s100", "s101")
    a.raw("  s_waitcnt lgkmcnt(0)")
    a.v("v_mov_b32", vT[7], "s98")
    a.v("v_mov_b32", vT[6], 0)
    set_exec(a, 1, 0)
    a.bstore(1, vT[7], vT[6], S_WS, "s100", 0)
    exec_all(a)


def poll(a, issue_loads, regs):
    _pollid[0] += 1
    n = _pollid[0]
    a.label(f"L_poll{n}")
    issue_loads()
    a.wait(vm=0)
    sent_check(a, regs)
    a.s("s_cbranch_vccz", f"L_pdone{n}")
    a.s("s_sub_u32", sTO, sTO, 1)
    a.s("s_cmp_le_i32", sTO, 0)
    a.s("s_cbranch_scc1", f"L_pdone{n}")
    a.s("s_sleep", 1)
    a.s("s_branch", f"L_poll{n}")
    a.label(f"L_pdone{n}")


def sent_check(a, regs):
    acc = vT[7]
    rs = list(regs)
    a.v("v_max_u32", acc, rs[0], rs[1] if len(rs) > 1 else rs[0])
    rs = rs[2:]
    while rs:
        if len(rs) >= 2:
            a.v("v_max3_u32", acc, acc, rs[0], rs[1])
            rs = rs[2:]
        else:
            a.v("v_max_u32", acc, acc, rs[0])
            rs = rs[1:]
    a.v("v_cmp_eq_u32", "vcc", -1, acc)
    a.nop(1)


def slot_kreg(s, i):
    return ar(32 * s + 4 * i, 4)


def slot_vraw(s, i):
    if s < 4:
        return vr(VV + 32 * s + 4 * i, 4)
    return ar(192 + 32 * (s - 4) + 4 * i, 4)


def issue_slot(a, s, sbase, toff):
    a.wait(vm=47)
    a.s("s_add_u32", sT0, sbase, toff)
    a.s("s_add_u32", sT1, sbase, toff + 4096)
    if s < 6:
        for i in range(8):
            a.bload(4, slot_kreg(s, i), vKOFF, S_K, sT0 if i < 4 else sT1, (i % 4) * 1024, "nt")
        for i in range(8):
            a.bload(4, slot_vraw(s, i), vVOFF, S_V, sT0 if i < 4 else sT1, (i % 4) * 1024, "nt")
    else:
        for half, (srd, voff) in enumerate(((S_K, vKOFF), (S_V, vVOFF))):
            for hi in range(2):
                a.s("s_add_u32", "m0", sLDSW, (s - 6) * 16384 + half * 8192 + hi * 4096)
                for i in range(4):
                    a.bload_lds(voff, srd, sT0 if hi == 0 else sT1, i * 1024, "nt")


def tile(a, s):
    a.comment(f"---- tile slot {s}")
    lds = s >= 6
    if lds:
        for i in range(8):
            a.ds_read(4, vr(VTMP + 4 * i, 4), vLDS, (s - 6) * 16384 + i * 1024)
        a.wait(lgkm=0)
        kf = lambda i: vr(VTMP + 4 * i, 4)
    else:
        kf = lambda i: slot_kreg(s, i)
    for i in range(8):
        a.mfma(vr(VD + 4 * i, 4), kf(i), vr(VQ, 4), 0)
    if lds:
        for i in range(8):
            a.ds_read(4, vr(VTMP + 4 * i, 4), vLDS, (s - 6) * 16384 + 8192 + i * 1024)
        vsrc = lambda i, d: vr(VTMP + 4 * i + d)
    elif s >= 4:
        for i in range(32):
            a.v("v_accvgpr_read_b32", vr(VTMP + i), ar(192 + 32 * (s - 4) + i))
        vsrc = lambda i, d: vr(VTMP + 4 * i + d)
    else:
        vsrc = lambda i, d: vr(VV + 32 * s + 4 * i + d)

    def perms(m):
        d = m // 2
        sel = sSELLO if m % 2 == 0 else sSELHI
        b = VPB[m % 2]
        for e in range(4):
            a.v("v_perm_b32", vr(b + e), vsrc(2 * e + 1, d), vsrc(2 * e, d), sel)

    if not lds:
        perms(0)
        perms(1)
    S = [vr(VD + 4 * i) for i in range(8)]
    for i in range(8):
        a.dpp("v_mov_b32", S[i], S[i], ctrl="quad_perm:[0,0,0,0]")
    for r in (1, 2, 3):
        for i in range(8):
            a.dpp("v_add_f32", S[i], vr(VD + 4 * i + r), S[i], ctrl=f"quad_perm:[{r},{r},{r},{r}]")
    if EMU_ROUND:
        for i in range(0, 8, 2):
            round_pair(a, S[i], S[i + 1], vr(VD + 4 * i + 1))
        for i in range(8):
            a.v("v_mul_f32", S[i], sC, S[i])
        for i in range(0, 8, 2):
            round_pair(a, S[i], S[i + 1], vr(VD + 4 * i + 1))
    else:
        for i in range(8):
            a.v("v_mul_f32", S[i], sC, S[i])
    tm, t2, alpha, mneg, ps = vT[0], vT[1], vT[2], vT[3], vT[4]
    a.v("v_max3_f32", tm, S[0], S[1], S[2])
    a.v("v_max3_f32", t2, S[3], S[4], S[5])
    a.v("v_max3_f32", tm, tm, S[6], S[7])
    a.v("v_max3_f32", tm, tm, t2, vM)
    a.v("v_mov_b32", t2, tm)
    a.v("v_permlane32_swap_b32", tm, t2)
    a.v("v_max_f32", tm, tm, t2)
    a.v("v_mov_b32", t2, tm)
    a.v("v_permlane16_swap_b32", tm, t2)
    a.v("v_max_f32", tm, tm, t2)
    a.v("v_sub_f32", alpha, vM, tm)
    a.v("v_mul_f32", alpha, sLOG2E, alpha)
    a.v("v_exp_f32", alpha, alpha)
    a.v("v_mov_b32", vM, tm)
    a.v("v_mul_f32", mneg, sLOG2E, tm)
    for i in range(8):
        a.v("v_fma_f32", S[i], S[i], sLOG2E, "-" + mneg)
    for i in range(8):
        a.v("v_exp_f32", S[i], S[i])
    for i in range(32):
        a.v("v_mul_f32", vr(VO + i), alpha, vr(VO + i))
    a.v("v_mul_f32", vL, alpha, vL)
    a.v("v_add_f32", ps, S[0], S[1])
    a.v("v_add_f32", t2, S[2], S[3])
    a.v("v_add_f32", ps, ps, S[4])
    a.v("v_add_f32", t2, t2, S[5])
    a.v("v_add_f32", ps, ps, S[6])
    a.v("v_add_f32", t2, t2, S[7])
    a.v("v_add_f32", vL, vL, ps)
    a.v("v_add_f32", vL, vL, t2)
    for e in range(4):
        a.v("v_cvt_pk_bf16_f32", vr(VP + e), S[2 * e], S[2 * e + 1])
    if lds:
        a.wait(lgkm=0)
        perms(0)
        perms(1)
    for m in range(8):
        a.mfma(vr(VO + 4 * m, 4), vr(VPB[m % 2], 4), vr(VP, 4), vr(VO + 4 * m, 4))
        if m + 2 < 8:
            perms(m + 2)


def gen_main():
    a = Asm()
    sc = 0
    kn = NAME + "_kernel" if SINGLE else "main_kernel"
    a.raw(f".globl {kn}\n.p2align 8\n.type {kn},@function\n{kn}:")
    prologue_common(a, "L_end")
    stamp(a, 0, False)
    load_x(a)
    a.s("s_lshr_b32", sT2, sWG, 5)
    a.s("s_lshl_b32", sT2, sT2, 11)
    a.s("s_add_u32", sQB, sT2, hex(Q0))
    a.s("s_lshl_b32", sKVB, sWG, 19)
    a.s("s_lshl_b32", sT2, sWV, 13)
    a.s("s_add_u32", sKVB, sKVB, sT2)
    a.s("s_add_u32", sRLB, sKVB, 8 * 32768)
    a.s("s_mov_b32", sLAYER, 0)
    a.s("s_mov_b32", sLAY, 0)
    if not SINGLE:
        q_gather_issue(a)
        for s in range(8):
            issue_slot(a, s, sKVB, s * 32768)
        unpack_x(a)
        q_gather_sum(a)
    else:
        issue_wQ(a, RAW_Q)
        for i in range(4):
            a.v("v_mov_b32", vr(8 + i), -1)
        a.v("v_mov_b32", vr(12), 0)
        a.v("v_lshlrev_b32", vT[4], 4, vTID)
        a.s("s_mul_i32", sT0, sWG, 3072)
        a.s("s_add_u32", sT1, sT0, hex(LSTR))
        a.s("s_cmp_ge_u32", sWV, 3)
        a.s("s_cbranch_scc1", "L_clr_done")
        a.bstore(4, "v[8:11]", vT[4], S_WS, sT0, 0, "sc1")
        a.bstore(4, "v[8:11]", vT[4], S_WS, sT1, 0, "sc1")
        a.s("s_cmp_lg_u32", sWV, 0)
        a.s("s_cbranch_scc1", "L_clr_done")
        a.v("v_lshlrev_b32", vT[4], 2, vTID)
        a.s("s_lshr_b32", sT0, sWR, 6)
        a.s("s_lshl_b32", sT0, sT0, 14)
        a.s("s_and_b32", sT1, sWR, 63)
        a.s("s_lshl_b32", sT1, sT1, 8)
        a.s("s_add_u32", sT0, sT0, sT1)
        a.s("s_add_u32", sT0, sT0, hex(Q0))
        a.bstore(1, vr(8), vT[4], S_WS, sT0, 0, "sc1")
        a.ds_write(1, vr(12), vr(12), SC_QF)
        a.label("L_clr_done")
        for s in range(3):
            issue_slot(a, s, sKVB, s * 32768)
        a.wait(vm=48)
        unpack_x(a)
        unpack(a, RAW_Q, 16, UU)
        a.v("v_lshlrev_b32", vT[3], 3, vTID)
        a.ds_write(2, vT[3], "v[4:5]", SC_X2)
        a.wait(lgkm=0)
        a.barrier()
        a.s("s_cmp_lg_u32", sWV, 0)
        a.s("s_cbranch_scc1", "L_noat")
        a.v("v_mov_b32", vT[4], 1)
        set_exec(a, 1, 0)
        a.batomic_add(vT[4], vr(12), S_DBG, 0, "sc1")
        exec_all(a)
        a.label("L_noat")
        q_gemv(a, SC_X2, hex(Q0), "L_skipQ0")
        a.s("s_cmp_lg_u32", sWV, 0)
        a.s("s_cbranch_scc1", "L_w123")
        a.v("v_mov_b32", vT[4], 0)
        a.label("L_cnt")
        a.bload(1, vT[0], vT[4], S_DBG, 0, 0, "sc1")
        a.wait(vm=0)
        a.v("v_readfirstlane_b32", sT0, vT[0])
        a.s("s_cmp_ge_u32", sT0, 256)
        a.s("s_cbranch_scc1", "L_cntok")
        a.s("s_sub_u32", sTO, sTO, 1)
        a.s("s_cmp_le_i32", sTO, 0)
        a.s("s_cbranch_scc1", "L_cntok")
        a.s("s_sleep", 2)
        a.s("s_branch", "L_cnt")
        a.label("L_cntok")
        q_gather_issue(a)
        for s in range(3, 6):
            issue_slot(a, s, sKVB, s * 32768)
        a.wait(vm=48)
        sent_check(a, [vr(QG + i) for i in range(32)])
        a.s("s_cbranch_vccz", "L_qok")
        poll(a, lambda: q_gather_issue(a), [vr(QG + i) for i in range(32)])
        a.label("L_qok")
        q_gather_sum(a)
        a.v("v_mov_b32", vT[4], 1)
        a.v("v_mov_b32", vT[5], 0)
        a.ds_write(4, vVOFF, vr(VQ, 4), SC_Q)
        a.ds_write(1, vT[5], vT[4], SC_QF)
        for s in range(6, 8):
            issue_slot(a, s, sKVB, s * 32768)
        a.s("s_branch", "L_pass")
        a.label("L_w123")
        for s in range(3, 8):
            issue_slot(a, s, sKVB, s * 32768)
        a.v("v_mov_b32", vT[5], 0)
        a.label("L_qf")
        a.ds_read(1, vT[4], vT[5], SC_QF)
        a.wait(lgkm=0)
        a.v("v_readfirstlane_b32", sT0, vT[4])
        a.s("s_cmp_lg_u32", sT0, 0)
        a.s("s_cbranch_scc1", "L_qfok")
        a.s("s_sub_u32", sTO, sTO, 1)
        a.s("s_cmp_le_i32", sTO, 0)
        a.s("s_cbranch_scc1", "L_qfok")
        a.s("s_sleep", 1)
        a.s("s_branch", "L_qf")
        a.label("L_qfok")
        a.ds_read(4, vr(VQ, 4), vVOFF, SC_Q)
        a.wait(lgkm=0)

    a.label("L_pass")
    stamp(a, 1)
    a.v("v_mov_b32", vM, "0xff7fffff")
    a.v("v_mov_b32", vL, 0)
    for i in range(32):
        a.v("v_mov_b32", vr(VO + i), 0)
    for s in range(8):
        tile(a, s)
        issue_slot(a, s, sRLB, s * 32768)
    for s in range(8):
        a.wait(vm=min(63, 16 * (7 - s)))
        tile(a, s)

    stamp(a, 2)
    t2 = vT[1]
    a.v("v_mov_b32", t2, vL)
    a.v("v_permlane32_swap_b32", vL, t2)
    a.v("v_add_f32", vL, vL, t2)
    a.v("v_mov_b32", t2, vL)
    a.v("v_permlane16_swap_b32", vL, t2)
    a.v("v_add_f32", vL, vL, t2)
    l = vT[0]
    a.v("v_and_b32", l, 63, vTID)
    a.v("v_bfe_u32", vT[2], l, 2, 2)
    a.s("s_lshl_b32", sT0, sWV, 5)
    a.v("v_lshl_add_u32", vT[3], vT[2], 3, sT0)
    a.s("s_lshl_b32", sT0, sWV, 11)
    a.v("v_lshl_add_u32", vT[4], vT[2], 9, sT0)
    a.v("v_lshrrev_b32", vT[5], 4, l)
    a.v("v_lshl_add_u32", vT[4], vT[5], 7, vT[4])
    set_exec(a, 0x11111111, 0x11111111)
    a.ds_write(2, vT[3], "v[6:7]", sc + SC_ML)
    for m in range(8):
        for r in range(4):
            a.ds_write(1, vT[4], vr(VO + 4 * m + r), sc + SC_O + (8 * r + m) * 4)
    exec_all(a)
    a.wait(lgkm=0)
    a.barrier()
    a.s("s_lshl_b32", sT0, sWV, 3)
    a.v("v_mov_b32", vT[3], sT0)
    a.s("s_lshl_b32", sT0, sWV, 9)
    a.v("v_lshl_add_u32", vT[4], l, 3, sT0)
    mlr = [8, 10, 12, 14]
    orr = [16, 18, 20, 22]
    for w in range(4):
        a.ds_read(2, vr(mlr[w], 2), vT[3], sc + SC_ML + w * 32)
        a.ds_read(2, vr(orr[w], 2), vT[4], sc + SC_O + w * 2048)
    a.wait(lgkm=0)
    Mg = vr(88)
    Lg = vr(89)
    a.v("v_max3_f32", Mg, vr(8), vr(10), vr(12))
    a.v("v_max_f32", Mg, Mg, vr(14))
    for w in range(4):
        a.v("v_sub_f32", vr(mlr[w]), vr(mlr[w]), Mg)
        a.v("v_mul_f32", vr(mlr[w]), sLOG2E, vr(mlr[w]))
        a.v("v_exp_f32", vr(mlr[w]), vr(mlr[w]))
    a.v("v_mul_f32", Lg, vr(8), vr(9))
    a.v("v_mul_f32", vr(90), vr(8), vr(16))
    a.v("v_mul_f32", vr(91), vr(8), vr(17))
    for w in range(1, 4):
        a.v("v_fmac_f32", Lg, vr(mlr[w]), vr(mlr[w] + 1))
        a.v("v_fmac_f32", vr(90), vr(mlr[w]), vr(orr[w]))
        a.v("v_fmac_f32", vr(91), vr(mlr[w]), vr(orr[w] + 1))
    for r in (88, 89, 90, 91):
        a.v("v_min_u32", vr(r), SENT_FIX, vr(r))
    a.s("s_lshr_b32", sT0, sWG, 5)
    a.s("s_lshl_b32", sT0, sT0, 2)
    a.s("s_add_u32", sT0, sT0, sWV)
    a.s("s_lshl_b32", sT0, sT0, 5)
    a.s("s_and_b32", sT1, sWG, 31)
    a.s("s_add_u32", sT0, sT0, sT1)
    a.s("s_lshl_b32", sT1, sT0, 9)
    a.s("s_add_u32", sT1, sT1, sLAY)
    a.s("s_add_u32", sT1, sT1, hex(PO))
    a.v("v_lshlrev_b32", vT[4], 3, l)
    a.bstore(2, "v[90:91]", vT[4], S_WS, sT1, 0, "sc1")
    a.s("s_lshl_b32", sT1, sT0, 3)
    a.s("s_add_u32", sT1, sT1, sLAY)
    a.s("s_add_u32", sT1, sT1, hex(ML))
    a.v("v_mov_b32", vT[4], 0)
    set_exec(a, 1, 0)
    a.bstore(2, "v[88:89]", vT[4], S_WS, sT1, 0, "sc1")
    exec_all(a)

    issue_wO(a, RAW_O)
    issue_wG(a, RAW_G)
    issue_wD(a, RAW_D)
    issue_wQ(a, RAW_Q)

    stamp(a, 3)
    GO = list(range(8, 24)) + list(range(96, 112))
    a.s("s_lshr_b32", sT2, sWR, 4)
    a.s("s_lshl_b32", sT2, sT2, 1)
    a.s("s_lshr_b32", sT3, sWV, 1)
    a.s("s_add_u32", sT2, sT2, sT3)
    a.v("v_and_b32", vT[3], 127, vTID)
    a.v("v_lshlrev_b32", vT[3], 2, vT[3])
    a.v("v_and_b32", vT[4], 31, vTID)
    a.v("v_lshlrev_b32", vT[4], 3, vT[4])
    a.s("s_lshl_b32", sT3, sT2, 14)
    a.s("s_add_u32", sT3, sT3, sLAY)
    a.s("s_add_u32", sT3, sT3, hex(PO))
    a.s("s_lshl_b32", sT4, sT2, 8)
    a.s("s_add_u32", sT4, sT4, sLAY)
    a.s("s_add_u32", sT4, sT4, hex(ML))
    mlp = "v[6:7]"

    def loadsO():
        a.bload(2, mlp, vT[4], S_WS, sT4, 0, "sc1")
        for c in range(32):
            if c % 8 == 0:
                a.s("s_add_u32", sT0, sT3, (c // 8) * 4096)
            a.bload(1, vr(GO[c]), vT[3], S_WS, sT0, (c % 8) * 512, "sc1")
    poll(a, loadsO, [vr(r) for r in GO] + ["v6", "v7"])
    mx, t2 = vT[0], vT[1]
    a.v("v_mov_b32", mx, vM)
    row_allreduce(a, "v_max_f32", [mx])
    a.v("v_mov_b32", t2, mx)
    a.v("v_permlane16_swap_b32", mx, t2)
    a.v("v_max_f32", mx, mx, t2)
    a.v("v_sub_f32", vM, vM, mx)
    a.v("v_mul_f32", vM, sLOG2E, vM)
    a.v("v_exp_f32", vM, vM)
    a.v("v_mul_f32", vL, vL, vM)
    row_allreduce(a, "v_add_f32", [vL])
    a.v("v_mov_b32", t2, vL)
    a.v("v_permlane16_swap_b32", vL, t2)
    a.v("v_add_f32", vL, vL, t2)
    a.v("v_rcp_f32", vL, vL)
    a.v("v_mul_f32", vM, vM, vL)
    for c in range(32):
        a.v("v_readlane_b32", sr(SW0 + c), vM, c)
    o0, o1 = vT[0], vT[1]
    a.v("v_mul_f32", o0, sr(SW0 + 0), vr(GO[0]))
    a.v("v_mul_f32", o1, sr(SW0 + 1), vr(GO[1]))
    for c in range(2, 32, 2):
        a.v("v_fmac_f32", o0, sr(SW0 + c), vr(GO[c]))
        a.v("v_fmac_f32", o1, sr(SW0 + c + 1), vr(GO[c + 1]))
    a.v("v_add_f32", o0, o0, o1)
    round_one(a, o0, vT[2])
    a.v("v_and_b32", vT[3], 0x3c, vTID)
    for i in range(4):
        a.v("v_add_u32", vT[4 + i], 64 * i, vT[3])
    for i in range(4):
        a.ds_bpermute(vr(8 + i), vT[4 + i], o0)
    unpack(a, RAW_O, 16, UU)
    a.wait(lgkm=0)
    acc = RAW_O
    for k in range(8):
        a.v("v_mul_f32", vr(acc + k), vr(8), vr(UU + k))
    for i in range(1, 4):
        for k in range(8):
            a.v("v_fmac_f32", vr(acc + k), vr(8 + i), vr(UU + 8 * i + k))
    for ctrl in ("row_ror:4", "row_ror:8"):
        for k in range(8):
            a.dpp("v_add_f32", vr(acc + k), vr(acc + k), vr(acc + k), ctrl=ctrl)
    a.v("v_lshrrev_b32", vT[3], 4, vTID)
    a.v("v_lshlrev_b32", vT[3], 7, vT[3])
    a.v("v_and_b32", vT[4], 3, vTID)
    a.v("v_lshl_add_u32", vT[3], vT[4], 5, vT[3])
    set_exec(a, 0x000f000f, 0x000f000f)
    a.ds_write(4, vT[3], vr(acc, 4), sc + SC_GO)
    a.ds_write(4, vT[3], vr(acc + 4, 4), sc + SC_GO + 16)
    exec_all(a)
    a.wait(lgkm=0)
    a.barrier()
    a.s("s_cmp_lg_u32", sWV, 0)
    a.s("s_cbranch_scc1", "L_skipO")
    a.v("v_and_b32", vT[3], 31, vTID)
    a.v("v_lshlrev_b32", vT[3], 2, vT[3])
    lds_sum16(a, vT[3], sc + SC_GO, 128, [vr(8 + i) for i in range(16)], vT[0])
    a.v("v_min_u32", vT[0], SENT_FIX, vT[0])
    a.s("s_lshr_b32", sT0, sWR, 4)
    a.s("s_lshl_b32", sT0, sT0, 11)
    a.s("s_and_b32", sT1, sWR, 15)
    a.s("s_lshl_b32", sT1, sT1, 7)
    a.s("s_add_u32", sT0, sT0, sT1)
    a.s("s_add_u32", sT0, sT0, sLAY)
    a.s("s_add_u32", sT0, sT0, hex(YP))
    set_exec(a, 0xffffffff, 0)
    a.bstore(1, vT[0], vT[3], S_WS, sT0, 0, "sc1")
    exec_all(a)
    a.label("L_skipO")

    stamp(a, 4)
    unpack(a, RAW_G, 16, UU)
    gather16_add_x(a, YP, SC_X1)
    a.s("s_cmp_ge_u32", sWR, 224)
    a.s("s_cbranch_scc1", "L_skipG")
    a.wait(lgkm=0)
    a.barrier()
    g_block(a, sT2, sT3)
    a.v("v_bfe_u32", vT[5], vTID, 3, 3)
    a.v("v_lshlrev_b32", vT[5], 2, vT[5])
    a.s("s_lshl_b32", sT0, sT2, 2)
    a.s("s_add_u32", sT0, sT0, sWV)
    a.s("s_lshl_b32", sT0, sT0, 6)
    a.v("v_add_u32", vT[5], sT0, vT[5])
    A = [vr(16), vr(17)]
    ln_from_lds(a, SC_X1, vT[5], [0, 32], A, 8)
    ag, au = 32, 40
    for k in range(8):
        a.v("v_mul_f32", vr(ag + k), A[0], vr(UU + k))
        a.v("v_mul_f32", vr(au + k), A[0], vr(UU + 16 + k))
    for k in range(8):
        a.v("v_fmac_f32", vr(ag + k), A[1], vr(UU + 8 + k))
        a.v("v_fmac_f32", vr(au + k), A[1], vr(UU + 24 + k))
    reduce8(a, [ag, au], 8)
    red_addr(a, vT[5], 8, 512, vT[6])
    set_exec(a, 0x00ff00ff, 0x00ff00ff)
    a.ds_write(2, vT[5], vr(ag, 2), SC_RG)
    a.ds_write(2, vT[5], vr(au, 2), SC_RG + 256)
    exec_all(a)
    a.wait(lgkm=0)
    a.barrier()
    a.s("s_cmp_ge_u32", sWV, 2)
    a.s("s_cbranch_scc1", "L_skipG")
    a.v("v_lshlrev_b32", vT[5], 2, vTID)
    sum4_lds(a, vT[5], SC_RG, 512, [vr(8 + i) for i in range(4)], vT[0])
    a.v("v_min_u32", vT[0], SENT_FIX, vT[0])
    a.v("v_and_b32", vT[5], 63, vTID)
    a.v("v_lshlrev_b32", vT[5], 2, vT[5])
    a.s("s_mul_i32", sT0, sT2, 14336)
    a.s("s_mul_i32", sT1, sWV, 7168)
    a.s("s_add_u32", sT0, sT0, sT1)
    a.s("s_lshl_b32", sT1, sT3, 8)
    a.s("s_add_u32", sT0, sT0, sT1)
    a.s("s_add_u32", sT0, sT0, sLAY)
    a.s("s_add_u32", sT0, sT0, hex(GP))
    a.bstore(1, vT[0], vT[5], S_WS, sT0, 0, "sc1")
    a.label("L_skipG")

    stamp(a, 5)
    unpack(a, RAW_D, 8, UU)
    a.v("v_and_b32", vT[4], 31, vTID)
    a.v("v_min_u32", vT[3], 27, vT[4])
    a.v("v_lshlrev_b32", vT[3], 2, vT[3])
    a.v("v_bfe_u32", vT[5], vTID, 5, 1)
    a.s("s_mov_b32", sT4, 7168)
    a.v("v_mul_lo_u32", vT[5], vT[5], sT4)
    a.v("v_add_u32", vT[3], vT[3], vT[5])
    a.s("s_lshr_b32", sT3, sWR, 4)
    a.s("s_lshl_b32", sT3, sT3, 2)
    a.s("s_add_u32", sT3, sT3, sWV)
    a.s("s_mul_i32", sT3, sT3, 112)
    a.s("s_add_u32", sT3, sT3, sLAY)
    a.s("s_add_u32", sT3, sT3, hex(GP))

    def loadsD():
        for p in range(8):
            a.s("s_add_u32", sT0, sT3, p * 14336)
            a.bload(1, vr(8 + p), vT[3], S_WS, sT0, 0, "sc1")
    poll(a, loadsD, [vr(8 + i) for i in range(8)])
    for n in (4, 2, 1):
        for i in range(n):
            a.v("v_add_f32", vr(8 + i), vr(8 + i), vr(8 + i + n))
    g_, u_ = vr(8), vr(9)
    round_one(a, g_, vT[0])
    a.v("v_mov_b32", u_, g_)
    a.v("v_permlane32_swap_b32", g_, u_)
    a.v("v_cmp_lt_f32", "vcc", 0, g_)
    a.v("v_cndmask_b32", vT[0], 0, "1.0", "vcc")
    a.v("v_mul_f32", g_, g_, vT[0])
    a.v("v_mul_f32", g_, g_, u_)
    round_one(a, g_, vT[0])
    a.v("v_cmp_gt_u32", "vcc", 28, vT[4])
    a.v("v_cndmask_b32", g_, 0, g_, "vcc")
    a.v("v_and_b32", vT[3], 0x3c, vTID)
    a.v("v_add_u32", vT[5], 64, vT[3])
    a.ds_bpermute(vr(10), vT[3], g_)
    a.ds_bpermute(vr(11), vT[5], g_)
    a.wait(lgkm=0)
    acc = 32
    for k in range(8):
        a.v("v_mul_f32", vr(acc + k), vr(10), vr(UU + k))
    for k in range(8):
        a.v("v_fmac_f32", vr(acc + k), vr(11), vr(UU + 8 + k))
    reduce8(a, [acc], 4)
    red_addr(a, vT[5], 4, 128, vT[6])
    set_exec(a, 0x000f000f, 0x000f000f)
    a.ds_write(2, vT[5], vr(acc, 2), SC_RD)
    exec_all(a)
    a.wait(lgkm=0)
    a.barrier()
    a.s("s_cmp_lg_u32", sWV, 0)
    a.s("s_cbranch_scc1", "L_skipD")
    a.v("v_and_b32", vT[5], 31, vTID)
    a.v("v_lshlrev_b32", vT[5], 2, vT[5])
    sum4_lds(a, vT[5], SC_RD, 128, [vr(8 + i) for i in range(4)], vT[0])
    a.v("v_min_u32", vT[0], SENT_FIX, vT[0])
    a.s("s_lshr_b32", sT0, sWR, 4)
    a.s("s_lshl_b32", sT0, sT0, 11)
    a.s("s_and_b32", sT1, sWR, 15)
    a.s("s_lshl_b32", sT1, sT1, 7)
    a.s("s_add_u32", sT0, sT0, sT1)
    a.s("s_add_u32", sT0, sT0, sLAY)
    a.s("s_add_u32", sT0, sT0, hex(DPP))
    set_exec(a, 0xffffffff, 0)
    a.bstore(1, vT[0], vT[5], S_WS, sT0, 0, "sc1")
    exec_all(a)
    a.label("L_skipD")
    stamp(a, 6)
    a.s("s_mul_i32", sT0, sWG, sLAYER)
    a.s("s_cmp_lg_u32", sT0, 0)
    a.s("s_cbranch_scc1", "L_end")

    unpack(a, RAW_Q, 16, UU)
    gather16_add_x(a, DPP, SC_X2)
    a.s("s_cmp_eq_u32", sLAYER, 0)
    a.s("s_cbranch_scc1", "L_stQ")
    a.v("v_cvt_pk_bf16_f32", vT[0], vX0, vX1)
    a.v("v_lshlrev_b32", vT[3], 2, vTID)
    a.bstore(1, vT[0], vT[3], S_OUT, 0, 0)
    stamp(a, 7)
    a.s("s_branch", "L_end")
    a.label("L_stQ")
    a.wait(lgkm=0)
    a.barrier()
    q_gemv(a, SC_X2, hex(LSTR + QP), "L_skipQ")
    stamp(a, 7)
    a.s("s_mov_b32", sLAYER, 1)
    a.s("s_mov_b32", sLAY, hex(LSTR))
    a.s("s_mov_b32", sRLB, sKVB)
    a.s("s_lshr_b32", sT2, sWG, 5)
    a.s("s_lshl_b32", sT2, sT2, 11)
    a.s("s_add_u32", sQB, sT2, hex(LSTR + QP))
    poll(a, lambda: q_gather_issue(a), [vr(QG + i) for i in range(32)])
    q_gather_sum(a)
    a.s("s_branch", "L_pass")
    a.label("L_end", pad=False)
    a.raw("  s_endpgm")
    return a.text()


def gen_init():
    a = Asm()
    kn = "init_kernel"
    a.raw(f".globl {kn}\n.p2align 8\n.type {kn},@function\n{kn}:")
    prologue_common(a, "L_iend")
    load_x(a)
    issue_wQ(a, RAW_Q)
    for i in range(4):
        a.v("v_mov_b32", vr(8 + i), -1)
    a.v("v_lshlrev_b32", vT[4], 4, vTID)
    a.s("s_mul_i32", sT0, sWG, 3072)
    a.s("s_add_u32", sT1, sT0, hex(LSTR))
    a.s("s_cmp_ge_u32", sWV, 3)
    a.s("s_cbranch_scc1", "L_iskip")
    a.bstore(4, "v[8:11]", vT[4], S_WS, sT0, 0)
    a.bstore(4, "v[8:11]", vT[4], S_WS, sT1, 0)
    a.label("L_iskip")
    a.wait(vm=0)
    unpack_x(a)
    unpack(a, RAW_Q, 16, UU)
    a.v("v_lshlrev_b32", vT[3], 3, vTID)
    a.ds_write(2, vT[3], "v[4:5]", SC_X2)
    a.wait(lgkm=0)
    a.barrier()
    q_gemv(a, SC_X2, hex(Q0), "L_iskipQ")
    a.label("L_iend", pad=False)
    a.raw("  s_endpgm")
    return a.text()


def kd(name, nv, acc):
    return f""".amdhsa_kernel {name}
  .amdhsa_next_free_vgpr {nv}
  .amdhsa_next_free_sgpr 102
  .amdhsa_accum_offset {acc}
  .amdhsa_group_segment_fixed_size 0
  .amdhsa_kernarg_size 96
  .amdhsa_user_sgpr_count 2
  .amdhsa_user_sgpr_kernarg_segment_ptr 1
  .amdhsa_system_sgpr_workgroup_id_x 1
.end_amdhsa_kernel
"""


def main():
    ref = open(f"cdna_kernels/{NAME}.s.ref").read()
    head = []
    for line in ref.splitlines():
        if line.startswith("; @launch"):
            break
        head.append(line)
    out = "\n".join(head) + "\n"
    if SINGLE:
        out += "; @launch grid=(256,1,1) block=(256,1,1) lds=163840\n"
    else:
        out += f"; @launch kernel=init_kernel grid=(256,1,1) block=(256,1,1) lds={SC_END}\n"
        out += "; @launch kernel=main_kernel grid=(256,1,1) block=(256,1,1) lds=163840\n"
    out += '.amdgcn_target "amdgcn-amd-amdhsa--gfx950"\n.text\n'
    if not SINGLE:
        out += gen_init()
    out += gen_main()
    out += '.section .rodata,"a"\n.p2align 6\n'
    if not SINGLE:
        out += kd("init_kernel", 128, 128)
        out += ".p2align 6\n"
    out += kd(NAME + "_kernel" if SINGLE else "main_kernel", 512, 256)
    dst = sys.argv[1] if len(sys.argv) > 1 else f"cdna_kernels/{NAME}.s"
    open(dst, "w").write(out)
    print("wrote", dst, len(out), "bytes")


if __name__ == "__main__":
    main()
```

```python
import sys
from asmlib import *

NAME = "interleave_layers__gqa_block_cached__glu_gated_reglu__decode"
EMU_ROUND = True
import os
STAMPS = int(os.environ.get("STAMPS", "0"))
SINGLE = bool(int(os.environ.get("SINGLE", "1")))
SG = int(os.environ.get("SG", "16"))

LSTR = 0x100000
QP, DPP, YP, GP, ML, PO, ZONE = 0x0, 0x10000, 0x18000, 0x20000, 0x3C000, 0x40000, 0xC0000
Q0 = 0x200000
WS_BYTES = 0x300000

SC_O = 0
SC_ML = 8192
SC_GO = 9216
SC_X1 = 11264
SC_X2 = 13312
SC_RG = 15360
SC_RD = 17408
SC_RQ = 17920
SC_Q = 18944
SC_QF = 19968
SC_END = 20224

S_K, S_V, S_WQ, S_WO, S_WG, S_WU, S_WD, S_WS, S_X, S_OUT = [sr(8 + 4 * i, 4) for i in range(10)]
sWG, sWV = "s2", "s3"
sLAYER, sKVB, sRLB, sT0, sT1, sLAY, sQB, sTO = "s48", "s49", "s50", "s51", "s52", "s53", "s54", "s55"
sC, sLOG2E, sSELLO, sSELHI, sT2, sLDSW, sT3, sT4 = "s56", "s57", "s58", "s59", "s60", "s61", "s62", "s63"
SW0 = 64
S_DBG = sr(88, 4)
sWR, sWRG = "s4", "s5"

vTID, vKOFF, vVOFF, vLDS = "v0", "v1", "v2", "v3"
vX0, vX1 = "v4", "v5"
vM, vL = "v6", "v7"
VQ = 8
VP = 12
VPB = (16, 20)
vT = [f"v{24+i}" for i in range(8)]
VO = 32
VD = 64
VTMP = 96
VV = 128

RAW_O, RAW_G, RAW_Q, RAW_D = 32, 48, 64, 80
UU = 96
GATH = list(range(8, 24)) + list(range(32, 48))

C_SCALE = 0x3DB504F3
LOG2E = 0x3FB8AA3B
SENT_FIX = "0xfffffffe"


def f32bits(x):
    import struct
    return struct.unpack("<I", struct.pack("<f", x))[0]


assert f32bits(128 ** -0.5) == C_SCALE, hex(f32bits(128 ** -0.5))


def set_exec(a, lo, hi):
    a.s("s_mov_b32", "exec_lo", hex(lo))
    a.s("s_mov_b32", "exec_hi", hex(hi))


def exec_all(a):
    a.s("s_mov_b64", "exec", "-1")


def round_pair(a, x0, x1, tmp):
    a.v("v_cvt_pk_bf16_f32", tmp, x0, x1)
    a.v("v_lshlrev_b32", x0, 16, tmp)
    a.v("v_and_b32", x1, "0xffff0000", tmp)


def round_one(a, x0, tmp):
    a.v("v_cvt_pk_bf16_f32", tmp, x0, x0)
    a.v("v_lshlrev_b32", x0, 16, tmp)


def row_allreduce(a, op, regs):
    for ctrl in ("quad_perm:[1,0,3,2]", "quad_perm:[2,3,0,1]", "row_half_mirror", "row_mirror"):
        for r in regs:
            a.dpp(op, r, r, r, ctrl=ctrl)


def prologue_common(a, lbl_end):
    a.s("s_cmp_ge_u32", sWG, 256)
    a.s("s_cbranch_scc1", lbl_end)
    a.raw("  s_load_dwordx16 s[64:79], s[0:1], 0")
    a.raw("  s_load_dwordx8 s[80:87], s[0:1], 64")
    a.v("v_lshrrev_b32", vT[0], 6, vTID)
    a.v("v_readfirstlane_b32", sWV, vT[0])
    a.raw("  s_waitcnt lgkmcnt(0)")
    srds = [(8, 66, 0x8000000), (12, 68, 0x8000000), (16, 70, 0x400000), (20, 72, 0x400000),
            (24, 76, 512 * 1792 * 2), (28, 78, 512 * 1792 * 2), (32, 80, 1792 * 512 * 2),
            (36, 86, WS_BYTES), (40, 64, 1024), (44, 82, 1024), (88, 84, 256)] + ([(96, 84, 256)] if STAMPS == 2 else [])
    for d, p, n in srds:
        a.s("s_mov_b32", sr(d), sr(p))
        a.s("s_and_b32", sr(d + 1), sr(p + 1), "0xffff")
        a.s("s_mov_b32", sr(d + 2), hex(n))
        a.s("s_mov_b32", sr(d + 3), "0x00020000")
    a.s("s_mov_b32", sC, hex(C_SCALE))
    a.s("s_mov_b32", sLOG2E, hex(LOG2E))
    a.s("s_mov_b32", sSELLO, "0x05040100")
    a.s("s_mov_b32", sSELHI, "0x07060302")
    a.s("s_mov_b32", sTO, hex(1 << 18))
    a.s("s_and_b32", sT0, sWG, 7)
    a.s("s_lshr_b32", sT1, sWG, 3)
    a.s("s_lshl_b32", sWR, sT0, 5)
    a.s("s_add_u32", sWR, sWR, sT1)
    a.s("s_mul_i32", sWRG, sT0, 28)
    a.s("s_add_u32", sWRG, sWRG, sT1)
    l = vT[0]
    a.v("v_and_b32", l, 63, vTID)
    a.v("v_lshlrev_b32", vVOFF, 4, l)
    a.v("v_bfe_u32", vT[1], l, 2, 2)
    a.v("v_lshlrev_b32", vKOFF, 8, vT[1])
    a.v("v_lshrrev_b32", vT[2], 4, l)
    a.v("v_lshl_add_u32", vKOFF, vT[2], 6, vKOFF)
    a.v("v_and_b32", vT[3], 3, l)
    a.v("v_lshl_add_u32", vKOFF, vT[3], 4, vKOFF)
    a.s("s_lshl_b32", sLDSW, sWV, 15)
    a.s("s_add_u32", sLDSW, sLDSW, 32768)
    a.v("v_add_u32", vLDS, sLDSW, vVOFF)


def load_x(a):
    a.v("v_lshlrev_b32", vT[4], 2, vTID)
    a.bload(1, vX0, vT[4], S_X, 0)


def unpack_x(a):
    a.v("v_and_b32", vX1, "0xffff0000", vX0)
    a.v("v_lshlrev_b32", vX0, 16, vX0)


def lane_voff(a, dst, sh_c, rowbytes, tmp):
    a.v("v_and_b32", tmp, 63, vTID)
    a.v("v_lshrrev_b32", dst, sh_c, tmp)
    a.s("s_mov_b32", sT4, rowbytes)
    a.v("v_mul_lo_u32", dst, dst, sT4)
    a.v("v_and_b32", tmp, (1 << sh_c) - 1, tmp)
    a.v("v_lshl_add_u32", dst, tmp, 4, dst)


def g_block(a, rb, cb):
    a.s("s_mul_i32", rb, sWR, 2341)
    a.s("s_lshr_b32", rb, rb, 16)
    a.s("s_mul_i32", cb, rb, 28)
    a.s("s_sub_u32", cb, sWR, cb)


def issue_wQ(a, raw):
    lane_voff(a, vT[5], 3, 8192, vT[6])
    a.s("s_lshr_b32", sT0, sWR, 6)
    a.s("s_lshl_b32", sT0, sT0, 20)
    a.s("s_lshl_b32", sT1, sWV, 18)
    a.s("s_add_u32", sT0, sT0, sT1)
    a.s("s_and_b32", sT1, sWR, 63)
    a.s("s_lshl_b32", sT1, sT1, 7)
    a.s("s_add_u32", sT0, sT0, sT1)
    for i in range(4):
        a.bload(4, vr(raw + 4 * i, 4), vT[5], S_WQ, sT0, 0)
        if i < 3:
            a.s("s_add_u32", sT0, sT0, 65536)


def issue_wG(a, raw):
    lane_voff(a, vT[5], 3, 3584, vT[6])
    g_block(a, sT2, sT3)
    a.s("s_lshl_b32", sT0, sT2, 2)
    a.s("s_add_u32", sT0, sT0, sWV)
    a.s("s_mul_i32", sT0, sT0, 16 * 3584)
    a.s("s_lshl_b32", sT1, sT3, 7)
    a.s("s_add_u32", sT0, sT0, sT1)
    a.s("s_add_u32", sT1, sT0, 8 * 3584)
    a.bload(4, vr(raw + 0, 4), vT[5], S_WG, sT0, 0)
    a.bload(4, vr(raw + 4, 4), vT[5], S_WG, sT1, 0)
    a.bload(4, vr(raw + 8, 4), vT[5], S_WU, sT0, 0)
    a.bload(4, vr(raw + 12, 4), vT[5], S_WU, sT1, 0)


def issue_wD(a, raw):
    lane_voff(a, vT[5], 2, 1024, vT[6])
    a.s("s_lshr_b32", sT0, sWR, 4)
    a.s("s_lshl_b32", sT0, sT0, 2)
    a.s("s_add_u32", sT0, sT0, sWV)
    a.s("s_mul_i32", sT0, sT0, 28 * 1024)
    a.s("s_and_b32", sT1, sWR, 15)
    a.s("s_lshl_b32", sT1, sT1, 6)
    a.s("s_add_u32", sT0, sT0, sT1)
    a.s("s_add_u32", sT1, sT0, 16384)
    a.bload(4, vr(raw + 0, 4), vT[5], S_WD, sT0, 0)
    a.bload(4, vr(raw + 4, 4), vT[5], S_WD, sT1, 0)


def issue_wO(a, raw):
    lane_voff(a, vT[5], 2, 1024, vT[6])
    a.s("s_lshr_b32", sT0, sWR, 4)
    a.s("s_lshl_b32", sT0, sT0, 18)
    a.s("s_lshl_b32", sT1, sWV, 16)
    a.s("s_add_u32", sT0, sT0, sT1)
    a.s("s_and_b32", sT1, sWR, 15)
    a.s("s_lshl_b32", sT1, sT1, 6)
    a.s("s_add_u32", sT0, sT0, sT1)
    for i in range(4):
        a.bload(4, vr(raw + 4 * i, 4), vT[5], S_WO, sT0, 0)
        if i < 3:
            a.s("s_add_u32", sT0, sT0, 16384)


def unpack(a, raw, n, dst):
    for i in range(n):
        a.v("v_lshlrev_b32", vr(dst + 2 * i), 16, vr(raw + i))
        a.v("v_and_b32", vr(dst + 2 * i + 1), "0xffff0000", vr(raw + i))


def lds_sum16(a, addr, base, stride, regs, out):
    for p in range(16):
        a.ds_read(1, regs[p], addr, base + p * stride)
    a.wait(lgkm=0)
    n = 16
    while n > 1:
        for i in range(n // 2):
            a.v("v_add_f32", regs[i], regs[i], regs[i + n // 2])
        n //= 2
    if out != regs[0]:
        a.v("v_mov_b32", out, regs[0])


def wave_allreduce_add(a, x, t):
    row_allreduce(a, "v_add_f32", [x])
    a.v("v_mov_b32", t, x)
    a.v("v_permlane32_swap_b32", x, t)
    a.v("v_add_f32", x, x, t)
    a.v("v_mov_b32", t, x)
    a.v("v_permlane16_swap_b32", x, t)
    a.v("v_add_f32", x, x, t)


def ln_from_lds(a, scx, vrows, offs, outs, tq):
    s, mean, t, tmp, la = vT[0], vT[1], vT[2], vT[3], vT[4]
    a.v("v_and_b32", la, 63, vTID)
    a.v("v_lshlrev_b32", la, 5, la)
    a.ds_read(4, vr(tq, 4), la, scx)
    a.ds_read(4, vr(tq + 4, 4), la, scx + 16)
    for o, off in zip(outs, offs):
        a.ds_read(1, o, vrows, scx + off)
    a.wait(lgkm=len(outs))
    X = [vr(tq + k) for k in range(8)]
    a.v("v_add_f32", s, X[0], X[1])
    a.v("v_add_f32", t, X[2], X[3])
    a.v("v_add_f32", s, s, X[4])
    a.v("v_add_f32", t, t, X[5])
    a.v("v_add_f32", s, s, X[6])
    a.v("v_add_f32", t, t, X[7])
    a.v("v_add_f32", s, s, t)
    wave_allreduce_add(a, s, t)
    a.v("v_mul_f32", mean, hex(f32bits(1.0 / 512)), s)
    for k in range(8):
        a.v("v_sub_f32", X[k], X[k], mean)
    a.v("v_mul_f32", s, X[0], X[0])
    a.v("v_mul_f32", t, X[1], X[1])
    for k in range(2, 8, 2):
        a.v("v_fmac_f32", s, X[k], X[k])
        a.v("v_fmac_f32", t, X[k + 1], X[k + 1])
    a.v("v_add_f32", s, s, t)
    wave_allreduce_add(a, s, t)
    a.v("v_mul_f32", s, hex(f32bits(1.0 / 512)), s)
    round_pair(a, mean, s, tmp)
    a.v("v_add_f32", s, hex(f32bits(1e-5)), s)
    round_one(a, s, tmp)
    a.v("v_sqrt_f32", s, s)
    round_one(a, s, tmp)
    a.v("v_rcp_f32", s, s)
    a.wait(lgkm=0)
    for i in range(0, len(outs), 2):
        a0, a1 = outs[i], outs[i + 1]
        a.v("v_sub_f32", a0, a0, mean)
        a.v("v_sub_f32", a1, a1, mean)
        round_pair(a, a0, a1, tmp)
        a.v("v_mul_f32", a0, a0, s)
        a.v("v_mul_f32", a1, a1, s)
        round_pair(a, a0, a1, tmp)


def reduce8(a, accs, nc):
    for b in accs:
        for k in range(4):
            a.v("v_permlane32_swap_b32", vr(b + k), vr(b + k + 4))
    for b in accs:
        for k in range(4):
            a.v("v_add_f32", vr(b + k), vr(b + k), vr(b + k + 4))
    for b in accs:
        a.v("v_permlane16_swap_b32", vr(b + 0), vr(b + 2))
        a.v("v_permlane16_swap_b32", vr(b + 1), vr(b + 3))
    for b in accs:
        a.v("v_add_f32", vr(b + 0), vr(b + 0), vr(b + 2))
        a.v("v_add_f32", vr(b + 1), vr(b + 1), vr(b + 3))
    steps = {8: ["row_ror:8"], 4: ["row_ror:4", "row_ror:8"]}[nc]
    for ctrl in steps:
        for b in accs:
            a.dpp("v_add_f32", vr(b), vr(b), vr(b), ctrl=ctrl)
            a.dpp("v_add_f32", vr(b + 1), vr(b + 1), vr(b + 1), ctrl=ctrl)


def red_addr(a, dst, nc, wvstride, tmp):
    a.v("v_and_b32", tmp, nc - 1, vTID)
    a.v("v_lshlrev_b32", dst, 5, tmp)
    a.v("v_bfe_u32", tmp, vTID, 4, 2)
    a.v("v_lshl_add_u32", dst, tmp, 3, dst)
    a.s("s_mul_i32", sT4, sWV, wvstride)
    a.v("v_add_u32", dst, sT4, dst)


def sum4_lds(a, addr, base, stride, regs, out):
    for p in range(4):
        a.ds_read(1, regs[p], addr, base + p * stride)
    a.wait(lgkm=0)
    a.v("v_add_f32", regs[0], regs[0], regs[1])
    a.v("v_add_f32", regs[2], regs[2], regs[3])
    a.v("v_add_f32", out, regs[0], regs[2])


def q_gemv(a, scx, base_s, lbl):
    a.v("v_bfe_u32", vT[5], vTID, 3, 3)
    a.v("v_lshlrev_b32", vT[5], 2, vT[5])
    a.s("s_lshr_b32", sT0, sWR, 6)
    a.s("s_lshl_b32", sT0, sT0, 9)
    a.s("s_lshl_b32", sT1, sWV, 7)
    a.s("s_add_u32", sT0, sT0, sT1)
    a.v("v_add_u32", vT[5], sT0, vT[5])
    A = [vr(16 + i) for i in range(4)]
    ln_from_lds(a, scx, vT[5], [32 * i for i in range(4)], A, 8)
    acc = 32
    for k in range(8):
        a.v("v_mul_f32", vr(acc + k), A[0], vr(UU + k))
    for i in range(1, 4):
        for k in range(8):
            a.v("v_fmac_f32", vr(acc + k), A[i], vr(UU + 8 * i + k))
    reduce8(a, [acc], 8)
    red_addr(a, vT[5], 8, 256, vT[6])
    set_exec(a, 0x00ff00ff, 0x00ff00ff)
    a.ds_write(2, vT[5], vr(acc, 2), SC_RQ)
    exec_all(a)
    a.wait(lgkm=0)
    a.barrier()
    a.s("s_cmp_lg_u32", sWV, 0)
    a.s("s_cbranch_scc1", lbl)
    a.v("v_lshlrev_b32", vT[5], 2, vTID)
    sum4_lds(a, vT[5], SC_RQ, 256, [vr(8 + i) for i in range(4)], vT[0])
    a.v("v_min_u32", vT[0], SENT_FIX, vT[0])
    a.s("s_lshr_b32", sT0, sWR, 6)
    a.s("s_lshl_b32", sT0, sT0, 14)
    a.s("s_and_b32", sT1, sWR, 63)
    a.s("s_lshl_b32", sT1, sT1, 8)
    a.s("s_add_u32", sT0, sT0, sT1)
    a.s("s_add_u32", sT0, sT0, base_s)
    a.bstore(1, vT[0], vT[5], S_WS, sT0, 0, "sc1")
    a.label(lbl)


QG = 64


def q_gather_issue(a):
    a.v("v_lshlrev_b32", vT[3], 1, vKOFF)
    for p in range(4):
        a.s("s_add_u32", sT0, sQB, p * 16384)
        a.bload(4, vr(QG + 8 * p, 4), vT[3], S_WS, sT0, 0, "sc1")
        a.bload(4, vr(QG + 8 * p + 4, 4), vT[3], S_WS, sT0, 16, "sc1")


def q_gather_sum(a):
    for k in range(8):
        a.v("v_add_f32", vr(QG + k), vr(QG + k), vr(QG + 8 + k))
        a.v("v_add_f32", vr(QG + 16 + k), vr(QG + 16 + k), vr(QG + 24 + k))
    for k in range(8):
        a.v("v_add_f32", vr(QG + k), vr(QG + k), vr(QG + 16 + k))
    for e in range(4):
        a.v("v_cvt_pk_bf16_f32", vr(VQ + e), vr(QG + 2 * e), vr(QG + 2 * e + 1))


def gather16_add_x(a, base_off, scx):
    a.v("v_lshlrev_b32", vT[3], 3, vTID)
    a.s("s_add_u32", sT3, sLAY, hex(base_off))

    def loads():
        for p in range(16):
            if p % 2 == 0:
                a.s("s_add_u32", sT0, sT3, (p // 2) * 4096)
            a.bload(2, vr(GATH[2 * p], 2), vT[3], S_WS, sT0, (p % 2) * 2048, "sc1")
    poll(a, loads, [vr(r) for r in GATH])
    n = 16
    while n > 1:
        for i in range(n // 2):
            for h in range(2):
                a.v("v_add_f32", vr(GATH[2 * i + h]), vr(GATH[2 * i + h]), vr(GATH[2 * (i + n // 2) + h]))
        n //= 2
    round_pair(a, vr(GATH[0]), vr(GATH[1]), vT[0])
    a.v("v_add_f32", vX0, vX0, vr(GATH[0]))
    a.v("v_add_f32", vX1, vX1, vr(GATH[1]))
    round_pair(a, vX0, vX1, vT[0])
    if scx is not None:
        a.ds_write(2, vT[3], "v[4:5]", scx)


_pollid = [0]


def stamp(a, idx, layered=True):
    if not STAMPS:
        return
    if STAMPS == 2:
        _pollid[0] += 1
        lb = f"L_st{_pollid[0]}"
        a.s("s_and_b32", "s100", sWG, 31)
        a.s("s_or_b32", "s100", "s100", sWV)
        a.s("s_cmp_lg_u32", "s100", 0)
        a.s("s_cbranch_scc1", lb)
        a.raw("  s_memrealtime s[100:101]")
        a.raw("  s_waitcnt lgkmcnt(0)")
        if idx == 0:
            a.s("s_not_b32", "s100", "s100")
        a.v("v_mov_b32", vT[7], "s100")
        a.s("s_lshl_b32", "s101", sLAYER, 5) if layered else a.s("s_mov_b32", "s101", 0)
        a.s("s_add_u32", "s101", "s101", 4 + 4 * idx)
        a.v("v_mov_b32", vT[6], 0)
        set_exec(a, 1, 0)
        a.raw(f"  buffer_atomic_umax {vT[7]}, {vT[6]}, s[96:99], s101 offen sc1")
        exec_all(a)
        a.label(lb)
        return
    a.raw("  s_memrealtime s[98:99]")
    a.s("s_lshl_b32", "s100", sWG, 2)
    a.s("s_add_u32", "s100", "s100", sWV)
    a.s("s_lshl_b32", "s100", "s100", 7)
    a.s("s_add_u32", "s100", "s100", hex(0x280000 + idx * 4))
    if layered:
        a.s("s_lshl_b32", "s101", sLAYER, 6)
        a.s("s_add_u32", "s100", "s100", "s101")
    a.raw("  s_waitcnt lgkmcnt(0)")
    a.v("v_mov_b32", vT[7], "s98")
    a.v("v_mov_b32", vT[6], 0)
    set_exec(a, 1, 0)
    a.bstore(1, vT[7], vT[6], S_WS, "s100", 0)
    exec_all(a)


def poll(a, issue_loads, regs):
    _pollid[0] += 1
    n = _pollid[0]
    a.label(f"L_poll{n}")
    issue_loads()
    a.wait(vm=0)
    sent_check(a, regs)
    a.s("s_cbranch_vccz", f"L_pdone{n}")
    a.s("s_sub_u32", sTO, sTO, 1)
    a.s("s_cmp_le_i32", sTO, 0)
    a.s("s_cbranch_scc1", f"L_pdone{n}")
    a.s("s_sleep", 1)
    a.s("s_branch", f"L_poll{n}")
    a.label(f"L_pdone{n}")


def sent_check(a, regs):
    acc = vT[7]
    rs = list(regs)
    a.v("v_max_u32", acc, rs[0], rs[1] if len(rs) > 1 else rs[0])
    rs = rs[2:]
    while rs:
        if len(rs) >= 2:
            a.v("v_max3_u32", acc, acc, rs[0], rs[1])
            rs = rs[2:]
        else:
            a.v("v_max_u32", acc, acc, rs[0])
            rs = rs[1:]
    a.v("v_cmp_eq_u32", "vcc", -1, acc)
    a.nop(1)


def slot_kreg(s, i):
    return ar(32 * s + 4 * i, 4)


def slot_vraw(s, i):
    if s < 4:
        return vr(VV + 32 * s + 4 * i, 4)
    return ar(192 + 32 * (s - 4) + 4 * i, 4)


def issue_slot(a, s, sbase, toff, guard=47):
    a.wait(vm=guard)
    a.s("s_add_u32", sT0, sbase, toff)
    a.s("s_add_u32", sT1, sbase, toff + 4096)
    if s < 6:
        for i in range(8):
            a.bload(4, slot_kreg(s, i), vKOFF, S_K, sT0 if i < 4 else sT1, (i % 4) * 1024, "nt")
        for i in range(8):
            a.bload(4, slot_vraw(s, i), vVOFF, S_V, sT0 if i < 4 else sT1, (i % 4) * 1024, "nt")
    else:
        for half, (srd, voff) in enumerate(((S_K, vKOFF), (S_V, vVOFF))):
            for hi in range(2):
                a.s("s_add_u32", "m0", sLDSW, (s - 6) * 16384 + half * 8192 + hi * 4096)
                for i in range(4):
                    a.bload_lds(voff, srd, sT0 if hi == 0 else sT1, i * 1024, "nt")


def tile(a, s):
    a.comment(f"---- tile slot {s}")
    lds = s >= 6
    if lds:
        for i in range(8):
            a.ds_read(4, vr(VTMP + 4 * i, 4), vLDS, (s - 6) * 16384 + i * 1024)
        a.wait(lgkm=0)
        kf = lambda i: vr(VTMP + 4 * i, 4)
    else:
        kf = lambda i: slot_kreg(s, i)
    for i in range(8):
        a.mfma(vr(VD + 4 * i, 4), kf(i), vr(VQ, 4), 0)
    if lds:
        for i in range(8):
            a.ds_read(4, vr(VTMP + 4 * i, 4), vLDS, (s - 6) * 16384 + 8192 + i * 1024)
        vsrc = lambda i, d: vr(VTMP + 4 * i + d)
    elif s >= 4:
        for i in range(32):
            a.v("v_accvgpr_read_b32", vr(VTMP + i), ar(192 + 32 * (s - 4) + i))
        vsrc = lambda i, d: vr(VTMP + 4 * i + d)
    else:
        vsrc = lambda i, d: vr(VV + 32 * s + 4 * i + d)

    def perms(m):
        d = m // 2
        sel = sSELLO if m % 2 == 0 else sSELHI
        b = VPB[m % 2]
        for e in range(4):
            a.v("v_perm_b32", vr(b + e), vsrc(2 * e + 1, d), vsrc(2 * e, d), sel)

    if not lds:
        perms(0)
        perms(1)
    S = [vr(VD + 4 * i) for i in range(8)]
    for i in range(8):
        a.dpp("v_mov_b32", S[i], S[i], ctrl="quad_perm:[0,0,0,0]")
    for r in (1, 2, 3):
        for i in range(8):
            a.dpp("v_add_f32", S[i], vr(VD + 4 * i + r), S[i], ctrl=f"quad_perm:[{r},{r},{r},{r}]")
    if EMU_ROUND:
        for i in range(0, 8, 2):
            round_pair(a, S[i], S[i + 1], vr(VD + 4 * i + 1))
        for i in range(8):
            a.v("v_mul_f32", S[i], sC, S[i])
        for i in range(0, 8, 2):
            round_pair(a, S[i], S[i + 1], vr(VD + 4 * i + 1))
    else:
        for i in range(8):
            a.v("v_mul_f32", S[i], sC, S[i])
    tm, t2, alpha, mneg, ps = vT[0], vT[1], vT[2], vT[3], vT[4]
    a.v("v_max3_f32", tm, S[0], S[1], S[2])
    a.v("v_max3_f32", t2, S[3], S[4], S[5])
    a.v("v_max3_f32", tm, tm, S[6], S[7])
    a.v("v_max3_f32", tm, tm, t2, vM)
    a.v("v_mov_b32", t2, tm)
    a.v("v_permlane32_swap_b32", tm, t2)
    a.v("v_max_f32", tm, tm, t2)
    a.v("v_mov_b32", t2, tm)
    a.v("v_permlane16_swap_b32", tm, t2)
    a.v("v_max_f32", tm, tm, t2)
    a.v("v_sub_f32", alpha, vM, tm)
    a.v("v_mul_f32", alpha, sLOG2E, alpha)
    a.v("v_exp_f32", alpha, alpha)
    a.v("v_mov_b32", vM, tm)
    a.v("v_mul_f32", mneg, sLOG2E, tm)
    for i in range(8):
        a.v("v_fma_f32", S[i], S[i], sLOG2E, "-" + mneg)
    for i in range(8):
        a.v("v_exp_f32", S[i], S[i])
    for i in range(32):
        a.v("v_mul_f32", vr(VO + i), alpha, vr(VO + i))
    a.v("v_mul_f32", vL, alpha, vL)
    a.v("v_add_f32", ps, S[0], S[1])
    a.v("v_add_f32", t2, S[2], S[3])
    a.v("v_add_f32", ps, ps, S[4])
    a.v("v_add_f32", t2, t2, S[5])
    a.v("v_add_f32", ps, ps, S[6])
    a.v("v_add_f32", t2, t2, S[7])
    a.v("v_add_f32", vL, vL, ps)
    a.v("v_add_f32", vL, vL, t2)
    for e in range(4):
        a.v("v_cvt_pk_bf16_f32", vr(VP + e), S[2 * e], S[2 * e + 1])
    if lds:
        a.wait(lgkm=0)
        perms(0)
        perms(1)
    for m in range(8):
        a.mfma(vr(VO + 4 * m, 4), vr(VPB[m % 2], 4), vr(VP, 4), vr(VO + 4 * m, 4))
        if m + 2 < 8:
            perms(m + 2)


def gen_main():
    a = Asm()
    sc = 0
    kn = NAME + "_kernel" if SINGLE else "main_kernel"
    a.raw(f".globl {kn}\n.p2align 8\n.type {kn},@function\n{kn}:")
    prologue_common(a, "L_end")
    stamp(a, 0, False)
    load_x(a)
    a.s("s_lshr_b32", sT2, sWG, 5)
    a.s("s_lshl_b32", sT2, sT2, 11)
    a.s("s_add_u32", sQB, sT2, hex(Q0))
    a.s("s_lshl_b32", sKVB, sWG, 19)
    a.s("s_lshl_b32", sT2, sWV, 13)
    a.s("s_add_u32", sKVB, sKVB, sT2)
    a.s("s_add_u32", sRLB, sKVB, 8 * 32768)
    a.s("s_mov_b32", sLAYER, 0)
    a.s("s_mov_b32", sLAY, 0)
    if not SINGLE:
        q_gather_issue(a)
        for s in range(8):
            issue_slot(a, s, sKVB, s * 32768)
        unpack_x(a)
        q_gather_sum(a)
    else:
        issue_wQ(a, RAW_Q)
        for i in range(4):
            a.v("v_mov_b32", vr(8 + i), -1)
        a.v("v_mov_b32", vr(12), 0)
        a.v("v_lshlrev_b32", vT[4], 4, vTID)
        a.s("s_mul_i32", sT0, sWG, 3072)
        a.s("s_add_u32", sT1, sT0, hex(LSTR))
        a.s("s_cmp_ge_u32", sWV, 3)
        a.s("s_cbranch_scc1", "L_clr_done")
        a.bstore(4, "v[8:11]", vT[4], S_WS, sT0, 0, "sc1")
        a.bstore(4, "v[8:11]", vT[4], S_WS, sT1, 0, "sc1")
        a.s("s_cmp_lg_u32", sWV, 0)
        a.s("s_cbranch_scc1", "L_clr_done")
        a.v("v_lshlrev_b32", vT[4], 2, vTID)
        a.s("s_lshr_b32", sT0, sWR, 6)
        a.s("s_lshl_b32", sT0, sT0, 14)
        a.s("s_and_b32", sT1, sWR, 63)
        a.s("s_lshl_b32", sT1, sT1, 8)
        a.s("s_add_u32", sT0, sT0, sT1)
        a.s("s_add_u32", sT0, sT0, hex(Q0))
        a.bstore(1, vr(8), vT[4], S_WS, sT0, 0, "sc1")
        a.ds_write(1, vr(12), vr(12), SC_QF)
        a.label("L_clr_done")
        for s in range(2):
            issue_slot(a, s, sKVB, s * 32768)
        a.wait(vm=32)
        unpack_x(a)
        unpack(a, RAW_Q, 16, UU)
        a.v("v_lshlrev_b32", vT[3], 3, vTID)
        a.ds_write(2, vT[3], "v[4:5]", SC_X2)
        a.wait(lgkm=0)
        a.barrier()
        a.s("s_cmp_lg_u32", sWV, 0)
        a.s("s_cbranch_scc1", "L_noat")
        a.v("v_mov_b32", vT[4], 1)
        set_exec(a, 1, 0)
        a.batomic_add(vT[4], vr(12), S_DBG, 0, "sc1")
        exec_all(a)
        a.label("L_noat")
        q_gemv(a, SC_X2, hex(Q0), "L_skipQ0")
        a.s("s_cmp_lg_u32", sWV, 0)
        a.s("s_cbranch_scc1", "L_w123")
        a.v("v_mov_b32", vT[4], 0)
        a.label("L_cnt")
        a.bload(1, vT[0], vT[4], S_DBG, 0, 0, "sc1")
        a.wait(vm=0)
        a.v("v_readfirstlane_b32", sT0, vT[0])
        a.s("s_cmp_ge_u32", sT0, 256)
        a.s("s_cbranch_scc1", "L_cntok")
        a.s("s_sub_u32", sTO, sTO, 1)
        a.s("s_cmp_le_i32", sTO, 0)
        a.s("s_cbranch_scc1", "L_cntok")
        a.s("s_sleep", 2)
        a.s("s_branch", "L_cnt")
        a.label("L_cntok")
        q_gather_issue(a)
        for s in range(2, 4):
            issue_slot(a, s, sKVB, s * 32768)
        a.wait(vm=32)
        sent_check(a, [vr(QG + i) for i in range(32)])
        a.s("s_cbranch_vccz", "L_qok")
        poll(a, lambda: q_gather_issue(a), [vr(QG + i) for i in range(32)])
        a.label("L_qok")
        q_gather_sum(a)
        a.v("v_mov_b32", vT[4], 1)
        a.v("v_mov_b32", vT[5], 0)
        a.ds_write(4, vVOFF, vr(VQ, 4), SC_Q)
        a.ds_write(1, vT[5], vT[4], SC_QF)
        for s in range(4, 8):
            issue_slot(a, s, sKVB, s * 32768)
        a.s("s_branch", "L_pass")
        a.label("L_w123")
        for s in range(2, 8):
            issue_slot(a, s, sKVB, s * 32768, SG)
        a.v("v_mov_b32", vT[5], 0)
        a.label("L_qf")
        a.ds_read(1, vT[4], vT[5], SC_QF)
        a.wait(lgkm=0)
        a.v("v_readfirstlane_b32", sT0, vT[4])
        a.s("s_cmp_lg_u32", sT0, 0)
        a.s("s_cbranch_scc1", "L_qfok")
        a.s("s_sub_u32", sTO, sTO, 1)
        a.s("s_cmp_le_i32", sTO, 0)
        a.s("s_cbranch_scc1", "L_qfok")
        a.s("s_sleep", 1)
        a.s("s_branch", "L_qf")
        a.label("L_qfok")
        a.ds_read(4, vr(VQ, 4), vVOFF, SC_Q)
        a.wait(lgkm=0)

    a.label("L_pass")
    stamp(a, 1)
    a.v("v_mov_b32", vM, "0xff7fffff")
    a.v("v_mov_b32", vL, 0)
    for i in range(32):
        a.v("v_mov_b32", vr(VO + i), 0)
    for s in range(8):
        tile(a, s)
        issue_slot(a, s, sRLB, s * 32768)
    for s in range(8):
        a.wait(vm=min(63, 16 * (7 - s)))
        tile(a, s)

    stamp(a, 2)
    t2 = vT[1]
    a.v("v_mov_b32", t2, vL)
    a.v("v_permlane32_swap_b32", vL, t2)
    a.v("v_add_f32", vL, vL, t2)
    a.v("v_mov_b32", t2, vL)
    a.v("v_permlane16_swap_b32", vL, t2)
    a.v("v_add_f32", vL, vL, t2)
    l = vT[0]
    a.v("v_and_b32", l, 63, vTID)
    a.v("v_bfe_u32", vT[2], l, 2, 2)
    a.s("s_lshl_b32", sT0, sWV, 5)
    a.v("v_lshl_add_u32", vT[3], vT[2], 3, sT0)
    a.s("s_lshl_b32", sT0, sWV, 11)
    a.v("v_lshl_add_u32", vT[4], vT[2], 9, sT0)
    a.v("v_lshrrev_b32", vT[5], 4, l)
    a.v("v_lshl_add_u32", vT[4], vT[5], 7, vT[4])
    set_exec(a, 0x11111111, 0x11111111)
    a.ds_write(2, vT[3], "v[6:7]", sc + SC_ML)
    for m in range(8):
        for r in range(4):
            a.ds_write(1, vT[4], vr(VO + 4 * m + r), sc + SC_O + (8 * r + m) * 4)
    exec_all(a)
    a.wait(lgkm=0)
    a.barrier()
    a.s("s_lshl_b32", sT0, sWV, 3)
    a.v("v_mov_b32", vT[3], sT0)
    a.s("s_lshl_b32", sT0, sWV, 9)
    a.v("v_lshl_add_u32", vT[4], l, 3, sT0)
    mlr = [8, 10, 12, 14]
    orr = [16, 18, 20, 22]
    for w in range(4):
        a.ds_read(2, vr(mlr[w], 2), vT[3], sc + SC_ML + w * 32)
        a.ds_read(2, vr(orr[w], 2), vT[4], sc + SC_O + w * 2048)
    a.wait(lgkm=0)
    Mg = vr(88)
    Lg = vr(89)
    a.v("v_max3_f32", Mg, vr(8), vr(10), vr(12))
    a.v("v_max_f32", Mg, Mg, vr(14))
    for w in range(4):
        a.v("v_sub_f32", vr(mlr[w]), vr(mlr[w]), Mg)
        a.v("v_mul_f32", vr(mlr[w]), sLOG2E, vr(mlr[w]))
        a.v("v_exp_f32", vr(mlr[w]), vr(mlr[w]))
    a.v("v_mul_f32", Lg, vr(8), vr(9))
    a.v("v_mul_f32", vr(90), vr(8), vr(16))
    a.v("v_mul_f32", vr(91), vr(8), vr(17))
    for w in range(1, 4):
        a.v("v_fmac_f32", Lg, vr(mlr[w]), vr(mlr[w] + 1))
        a.v("v_fmac_f32", vr(90), vr(mlr[w]), vr(orr[w]))
        a.v("v_fmac_f32", vr(91), vr(mlr[w]), vr(orr[w] + 1))
    for r in (88, 89, 90, 91):
        a.v("v_min_u32", vr(r), SENT_FIX, vr(r))
    a.s("s_lshr_b32", sT0, sWG, 5)
    a.s("s_lshl_b32", sT0, sT0, 2)
    a.s("s_add_u32", sT0, sT0, sWV)
    a.s("s_lshl_b32", sT0, sT0, 5)
    a.s("s_and_b32", sT1, sWG, 31)
    a.s("s_add_u32", sT0, sT0, sT1)
    a.s("s_lshl_b32", sT1, sT0, 9)
    a.s("s_add_u32", sT1, sT1, sLAY)
    a.s("s_add_u32", sT1, sT1, hex(PO))
    a.v("v_lshlrev_b32", vT[4], 3, l)
    a.bstore(2, "v[90:91]", vT[4], S_WS, sT1, 0, "sc1")
    a.s("s_lshl_b32", sT1, sT0, 3)
    a.s("s_add_u32", sT1, sT1, sLAY)
    a.s("s_add_u32", sT1, sT1, hex(ML))
    a.v("v_mov_b32", vT[4], 0)
    set_exec(a, 1, 0)
    a.bstore(2, "v[88:89]", vT[4], S_WS, sT1, 0, "sc1")
    exec_all(a)

    issue_wO(a, RAW_O)
    issue_wG(a, RAW_G)
    issue_wD(a, RAW_D)
    issue_wQ(a, RAW_Q)

    stamp(a, 3)
    GO = list(range(8, 24)) + list(range(96, 112))
    a.s("s_lshr_b32", sT2, sWR, 4)
    a.s("s_lshl_b32", sT2, sT2, 1)
    a.s("s_lshr_b32", sT3, sWV, 1)
    a.s("s_add_u32", sT2, sT2, sT3)
    a.v("v_and_b32", vT[3], 127, vTID)
    a.v("v_lshlrev_b32", vT[3], 2, vT[3])
    a.v("v_and_b32", vT[4], 31, vTID)
    a.v("v_lshlrev_b32", vT[4], 3, vT[4])
    a.s("s_lshl_b32", sT3, sT2, 14)
    a.s("s_add_u32", sT3, sT3, sLAY)
    a.s("s_add_u32", sT3, sT3, hex(PO))
    a.s("s_lshl_b32", sT4, sT2, 8)
    a.s("s_add_u32", sT4, sT4, sLAY)
    a.s("s_add_u32", sT4, sT4, hex(ML))
    mlp = "v[6:7]"

    def loadsO():
        a.bload(2, mlp, vT[4], S_WS, sT4, 0, "sc1")
        for c in range(32):
            if c % 8 == 0:
                a.s("s_add_u32", sT0, sT3, (c // 8) * 4096)
            a.bload(1, vr(GO[c]), vT[3], S_WS, sT0, (c % 8) * 512, "sc1")
    poll(a, loadsO, [vr(r) for r in GO] + ["v6", "v7"])
    mx, t2 = vT[0], vT[1]
    a.v("v_mov_b32", mx, vM)
    row_allreduce(a, "v_max_f32", [mx])
    a.v("v_mov_b32", t2, mx)
    a.v("v_permlane16_swap_b32", mx, t2)
    a.v("v_max_f32", mx, mx, t2)
    a.v("v_sub_f32", vM, vM, mx)
    a.v("v_mul_f32", vM, sLOG2E, vM)
    a.v("v_exp_f32", vM, vM)
    a.v("v_mul_f32", vL, vL, vM)
    row_allreduce(a, "v_add_f32", [vL])
    a.v("v_mov_b32", t2, vL)
    a.v("v_permlane16_swap_b32", vL, t2)
    a.v("v_add_f32", vL, vL, t2)
    a.v("v_rcp_f32", vL, vL)
    a.v("v_mul_f32", vM, vM, vL)
    for c in range(32):
        a.v("v_readlane_b32", sr(SW0 + c), vM, c)
    o0, o1 = vT[0], vT[1]
    a.v("v_mul_f32", o0, sr(SW0 + 0), vr(GO[0]))
    a.v("v_mul_f32", o1, sr(SW0 + 1), vr(GO[1]))
    for c in range(2, 32, 2):
        a.v("v_fmac_f32", o0, sr(SW0 + c), vr(GO[c]))
        a.v("v_fmac_f32", o1, sr(SW0 + c + 1), vr(GO[c + 1]))
    a.v("v_add_f32", o0, o0, o1)
    round_one(a, o0, vT[2])
    a.v("v_and_b32", vT[3], 0x3c, vTID)
    for i in range(4):
        a.v("v_add_u32", vT[4 + i], 64 * i, vT[3])
    for i in range(4):
        a.ds_bpermute(vr(8 + i), vT[4 + i], o0)
    unpack(a, RAW_O, 16, UU)
    a.wait(lgkm=0)
    acc = RAW_O
    for k in range(8):
        a.v("v_mul_f32", vr(acc + k), vr(8), vr(UU + k))
    for i in range(1, 4):
        for k in range(8):
            a.v("v_fmac_f32", vr(acc + k), vr(8 + i), vr(UU + 8 * i + k))
    for ctrl in ("row_ror:4", "row_ror:8"):
        for k in range(8):
            a.dpp("v_add_f32", vr(acc + k), vr(acc + k), vr(acc + k), ctrl=ctrl)
    a.v("v_lshrrev_b32", vT[3], 4, vTID)
    a.v("v_lshlrev_b32", vT[3], 7, vT[3])
    a.v("v_and_b32", vT[4], 3, vTID)
    a.v("v_lshl_add_u32", vT[3], vT[4], 5, vT[3])
    set_exec(a, 0x000f000f, 0x000f000f)
    a.ds_write(4, vT[3], vr(acc, 4), sc + SC_GO)
    a.ds_write(4, vT[3], vr(acc + 4, 4), sc + SC_GO + 16)
    exec_all(a)
    a.wait(lgkm=0)
    a.barrier()
    a.s("s_cmp_lg_u32", sWV, 0)
    a.s("s_cbranch_scc1", "L_skipO")
    a.v("v_and_b32", vT[3], 31, vTID)
    a.v("v_lshlrev_b32", vT[3], 2, vT[3])
    lds_sum16(a, vT[3], sc + SC_GO, 128, [vr(8 + i) for i in range(16)], vT[0])
    a.v("v_min_u32", vT[0], SENT_FIX, vT[0])
    a.s("s_lshr_b32", sT0, sWR, 4)
    a.s("s_lshl_b32", sT0, sT0, 11)
    a.s("s_and_b32", sT1, sWR, 15)
    a.s("s_lshl_b32", sT1, sT1, 7)
    a.s("s_add_u32", sT0, sT0, sT1)
    a.s("s_add_u32", sT0, sT0, sLAY)
    a.s("s_add_u32", sT0, sT0, hex(YP))
    set_exec(a, 0xffffffff, 0)
    a.bstore(1, vT[0], vT[3], S_WS, sT0, 0, "sc1")
    exec_all(a)
    a.label("L_skipO")

    stamp(a, 4)
    unpack(a, RAW_G, 16, UU)
    gather16_add_x(a, YP, SC_X1)
    a.s("s_cmp_ge_u32", sWR, 224)
    a.s("s_cbranch_scc1", "L_skipG")
    a.wait(lgkm=0)
    a.barrier()
    g_block(a, sT2, sT3)
    a.v("v_bfe_u32", vT[5], vTID, 3, 3)
    a.v("v_lshlrev_b32", vT[5], 2, vT[5])
    a.s("s_lshl_b32", sT0, sT2, 2)
    a.s("s_add_u32", sT0, sT0, sWV)
    a.s("s_lshl_b32", sT0, sT0, 6)
    a.v("v_add_u32", vT[5], sT0, vT[5])
    A = [vr(16), vr(17)]
    ln_from_lds(a, SC_X1, vT[5], [0, 32], A, 8)
    ag, au = 32, 40
    for k in range(8):
        a.v("v_mul_f32", vr(ag + k), A[0], vr(UU + k))
        a.v("v_mul_f32", vr(au + k), A[0], vr(UU + 16 + k))
    for k in range(8):
        a.v("v_fmac_f32", vr(ag + k), A[1], vr(UU + 8 + k))
        a.v("v_fmac_f32", vr(au + k), A[1], vr(UU + 24 + k))
    reduce8(a, [ag, au], 8)
    red_addr(a, vT[5], 8, 512, vT[6])
    set_exec(a, 0x00ff00ff, 0x00ff00ff)
    a.ds_write(2, vT[5], vr(ag, 2), SC_RG)
    a.ds_write(2, vT[5], vr(au, 2), SC_RG + 256)
    exec_all(a)
    a.wait(lgkm=0)
    a.barrier()
    a.s("s_cmp_ge_u32", sWV, 2)
    a.s("s_cbranch_scc1", "L_skipG")
    a.v("v_lshlrev_b32", vT[5], 2, vTID)
    sum4_lds(a, vT[5], SC_RG, 512, [vr(8 + i) for i in range(4)], vT[0])
    a.v("v_min_u32", vT[0], SENT_FIX, vT[0])
    a.v("v_and_b32", vT[5], 63, vTID)
    a.v("v_lshlrev_b32", vT[5], 2, vT[5])
    a.s("s_mul_i32", sT0, sT2, 14336)
    a.s("s_mul_i32", sT1, sWV, 7168)
    a.s("s_add_u32", sT0, sT0, sT1)
    a.s("s_lshl_b32", sT1, sT3, 8)
    a.s("s_add_u32", sT0, sT0, sT1)
    a.s("s_add_u32", sT0, sT0, sLAY)
    a.s("s_add_u32", sT0, sT0, hex(GP))
    a.bstore(1, vT[0], vT[5], S_WS, sT0, 0, "sc1")
    a.label("L_skipG")

    stamp(a, 5)
    unpack(a, RAW_D, 8, UU)
    a.v("v_and_b32", vT[4], 31, vTID)
    a.v("v_min_u32", vT[3], 27, vT[4])
    a.v("v_lshlrev_b32", vT[3], 2, vT[3])
    a.v("v_bfe_u32", vT[5], vTID, 5, 1)
    a.s("s_mov_b32", sT4, 7168)
    a.v("v_mul_lo_u32", vT[5], vT[5], sT4)
    a.v("v_add_u32", vT[3], vT[3], vT[5])
    a.s("s_lshr_b32", sT3, sWR, 4)
    a.s("s_lshl_b32", sT3, sT3, 2)
    a.s("s_add_u32", sT3, sT3, sWV)
    a.s("s_mul_i32", sT3, sT3, 112)
    a.s("s_add_u32", sT3, sT3, sLAY)
    a.s("s_add_u32", sT3, sT3, hex(GP))

    def loadsD():
        for p in range(8):
            a.s("s_add_u32", sT0, sT3, p * 14336)
            a.bload(1, vr(8 + p), vT[3], S_WS, sT0, 0, "sc1")
    poll(a, loadsD, [vr(8 + i) for i in range(8)])
    for n in (4, 2, 1):
        for i in range(n):
            a.v("v_add_f32", vr(8 + i), vr(8 + i), vr(8 + i + n))
    g_, u_ = vr(8), vr(9)
    round_one(a, g_, vT[0])
    a.v("v_mov_b32", u_, g_)
    a.v("v_permlane32_swap_b32", g_, u_)
    a.v("v_cmp_lt_f32", "vcc", 0, g_)
    a.v("v_cndmask_b32", vT[0], 0, "1.0", "vcc")
    a.v("v_mul_f32", g_, g_, vT[0])
    a.v("v_mul_f32", g_, g_, u_)
    round_one(a, g_, vT[0])
    a.v("v_cmp_gt_u32", "vcc", 28, vT[4])
    a.v("v_cndmask_b32", g_, 0, g_, "vcc")
    a.v("v_and_b32", vT[3], 0x3c, vTID)
    a.v("v_add_u32", vT[5], 64, vT[3])
    a.ds_bpermute(vr(10), vT[3], g_)
    a.ds_bpermute(vr(11), vT[5], g_)
    a.wait(lgkm=0)
    acc = 32
    for k in range(8):
        a.v("v_mul_f32", vr(acc + k), vr(10), vr(UU + k))
    for k in range(8):
        a.v("v_fmac_f32", vr(acc + k), vr(11), vr(UU + 8 + k))
    reduce8(a, [acc], 4)
    red_addr(a, vT[5], 4, 128, vT[6])
    set_exec(a, 0x000f000f, 0x000f000f)
    a.ds_write(2, vT[5], vr(acc, 2), SC_RD)
    exec_all(a)
    a.wait(lgkm=0)
    a.barrier()
    a.s("s_cmp_lg_u32", sWV, 0)
    a.s("s_cbranch_scc1", "L_skipD")
    a.v("v_and_b32", vT[5], 31, vTID)
    a.v("v_lshlrev_b32", vT[5], 2, vT[5])
    sum4_lds(a, vT[5], SC_RD, 128, [vr(8 + i) for i in range(4)], vT[0])
    a.v("v_min_u32", vT[0], SENT_FIX, vT[0])
    a.s("s_lshr_b32", sT0, sWR, 4)
    a.s("s_lshl_b32", sT0, sT0, 11)
    a.s("s_and_b32", sT1, sWR, 15)
    a.s("s_lshl_b32", sT1, sT1, 7)
    a.s("s_add_u32", sT0, sT0, sT1)
    a.s("s_add_u32", sT0, sT0, sLAY)
    a.s("s_add_u32", sT0, sT0, hex(DPP))
    set_exec(a, 0xffffffff, 0)
    a.bstore(1, vT[0], vT[5], S_WS, sT0, 0, "sc1")
    exec_all(a)
    a.label("L_skipD")
    stamp(a, 6)
    a.s("s_mul_i32", sT0, sWG, sLAYER)
    a.s("s_cmp_lg_u32", sT0, 0)
    a.s("s_cbranch_scc1", "L_end")

    unpack(a, RAW_Q, 16, UU)
    gather16_add_x(a, DPP, SC_X2)
    a.s("s_cmp_eq_u32", sLAYER, 0)
    a.s("s_cbranch_scc1", "L_stQ")
    a.v("v_cvt_pk_bf16_f32", vT[0], vX0, vX1)
    a.v("v_lshlrev_b32", vT[3], 2, vTID)
    a.bstore(1, vT[0], vT[3], S_OUT, 0, 0)
    stamp(a, 7)
    a.s("s_branch", "L_end")
    a.label("L_stQ")
    a.wait(lgkm=0)
    a.barrier()
    q_gemv(a, SC_X2, hex(LSTR + QP), "L_skipQ")
    stamp(a, 7)
    a.s("s_mov_b32", sLAYER, 1)
    a.s("s_mov_b32", sLAY, hex(LSTR))
    a.s("s_mov_b32", sRLB, sKVB)
    a.s("s_lshr_b32", sT2, sWG, 5)
    a.s("s_lshl_b32", sT2, sT2, 11)
    a.s("s_add_u32", sQB, sT2, hex(LSTR + QP))
    poll(a, lambda: q_gather_issue(a), [vr(QG + i) for i in range(32)])
    q_gather_sum(a)
    a.s("s_branch", "L_pass")
    a.label("L_end", pad=False)
    a.raw("  s_endpgm")
    return a.text()


def gen_init():
    a = Asm()
    kn = "init_kernel"
    a.raw(f".globl {kn}\n.p2align 8\n.type {kn},@function\n{kn}:")
    prologue_common(a, "L_iend")
    load_x(a)
    issue_wQ(a, RAW_Q)
    for i in range(4):
        a.v("v_mov_b32", vr(8 + i), -1)
    a.v("v_lshlrev_b32", vT[4], 4, vTID)
    a.s("s_mul_i32", sT0, sWG, 3072)
    a.s("s_add_u32", sT1, sT0, hex(LSTR))
    a.s("s_cmp_ge_u32", sWV, 3)
    a.s("s_cbranch_scc1", "L_iskip")
    a.bstore(4, "v[8:11]", vT[4], S_WS, sT0, 0)
    a.bstore(4, "v[8:11]", vT[4], S_WS, sT1, 0)
    a.label("L_iskip")
    a.wait(vm=0)
    unpack_x(a)
    unpack(a, RAW_Q, 16, UU)
    a.v("v_lshlrev_b32", vT[3], 3, vTID)
    a.ds_write(2, vT[3], "v[4:5]", SC_X2)
    a.wait(lgkm=0)
    a.barrier()
    q_gemv(a, SC_X2, hex(Q0), "L_iskipQ")
    a.label("L_iend", pad=False)
    a.raw("  s_endpgm")
    return a.text()


def kd(name, nv, acc):
    return f""".amdhsa_kernel {name}
  .amdhsa_next_free_vgpr {nv}
  .amdhsa_next_free_sgpr 102
  .amdhsa_accum_offset {acc}
  .amdhsa_group_segment_fixed_size 0
  .amdhsa_kernarg_size 96
  .amdhsa_user_sgpr_count 2
  .amdhsa_user_sgpr_kernarg_segment_ptr 1
  .amdhsa_system_sgpr_workgroup_id_x 1
.end_amdhsa_kernel
"""


def main():
    ref = open(f"cdna_kernels/{NAME}.s.ref").read()
    head = []
    for line in ref.splitlines():
        if line.startswith("; @launch"):
            break
        head.append(line)
    out = "\n".join(head) + "\n"
    if SINGLE:
        out += "; @launch grid=(256,1,1) block=(256,1,1) lds=163840\n"
    else:
        out += f"; @launch kernel=init_kernel grid=(256,1,1) block=(256,1,1) lds={SC_END}\n"
        out += "; @launch kernel=main_kernel grid=(256,1,1) block=(256,1,1) lds=163840\n"
    out += '.amdgcn_target "amdgcn-amd-amdhsa--gfx950"\n.text\n'
    if not SINGLE:
        out += gen_init()
    out += gen_main()
    out += '.section .rodata,"a"\n.p2align 6\n'
    if not SINGLE:
        out += kd("init_kernel", 128, 128)
        out += ".p2align 6\n"
    out += kd(NAME + "_kernel" if SINGLE else "main_kernel", 512, 256)
    dst = sys.argv[1] if len(sys.argv) > 1 else f"cdna_kernels/{NAME}.s"
    open(dst, "w").write(out)
    print("wrote", dst, len(out), "bytes")


if __name__ == "__main__":
    main()
```

```python
import sys
from asmlib import *

NAME = "interleave_layers__gqa_block_cached__glu_gated_reglu__decode"
EMU_ROUND = True
import os
STAMPS = int(os.environ.get("STAMPS", "0"))
SINGLE = bool(int(os.environ.get("SINGLE", "1")))
PF = int(os.environ.get("PF", "0"))
PFPOL = os.environ.get("PFPOL", "")
WARM = int(os.environ.get("WARM", "0"))
KVPOL = os.environ.get("KVPOL", "nt")
DYN = int(os.environ.get("DYN", "0"))
ROT = int(os.environ.get("ROT", "0"))
SG = int(os.environ.get("SG", "16"))

LSTR = 0x100000
QP, DPP, YP, GP, ML, PO, ZONE = 0x0, 0x10000, 0x18000, 0x20000, 0x3C000, 0x40000, 0xC0000
TKT = 0x3E000
Q0 = 0x200000
WS_BYTES = 0x300000

SC_O = 0
SC_ML = 8192
SC_GO = 9216
SC_X1 = 11264
SC_X2 = 13312
SC_RG = 15360
SC_RD = 17408
SC_RQ = 17920
SC_Q = 18944
SC_QF = 19968
SC_END = 20224

S_K, S_V, S_WQ, S_WO, S_WG, S_WU, S_WD, S_WS, S_X, S_OUT = [sr(8 + 4 * i, 4) for i in range(10)]
sWG, sWV = "s2", "s3"
sLAYER, sKVB, sRLB, sT0, sT1, sLAY, sQB, sTO = "s48", "s49", "s50", "s51", "s52", "s53", "s54", "s55"
sC, sLOG2E, sSELLO, sSELHI, sT2, sLDSW, sT3, sT4 = "s56", "s57", "s58", "s59", "s60", "s61", "s62", "s63"
SW0 = 64
S_DBG = sr(88, 4)
sWR, sWRG = "s4", "s5"

vTID, vKOFF, vVOFF, vLDS = "v0", "v1", "v2", "v3"
vX0, vX1 = "v4", "v5"
vM, vL = "v6", "v7"
VQ = 8
VP = 12
VPB = (16, 20)
vT = [f"v{24+i}" for i in range(8)]
VO = 32
VD = 64
VTMP = 96
VV = 128

RAW_O, RAW_G, RAW_Q, RAW_D = 32, 48, 64, 80
UU = 96
GATH = list(range(8, 24)) + list(range(32, 48))

C_SCALE = 0x3DB504F3
LOG2E = 0x3FB8AA3B
SENT_FIX = "0xfffffffe"


def f32bits(x):
    import struct
    return struct.unpack("<I", struct.pack("<f", x))[0]


assert f32bits(128 ** -0.5) == C_SCALE, hex(f32bits(128 ** -0.5))


def set_exec(a, lo, hi):
    a.s("s_mov_b32", "exec_lo", hex(lo))
    a.s("s_mov_b32", "exec_hi", hex(hi))


def exec_all(a):
    a.s("s_mov_b64", "exec", "-1")


def round_pair(a, x0, x1, tmp):
    a.v("v_cvt_pk_bf16_f32", tmp, x0, x1)
    a.v("v_lshlrev_b32", x0, 16, tmp)
    a.v("v_and_b32", x1, "0xffff0000", tmp)


def round_one(a, x0, tmp):
    a.v("v_cvt_pk_bf16_f32", tmp, x0, x0)
    a.v("v_lshlrev_b32", x0, 16, tmp)


def row_allreduce(a, op, regs):
    for ctrl in ("quad_perm:[1,0,3,2]", "quad_perm:[2,3,0,1]", "row_half_mirror", "row_mirror"):
        for r in regs:
            a.dpp(op, r, r, r, ctrl=ctrl)


def prologue_common(a, lbl_end):
    a.s("s_cmp_ge_u32", sWG, 256)
    a.s("s_cbranch_scc1", lbl_end)
    a.raw("  s_load_dwordx16 s[64:79], s[0:1], 0")
    a.raw("  s_load_dwordx8 s[80:87], s[0:1], 64")
    a.v("v_lshrrev_b32", vT[0], 6, vTID)
    a.v("v_readfirstlane_b32", sWV, vT[0])
    a.raw("  s_waitcnt lgkmcnt(0)")
    srds = [(8, 66, 0x8000000), (12, 68, 0x8000000), (16, 70, 0x400000), (20, 72, 0x400000),
            (24, 76, 512 * 1792 * 2), (28, 78, 512 * 1792 * 2), (32, 80, 1792 * 512 * 2),
            (36, 86, WS_BYTES), (40, 64, 1024), (44, 82, 1024), (88, 84, 256)] + ([(96, 84, 256)] if STAMPS == 2 else [])
    for d, p, n in srds:
        a.s("s_mov_b32", sr(d), sr(p))
        a.s("s_and_b32", sr(d + 1), sr(p + 1), "0xffff")
        a.s("s_mov_b32", sr(d + 2), hex(n))
        a.s("s_mov_b32", sr(d + 3), "0x00020000")
    a.s("s_mov_b32", sC, hex(C_SCALE))
    a.s("s_mov_b32", sLOG2E, hex(LOG2E))
    a.s("s_mov_b32", sSELLO, "0x05040100")
    a.s("s_mov_b32", sSELHI, "0x07060302")
    a.s("s_mov_b32", sTO, hex(1 << 18))
    a.s("s_and_b32", sT0, sWG, 7)
    a.s("s_lshr_b32", sT1, sWG, 3)
    a.s("s_lshl_b32", sWR, sT0, 5)
    a.s("s_add_u32", sWR, sWR, sT1)
    a.s("s_mul_i32", sWRG, sT0, 28)
    a.s("s_add_u32", sWRG, sWRG, sT1)
    l = vT[0]
    a.v("v_and_b32", l, 63, vTID)
    a.v("v_lshlrev_b32", vVOFF, 4, l)
    a.v("v_bfe_u32", vT[1], l, 2, 2)
    a.v("v_lshlrev_b32", vKOFF, 8, vT[1])
    a.v("v_lshrrev_b32", vT[2], 4, l)
    a.v("v_lshl_add_u32", vKOFF, vT[2], 6, vKOFF)
    a.v("v_and_b32", vT[3], 3, l)
    a.v("v_lshl_add_u32", vKOFF, vT[3], 4, vKOFF)
    a.s("s_lshl_b32", sLDSW, sWV, 15)
    a.s("s_add_u32", sLDSW, sLDSW, 32768)
    a.v("v_add_u32", vLDS, sLDSW, vVOFF)


def load_x(a):
    a.v("v_lshlrev_b32", vT[4], 2, vTID)
    a.bload(1, vX0, vT[4], S_X, 0)


def unpack_x(a):
    a.v("v_and_b32", vX1, "0xffff0000", vX0)
    a.v("v_lshlrev_b32", vX0, 16, vX0)


class _Dma:
    def __init__(self, a):
        self.a = a

    def __getattr__(self, n):
        return getattr(self.a, n)

    def bload(self, width, dst, voff, srd, soff, offset=0, flags=""):
        self.a.bload_lds(voff, srd, soff, offset, flags)


def warm_weights(a):
    a.s("s_lshl_b32", "m0", sWV, 10)
    d = _Dma(a)
    issue_wO(d, 0)
    issue_wG(d, 0)
    issue_wD(d, 0)
    issue_wQ(d, 0)


def lane_voff(a, dst, sh_c, rowbytes, tmp):
    a.v("v_and_b32", tmp, 63, vTID)
    a.v("v_lshrrev_b32", dst, sh_c, tmp)
    a.s("s_mov_b32", sT4, rowbytes)
    a.v("v_mul_lo_u32", dst, dst, sT4)
    a.v("v_and_b32", tmp, (1 << sh_c) - 1, tmp)
    a.v("v_lshl_add_u32", dst, tmp, 4, dst)


def g_block(a, rb, cb):
    a.s("s_mul_i32", rb, sWR, 2341)
    a.s("s_lshr_b32", rb, rb, 16)
    a.s("s_mul_i32", cb, rb, 28)
    a.s("s_sub_u32", cb, sWR, cb)


def issue_wQ(a, raw):
    lane_voff(a, vT[5], 3, 8192, vT[6])
    a.s("s_lshr_b32", sT0, sWR, 6)
    a.s("s_lshl_b32", sT0, sT0, 20)
    a.s("s_lshl_b32", sT1, sWV, 18)
    a.s("s_add_u32", sT0, sT0, sT1)
    a.s("s_and_b32", sT1, sWR, 63)
    a.s("s_lshl_b32", sT1, sT1, 7)
    a.s("s_add_u32", sT0, sT0, sT1)
    for i in range(4):
        a.bload(4, vr(raw + 4 * i, 4), vT[5], S_WQ, sT0, 0)
        if i < 3:
            a.s("s_add_u32", sT0, sT0, 65536)


def issue_wG(a, raw):
    lane_voff(a, vT[5], 3, 3584, vT[6])
    g_block(a, sT2, sT3)
    a.s("s_lshl_b32", sT0, sT2, 2)
    a.s("s_add_u32", sT0, sT0, sWV)
    a.s("s_mul_i32", sT0, sT0, 16 * 3584)
    a.s("s_lshl_b32", sT1, sT3, 7)
    a.s("s_add_u32", sT0, sT0, sT1)
    a.s("s_add_u32", sT1, sT0, 8 * 3584)
    a.bload(4, vr(raw + 0, 4), vT[5], S_WG, sT0, 0)
    a.bload(4, vr(raw + 4, 4), vT[5], S_WG, sT1, 0)
    a.bload(4, vr(raw + 8, 4), vT[5], S_WU, sT0, 0)
    a.bload(4, vr(raw + 12, 4), vT[5], S_WU, sT1, 0)


def issue_wD(a, raw):
    lane_voff(a, vT[5], 2, 1024, vT[6])
    a.s("s_lshr_b32", sT0, sWR, 4)
    a.s("s_lshl_b32", sT0, sT0, 2)
    a.s("s_add_u32", sT0, sT0, sWV)
    a.s("s_mul_i32", sT0, sT0, 28 * 1024)
    a.s("s_and_b32", sT1, sWR, 15)
    a.s("s_lshl_b32", sT1, sT1, 6)
    a.s("s_add_u32", sT0, sT0, sT1)
    a.s("s_add_u32", sT1, sT0, 16384)
    a.bload(4, vr(raw + 0, 4), vT[5], S_WD, sT0, 0)
    a.bload(4, vr(raw + 4, 4), vT[5], S_WD, sT1, 0)


def issue_wO(a, raw):
    lane_voff(a, vT[5], 2, 1024, vT[6])
    a.s("s_lshr_b32", sT0, sWR, 4)
    a.s("s_lshl_b32", sT0, sT0, 18)
    a.s("s_lshl_b32", sT1, sWV, 16)
    a.s("s_add_u32", sT0, sT0, sT1)
    a.s("s_and_b32", sT1, sWR, 15)
    a.s("s_lshl_b32", sT1, sT1, 6)
    a.s("s_add_u32", sT0, sT0, sT1)
    for i in range(4):
        a.bload(4, vr(raw + 4 * i, 4), vT[5], S_WO, sT0, 0)
        if i < 3:
            a.s("s_add_u32", sT0, sT0, 16384)


def unpack(a, raw, n, dst):
    for i in range(n):
        a.v("v_lshlrev_b32", vr(dst + 2 * i), 16, vr(raw + i))
        a.v("v_and_b32", vr(dst + 2 * i + 1), "0xffff0000", vr(raw + i))


def lds_sum16(a, addr, base, stride, regs, out):
    for p in range(16):
        a.ds_read(1, regs[p], addr, base + p * stride)
    a.wait(lgkm=0)
    n = 16
    while n > 1:
        for i in range(n // 2):
            a.v("v_add_f32", regs[i], regs[i], regs[i + n // 2])
        n //= 2
    if out != regs[0]:
        a.v("v_mov_b32", out, regs[0])


def wave_allreduce_add(a, x, t):
    row_allreduce(a, "v_add_f32", [x])
    a.v("v_mov_b32", t, x)
    a.v("v_permlane32_swap_b32", x, t)
    a.v("v_add_f32", x, x, t)
    a.v("v_mov_b32", t, x)
    a.v("v_permlane16_swap_b32", x, t)
    a.v("v_add_f32", x, x, t)


def ln_from_lds(a, scx, vrows, offs, outs, tq):
    s, mean, t, tmp, la = vT[0], vT[1], vT[2], vT[3], vT[4]
    a.v("v_and_b32", la, 63, vTID)
    a.v("v_lshlrev_b32", la, 5, la)
    a.ds_read(4, vr(tq, 4), la, scx)
    a.ds_read(4, vr(tq + 4, 4), la, scx + 16)
    for o, off in zip(outs, offs):
        a.ds_read(1, o, vrows, scx + off)
    a.wait(lgkm=len(outs))
    X = [vr(tq + k) for k in range(8)]
    a.v("v_add_f32", s, X[0], X[1])
    a.v("v_add_f32", t, X[2], X[3])
    a.v("v_add_f32", s, s, X[4])
    a.v("v_add_f32", t, t, X[5])
    a.v("v_add_f32", s, s, X[6])
    a.v("v_add_f32", t, t, X[7])
    a.v("v_add_f32", s, s, t)
    wave_allreduce_add(a, s, t)
    a.v("v_mul_f32", mean, hex(f32bits(1.0 / 512)), s)
    for k in range(8):
        a.v("v_sub_f32", X[k], X[k], mean)
    a.v("v_mul_f32", s, X[0], X[0])
    a.v("v_mul_f32", t, X[1], X[1])
    for k in range(2, 8, 2):
        a.v("v_fmac_f32", s, X[k], X[k])
        a.v("v_fmac_f32", t, X[k + 1], X[k + 1])
    a.v("v_add_f32", s, s, t)
    wave_allreduce_add(a, s, t)
    a.v("v_mul_f32", s, hex(f32bits(1.0 / 512)), s)
    round_pair(a, mean, s, tmp)
    a.v("v_add_f32", s, hex(f32bits(1e-5)), s)
    round_one(a, s, tmp)
    a.v("v_sqrt_f32", s, s)
    round_one(a, s, tmp)
    a.v("v_rcp_f32", s, s)
    a.wait(lgkm=0)
    for i in range(0, len(outs), 2):
        a0, a1 = outs[i], outs[i + 1]
        a.v("v_sub_f32", a0, a0, mean)
        a.v("v_sub_f32", a1, a1, mean)
        round_pair(a, a0, a1, tmp)
        a.v("v_mul_f32", a0, a0, s)
        a.v("v_mul_f32", a1, a1, s)
        round_pair(a, a0, a1, tmp)


def reduce8(a, accs, nc):
    for b in accs:
        for k in range(4):
            a.v("v_permlane32_swap_b32", vr(b + k), vr(b + k + 4))
    for b in accs:
        for k in range(4):
            a.v("v_add_f32", vr(b + k), vr(b + k), vr(b + k + 4))
    for b in accs:
        a.v("v_permlane16_swap_b32", vr(b + 0), vr(b + 2))
        a.v("v_permlane16_swap_b32", vr(b + 1), vr(b + 3))
    for b in accs:
        a.v("v_add_f32", vr(b + 0), vr(b + 0), vr(b + 2))
        a.v("v_add_f32", vr(b + 1), vr(b + 1), vr(b + 3))
    steps = {8: ["row_ror:8"], 4: ["row_ror:4", "row_ror:8"]}[nc]
    for ctrl in steps:
        for b in accs:
            a.dpp("v_add_f32", vr(b), vr(b), vr(b), ctrl=ctrl)
            a.dpp("v_add_f32", vr(b + 1), vr(b + 1), vr(b + 1), ctrl=ctrl)


def red_addr(a, dst, nc, wvstride, tmp):
    a.v("v_and_b32", tmp, nc - 1, vTID)
    a.v("v_lshlrev_b32", dst, 5, tmp)
    a.v("v_bfe_u32", tmp, vTID, 4, 2)
    a.v("v_lshl_add_u32", dst, tmp, 3, dst)
    a.s("s_mul_i32", sT4, sWV, wvstride)
    a.v("v_add_u32", dst, sT4, dst)


def sum4_lds(a, addr, base, stride, regs, out):
    for p in range(4):
        a.ds_read(1, regs[p], addr, base + p * stride)
    a.wait(lgkm=0)
    a.v("v_add_f32", regs[0], regs[0], regs[1])
    a.v("v_add_f32", regs[2], regs[2], regs[3])
    a.v("v_add_f32", out, regs[0], regs[2])


def q_gemv(a, scx, base_s, lbl):
    a.v("v_bfe_u32", vT[5], vTID, 3, 3)
    a.v("v_lshlrev_b32", vT[5], 2, vT[5])
    a.s("s_lshr_b32", sT0, sWR, 6)
    a.s("s_lshl_b32", sT0, sT0, 9)
    a.s("s_lshl_b32", sT1, sWV, 7)
    a.s("s_add_u32", sT0, sT0, sT1)
    a.v("v_add_u32", vT[5], sT0, vT[5])
    A = [vr(16 + i) for i in range(4)]
    ln_from_lds(a, scx, vT[5], [32 * i for i in range(4)], A, 8)
    acc = 32
    for k in range(8):
        a.v("v_mul_f32", vr(acc + k), A[0], vr(UU + k))
    for i in range(1, 4):
        for k in range(8):
            a.v("v_fmac_f32", vr(acc + k), A[i], vr(UU + 8 * i + k))
    reduce8(a, [acc], 8)
    red_addr(a, vT[5], 8, 256, vT[6])
    set_exec(a, 0x00ff00ff, 0x00ff00ff)
    a.ds_write(2, vT[5], vr(acc, 2), SC_RQ)
    exec_all(a)
    a.wait(lgkm=0)
    a.barrier()
    a.s("s_cmp_lg_u32", sWV, 0)
    a.s("s_cbranch_scc1", lbl)
    a.v("v_lshlrev_b32", vT[5], 2, vTID)
    sum4_lds(a, vT[5], SC_RQ, 256, [vr(8 + i) for i in range(4)], vT[0])
    a.v("v_min_u32", vT[0], SENT_FIX, vT[0])
    a.s("s_lshr_b32", sT0, sWR, 6)
    a.s("s_lshl_b32", sT0, sT0, 14)
    a.s("s_and_b32", sT1, sWR, 63)
    a.s("s_lshl_b32", sT1, sT1, 8)
    a.s("s_add_u32", sT0, sT0, sT1)
    a.s("s_add_u32", sT0, sT0, base_s)
    a.bstore(1, vT[0], vT[5], S_WS, sT0, 0, "sc1")
    a.label(lbl)


QG = 64


def q_gather_issue(a):
    a.v("v_lshlrev_b32", vT[3], 1, vKOFF)
    for p in range(4):
        a.s("s_add_u32", sT0, sQB, p * 16384)
        a.bload(4, vr(QG + 8 * p, 4), vT[3], S_WS, sT0, 0, "sc1")
        a.bload(4, vr(QG + 8 * p + 4, 4), vT[3], S_WS, sT0, 16, "sc1")


def q_gather_sum(a):
    for k in range(8):
        a.v("v_add_f32", vr(QG + k), vr(QG + k), vr(QG + 8 + k))
        a.v("v_add_f32", vr(QG + 16 + k), vr(QG + 16 + k), vr(QG + 24 + k))
    for k in range(8):
        a.v("v_add_f32", vr(QG + k), vr(QG + k), vr(QG + 16 + k))
    for e in range(4):
        a.v("v_cvt_pk_bf16_f32", vr(VQ + e), vr(QG + 2 * e), vr(QG + 2 * e + 1))


def gather16_add_x(a, base_off, scx, tch=None):
    a.v("v_lshlrev_b32", vT[3], 3, vTID)
    a.s("s_add_u32", sT3, sLAY, hex(base_off))

    def loads():
        for p in range(16):
            if p % 2 == 0:
                a.s("s_add_u32", sT0, sT3, (p // 2) * 4096)
            a.bload(2, vr(GATH[2 * p], 2), vT[3], S_WS, sT0, (p % 2) * 2048, "sc1")
    poll(a, loads, [vr(r) for r in GATH], tch)
    n = 16
    while n > 1:
        for i in range(n // 2):
            for h in range(2):
                a.v("v_add_f32", vr(GATH[2 * i + h]), vr(GATH[2 * i + h]), vr(GATH[2 * (i + n // 2) + h]))
        n //= 2
    round_pair(a, vr(GATH[0]), vr(GATH[1]), vT[0])
    a.v("v_add_f32", vX0, vX0, vr(GATH[0]))
    a.v("v_add_f32", vX1, vX1, vr(GATH[1]))
    round_pair(a, vX0, vX1, vT[0])
    if scx is not None:
        a.ds_write(2, vT[3], "v[4:5]", scx)


_pollid = [0]


def stamp(a, idx, layered=True):
    if not STAMPS:
        return
    if STAMPS == 2:
        _pollid[0] += 1
        lb = f"L_st{_pollid[0]}"
        a.s("s_and_b32", "s100", sWG, 31)
        a.s("s_or_b32", "s100", "s100", sWV)
        a.s("s_cmp_lg_u32", "s100", 0)
        a.s("s_cbranch_scc1", lb)
        a.raw("  s_memrealtime s[100:101]")
        a.raw("  s_waitcnt lgkmcnt(0)")
        if idx == 0:
            a.s("s_not_b32", "s100", "s100")
        a.v("v_mov_b32", vT[7], "s100")
        a.s("s_lshl_b32", "s101", sLAYER, 5) if layered else a.s("s_mov_b32", "s101", 0)
        a.s("s_add_u32", "s101", "s101", 4 + 4 * idx)
        a.v("v_mov_b32", vT[0], 0)
        set_exec(a, 1, 0)
        a.raw(f"  buffer_atomic_umax {vT[7]}, {vT[0]}, s[96:99], s101 offen sc1")
        exec_all(a)
        a.label(lb)
        return
    a.raw("  s_memrealtime s[98:99]")
    a.s("s_lshl_b32", "s100", sWG, 2)
    a.s("s_add_u32", "s100", "s100", sWV)
    a.s("s_lshl_b32", "s100", "s100", 7)
    a.s("s_add_u32", "s100", "s100", hex(0x280000 + idx * 4))
    if layered:
        a.s("s_lshl_b32", "s101", sLAYER, 6)
        a.s("s_add_u32", "s100", "s100", "s101")
    a.raw("  s_waitcnt lgkmcnt(0)")
    a.v("v_mov_b32", vT[7], "s98")
    a.v("v_mov_b32", vT[0], 0)
    set_exec(a, 1, 0)
    a.bstore(1, vT[7], vT[0], S_WS, "s100", 0)
    exec_all(a)


PFD = [int(x) for x in os.environ.get("PFD", "0,0,0").split(",")]


def touch(a, ks):
    _pollid[0] += 1
    lb = f"L_tch{_pollid[0]}"
    a.s("s_cmp_lg_u32", sLAYER, 0)
    a.s("s_cbranch_scc1", lb + "a")
    a.s("s_lshr_b32", sT1, sWG, 3)
    a.s("s_and_b32", sT1, sT1, 3)
    a.s("s_lshl_b32", sT1, sT1, 16)
    a.s("s_add_u32", sT1, sT1, sKVB)
    a.s("s_add_u32", sT0, sT1, 32768)
    a.v("v_lshlrev_b32", vM, 3, vVOFF)
    for k in ks:
        a.bload(1, vL, vM, S_K if k % 2 == 0 else S_V, sT1 if k < 2 else sT0, 0, PFPOL)
    a.wait(vm=len(ks))
    a.s("s_branch", lb + "b")
    a.label(lb + "a")
    a.wait(vm=0)
    a.label(lb + "b")


def poll(a, issue_loads, regs, tch=None):
    _pollid[0] += 1
    n = _pollid[0]
    if tch is not None and PFD[tch]:
        k0 = sum(PFD[:tch])
        issue_loads()
        touch(a, list(range(k0, k0 + PFD[tch])))
        sent_check(a, regs)
        a.s("s_cbranch_vccz", f"L_pdone{n}")
    a.label(f"L_poll{n}")
    issue_loads()
    a.wait(vm=0)
    sent_check(a, regs)
    a.s("s_cbranch_vccz", f"L_pdone{n}")
    a.s("s_sub_u32", sTO, sTO, 1)
    a.s("s_cmp_le_i32", sTO, 0)
    a.s("s_cbranch_scc1", f"L_pdone{n}")
    a.s("s_sleep", 1)
    a.s("s_branch", f"L_poll{n}")
    a.label(f"L_pdone{n}")


def sent_check(a, regs):
    acc = vT[7]
    rs = list(regs)
    a.v("v_max_u32", acc, rs[0], rs[1] if len(rs) > 1 else rs[0])
    rs = rs[2:]
    while rs:
        if len(rs) >= 2:
            a.v("v_max3_u32", acc, acc, rs[0], rs[1])
            rs = rs[2:]
        else:
            a.v("v_max_u32", acc, acc, rs[0])
            rs = rs[1:]
    a.v("v_cmp_eq_u32", "vcc", -1, acc)
    a.nop(1)


def slot_kreg(s, i):
    return ar(32 * s + 4 * i, 4)


def slot_vraw(s, i):
    if s < 4:
        return vr(VV + 32 * s + 4 * i, 4)
    return ar(192 + 32 * (s - 4) + 4 * i, 4)


def issue_slot(a, s, sbase, toff, guard=47):
    a.wait(vm=guard)
    if ROT:
        a.s("s_add_u32", sT0, "s6", toff)
        a.s("s_and_b32", sT0, sT0, 7 * 32768)
        a.s("s_add_u32", sT0, sT0, sbase)
        a.s("s_add_u32", sT1, sT0, 4096)
    else:
        a.s("s_add_u32", sT0, sbase, toff)
        a.s("s_add_u32", sT1, sbase, toff + 4096)
    slot_loads(a, s)


def slot_loads(a, s):
    if s < 6:
        for i in range(8):
            a.bload(4, slot_kreg(s, i), vKOFF, S_K, sT0 if i < 4 else sT1, (i % 4) * 1024, KVPOL)
        for i in range(8):
            a.bload(4, slot_vraw(s, i), vVOFF, S_V, sT0 if i < 4 else sT1, (i % 4) * 1024, KVPOL)
    else:
        for half, (srd, voff) in enumerate(((S_K, vKOFF), (S_V, vVOFF))):
            for hi in range(2):
                a.s("s_add_u32", "m0", sLDSW, (s - 6) * 16384 + half * 8192 + hi * 4096)
                for i in range(4):
                    a.bload_lds(voff, srd, sT0 if hi == 0 else sT1, i * 1024, KVPOL)


ORD = [(6, 8), (7, 9), (0, 0), (1, 1), (2, 2), (3, 3), (4, 4), (5, 5)] if DYN else [(i, i) for i in range(8)]
sE = {6: "s6", 7: "s7"}
sPB, sNP, sCT = "s64", "s65", "s66"
vTK = {6: vT[5], 7: vT[6]}
vZ = vT[7]


def ticket(a, x):
    a.v("v_mov_b32", vTK[x], 1)
    set_exec(a, 1, 0)
    a.raw(f"  buffer_atomic_add {vTK[x]}, {vZ}, {S_WS}, {sCT} offen sc0 sc1")
    a.hist.append((Ins("vmem", regs_of(vTK[x]), regs_of(vTK[x]) | regs_of(vZ)), 1))
    exec_all(a)


def reload(a, x):
    _pollid[0] += 1
    n = _pollid[0]
    a.v("v_readfirstlane_b32", sT2, vTK[x])
    a.s("s_add_u32", sT2, sT2, 1)
    a.s("s_cmp_ge_u32", sT2, sNP)
    a.s("s_cbranch_scc1", f"L_ex{n}")
    a.s("s_lshr_b32", sT3, sT2, 2)
    a.s("s_and_b32", sT3, sT3, 31)
    a.s("s_lshl_b32", sT3, sT3, 19)
    a.s("s_lshr_b32", sT4, sT2, 7)
    a.s("s_lshl_b32", sT4, sT4, 15)
    a.s("s_add_u32", sT3, sT3, sT4)
    a.s("s_and_b32", sT4, sT2, 3)
    a.s("s_lshl_b32", sT4, sT4, 13)
    a.s("s_add_u32", sT3, sT3, sT4)
    a.s("s_add_u32", sT0, sT3, sPB)
    a.s("s_branch", f"L_ld{n}")
    a.label(f"L_ex{n}")
    a.s("s_mov_b32", sE[x], 2)
    a.s("s_cmp_lg_u32", sLAYER, 0)
    a.s("s_cbranch_scc1", f"L_dn{n}")
    a.s("s_mov_b32", sE[x], 1)
    a.s("s_add_u32", sT0, sKVB, x * 32768)
    a.label(f"L_ld{n}")
    a.s("s_add_u32", sT1, sT0, 4096)
    ticket(a, x)
    slot_loads(a, x)
    a.label(f"L_dn{n}")


def dyn_setup(a):
    a.s("s_mov_b32", sE[6], 0)
    a.s("s_mov_b32", sE[7], 0)
    a.s("s_lshr_b32", sT2, sWG, 5)
    a.s("s_lshl_b32", sPB, sT2, 24)
    a.s("s_lshl_b32", sCT, sT2, 7)
    a.s("s_add_u32", sCT, sCT, sLAY)
    a.s("s_add_u32", sCT, sCT, hex(TKT))
    a.s("s_add_u32", sPB, sPB, 10 * 32768)
    a.s("s_mov_b32", sNP, 768)
    a.v("v_mov_b32", vZ, 0)


def dyn_pass(a):
    dyn_setup(a)
    a.s("s_cmp_lg_u32", sLAYER, 0)
    a.s("s_cbranch_scc1", "L_early")
    if WARM:
        warm_weights(a)
    ticket(a, 6)
    ticket(a, 7)
    tile(a, 6)
    tile(a, 7)
    a.s("s_branch", "L_early_skip")
    a.label("L_early")
    for x in (6, 7):
        tile(a, x)
        a.s("s_add_u32", sT0, sKVB, (x + 2) * 32768)
        a.s("s_add_u32", sT1, sT0, 4096)
        ticket(a, x)
        slot_loads(a, x)
    a.label("L_early_skip")
    tile(a, 0)
    tile(a, 1)
    a.wait(vm=min(63, 50 + 14 * WARM))
    tile(a, 2)
    a.wait(vm=34 + 14 * WARM)
    tile(a, 3)
    a.s("s_cmp_lg_u32", sLAYER, 0)
    a.s("s_cbranch_scc1", "L_late_skip")
    a.wait(vm=0)
    reload(a, 6)
    reload(a, 7)
    a.label("L_late_skip")
    tile(a, 4)
    tile(a, 5)
    a.label("L_loop")
    for x, y in ((6, 7), (7, 6)):
        a.s("s_cmp_eq_u32", sE[x], 2)
        a.s("s_cbranch_scc1", f"L_nx{x}")
        a.s("s_cmp_eq_u32", sE[y], 2)
        a.s("s_cbranch_scc1", f"L_w0{x}")
        a.wait(vm=17)
        a.s("s_branch", f"L_w1{x}")
        a.label(f"L_w0{x}")
        a.wait(vm=0)
        a.label(f"L_w1{x}")
        tile(a, x)
        a.s("s_cmp_eq_u32", sE[x], 0)
        a.s("s_cbranch_scc1", f"L_rl{x}")
        a.s("s_mov_b32", sE[x], 2)
        a.s("s_branch", f"L_nx{x}")
        a.label(f"L_rl{x}")
        reload(a, x)
        a.label(f"L_nx{x}")
    a.s("s_add_u32", sT0, sE[6], sE[7])
    a.s("s_cmp_lt_u32", sT0, 4)
    a.s("s_cbranch_scc1", "L_loop")


def tile(a, s):
    a.comment(f"---- tile slot {s}")
    lds = s >= 6
    if lds:
        for i in range(8):
            a.ds_read(4, vr(VTMP + 4 * i, 4), vLDS, (s - 6) * 16384 + i * 1024)
        a.wait(lgkm=0)
        kf = lambda i: vr(VTMP + 4 * i, 4)
    else:
        kf = lambda i: slot_kreg(s, i)
    for i in range(8):
        a.mfma(vr(VD + 4 * i, 4), kf(i), vr(VQ, 4), 0)
    if lds:
        for i in range(8):
            a.ds_read(4, vr(VTMP + 4 * i, 4), vLDS, (s - 6) * 16384 + 8192 + i * 1024)
        vsrc = lambda i, d: vr(VTMP + 4 * i + d)
    elif s >= 4:
        for i in range(32):
            a.v("v_accvgpr_read_b32", vr(VTMP + i), ar(192 + 32 * (s - 4) + i))
        vsrc = lambda i, d: vr(VTMP + 4 * i + d)
    else:
        vsrc = lambda i, d: vr(VV + 32 * s + 4 * i + d)

    def perms(m):
        d = m // 2
        sel = sSELLO if m % 2 == 0 else sSELHI
        b = VPB[m % 2]
        for e in range(4):
            a.v("v_perm_b32", vr(b + e), vsrc(2 * e + 1, d), vsrc(2 * e, d), sel)

    if not lds:
        perms(0)
        perms(1)
    S = [vr(VD + 4 * i) for i in range(8)]
    for i in range(8):
        a.dpp("v_mov_b32", S[i], S[i], ctrl="quad_perm:[0,0,0,0]")
    for r in (1, 2, 3):
        for i in range(8):
            a.dpp("v_add_f32", S[i], vr(VD + 4 * i + r), S[i], ctrl=f"quad_perm:[{r},{r},{r},{r}]")
    if EMU_ROUND:
        for i in range(0, 8, 2):
            round_pair(a, S[i], S[i + 1], vr(VD + 4 * i + 1))
        for i in range(8):
            a.v("v_mul_f32", S[i], sC, S[i])
        for i in range(0, 8, 2):
            round_pair(a, S[i], S[i + 1], vr(VD + 4 * i + 1))
    else:
        for i in range(8):
            a.v("v_mul_f32", S[i], sC, S[i])
    tm, t2, alpha, mneg, ps = vT[0], vT[1], vT[2], vT[3], vT[4]
    a.v("v_max3_f32", tm, S[0], S[1], S[2])
    a.v("v_max3_f32", t2, S[3], S[4], S[5])
    a.v("v_max3_f32", tm, tm, S[6], S[7])
    a.v("v_max3_f32", tm, tm, t2, vM)
    a.v("v_mov_b32", t2, tm)
    a.v("v_permlane32_swap_b32", tm, t2)
    a.v("v_max_f32", tm, tm, t2)
    a.v("v_mov_b32", t2, tm)
    a.v("v_permlane16_swap_b32", tm, t2)
    a.v("v_max_f32", tm, tm, t2)
    a.v("v_sub_f32", alpha, vM, tm)
    a.v("v_mul_f32", alpha, sLOG2E, alpha)
    a.v("v_exp_f32", alpha, alpha)
    a.v("v_mov_b32", vM, tm)
    a.v("v_mul_f32", mneg, sLOG2E, tm)
    for i in range(8):
        a.v("v_fma_f32", S[i], S[i], sLOG2E, "-" + mneg)
    for i in range(8):
        a.v("v_exp_f32", S[i], S[i])
    for i in range(32):
        a.v("v_mul_f32", vr(VO + i), alpha, vr(VO + i))
    a.v("v_mul_f32", vL, alpha, vL)
    a.v("v_add_f32", ps, S[0], S[1])
    a.v("v_add_f32", t2, S[2], S[3])
    a.v("v_add_f32", ps, ps, S[4])
    a.v("v_add_f32", t2, t2, S[5])
    a.v("v_add_f32", ps, ps, S[6])
    a.v("v_add_f32", t2, t2, S[7])
    a.v("v_add_f32", vL, vL, ps)
    a.v("v_add_f32", vL, vL, t2)
    for e in range(4):
        a.v("v_cvt_pk_bf16_f32", vr(VP + e), S[2 * e], S[2 * e + 1])
    if lds:
        a.wait(lgkm=0)
        perms(0)
        perms(1)
    for m in range(8):
        a.mfma(vr(VO + 4 * m, 4), vr(VPB[m % 2], 4), vr(VP, 4), vr(VO + 4 * m, 4))
        if m + 2 < 8:
            perms(m + 2)


def gen_main():
    a = Asm()
    sc = 0
    kn = NAME + "_kernel" if SINGLE else "main_kernel"
    a.raw(f".globl {kn}\n.p2align 8\n.type {kn},@function\n{kn}:")
    prologue_common(a, "L_end")
    stamp(a, 0, False)
    load_x(a)
    a.s("s_lshr_b32", sT2, sWG, 5)
    a.s("s_lshl_b32", sT2, sT2, 11)
    a.s("s_add_u32", sQB, sT2, hex(Q0))
    a.s("s_lshl_b32", sKVB, sWG, 19)
    a.s("s_lshl_b32", sT2, sWV, 13)
    a.s("s_add_u32", sKVB, sKVB, sT2)
    a.s("s_add_u32", sRLB, sKVB, 8 * 32768)
    if ROT:
        a.s("s_lshr_b32", "s6", sWG, ROT - 1)
        a.s("s_and_b32", "s6", "s6", 7)
        a.s("s_lshl_b32", "s6", "s6", 15)
    a.s("s_mov_b32", sLAYER, 0)
    a.s("s_mov_b32", sLAY, 0)
    if not SINGLE:
        q_gather_issue(a)
        for s in range(8):
            issue_slot(a, s, sKVB, s * 32768)
        unpack_x(a)
        q_gather_sum(a)
    else:
        issue_wQ(a, RAW_Q)
        for i in range(4):
            a.v("v_mov_b32", vr(8 + i), -1)
        a.v("v_mov_b32", vr(12), 0)
        a.v("v_lshlrev_b32", vT[4], 4, vTID)
        a.s("s_mul_i32", sT0, sWG, 3072)
        a.s("s_add_u32", sT1, sT0, hex(LSTR))
        a.s("s_cmp_ge_u32", sWV, 3)
        a.s("s_cbranch_scc1", "L_clr_done")
        a.bstore(4, "v[8:11]", vT[4], S_WS, sT0, 0, "sc1")
        a.bstore(4, "v[8:11]", vT[4], S_WS, sT1, 0, "sc1")
        a.s("s_cmp_lg_u32", sWV, 0)
        a.s("s_cbranch_scc1", "L_clr_done")
        a.v("v_lshlrev_b32", vT[4], 2, vTID)
        a.s("s_lshr_b32", sT0, sWR, 6)
        a.s("s_lshl_b32", sT0, sT0, 14)
        a.s("s_and_b32", sT1, sWR, 63)
        a.s("s_lshl_b32", sT1, sT1, 8)
        a.s("s_add_u32", sT0, sT0, sT1)
        a.s("s_add_u32", sT0, sT0, hex(Q0))
        a.bstore(1, vr(8), vT[4], S_WS, sT0, 0, "sc1")
        a.ds_write(1, vr(12), vr(12), SC_QF)
        a.label("L_clr_done")
        for s, t in ORD[:2]:
            issue_slot(a, s, sKVB, t * 32768)
        a.wait(vm=32)
        unpack_x(a)
        unpack(a, RAW_Q, 16, UU)
        a.v("v_lshlrev_b32", vT[3], 3, vTID)
        a.ds_write(2, vT[3], "v[4:5]", SC_X2)
        a.wait(lgkm=0)
        a.barrier()
        a.s("s_cmp_lg_u32", sWV, 0)
        a.s("s_cbranch_scc1", "L_noat")
        a.v("v_mov_b32", vT[4], 1)
        set_exec(a, 1, 0)
        a.batomic_add(vT[4], vr(12), S_DBG, 0, "sc1")
        exec_all(a)
        a.label("L_noat")
        q_gemv(a, SC_X2, hex(Q0), "L_skipQ0")
        a.s("s_cmp_lg_u32", sWV, 0)
        a.s("s_cbranch_scc1", "L_w123")
        a.v("v_mov_b32", vT[4], 0)
        a.label("L_cnt")
        a.bload(1, vT[0], vT[4], S_DBG, 0, 0, "sc1")
        a.wait(vm=0)
        a.v("v_readfirstlane_b32", sT0, vT[0])
        a.s("s_cmp_ge_u32", sT0, 256)
        a.s("s_cbranch_scc1", "L_cntok")
        a.s("s_sub_u32", sTO, sTO, 1)
        a.s("s_cmp_le_i32", sTO, 0)
        a.s("s_cbranch_scc1", "L_cntok")
        a.s("s_sleep", 2)
        a.s("s_branch", "L_cnt")
        a.label("L_cntok")
        q_gather_issue(a)
        for s, t in ORD[2:4]:
            issue_slot(a, s, sKVB, t * 32768)
        a.wait(vm=32)
        sent_check(a, [vr(QG + i) for i in range(32)])
        a.s("s_cbranch_vccz", "L_qok")
        poll(a, lambda: q_gather_issue(a), [vr(QG + i) for i in range(32)])
        a.label("L_qok")
        q_gather_sum(a)
        a.v("v_mov_b32", vT[4], 1)
        a.v("v_mov_b32", vT[5], 0)
        a.ds_write(4, vVOFF, vr(VQ, 4), SC_Q)
        a.ds_write(1, vT[5], vT[4], SC_QF)
        for s, t in ORD[4:]:
            issue_slot(a, s, sKVB, t * 32768)
        a.s("s_branch", "L_pass")
        a.label("L_w123")
        for s, t in ORD[2:]:
            issue_slot(a, s, sKVB, t * 32768, SG)
        a.v("v_mov_b32", vT[5], 0)
        a.label("L_qf")
        a.ds_read(1, vT[4], vT[5], SC_QF)
        a.wait(lgkm=0)
        a.v("v_readfirstlane_b32", sT0, vT[4])
        a.s("s_cmp_lg_u32", sT0, 0)
        a.s("s_cbranch_scc1", "L_qfok")
        a.s("s_sub_u32", sTO, sTO, 1)
        a.s("s_cmp_le_i32", sTO, 0)
        a.s("s_cbranch_scc1", "L_qfok")
        a.s("s_sleep", 1)
        a.s("s_branch", "L_qf")
        a.label("L_qfok")
        a.ds_read(4, vr(VQ, 4), vVOFF, SC_Q)
        a.wait(lgkm=0)

    a.label("L_pass")
    stamp(a, 1)
    a.v("v_mov_b32", vM, "0xff7fffff")
    a.v("v_mov_b32", vL, 0)
    for i in range(32):
        a.v("v_mov_b32", vr(VO + i), 0)
    if DYN:
        dyn_pass(a)
    else:
        for s in range(8):
            tile(a, s)
            issue_slot(a, s, sRLB, s * 32768, int(os.environ.get("GRD", "47")))
        for s in range(8):
            a.wait(vm=min(63, 16 * (7 - s)))
            tile(a, s)

    stamp(a, 2)
    t2 = vT[1]
    a.v("v_mov_b32", t2, vL)
    a.v("v_permlane32_swap_b32", vL, t2)
    a.v("v_add_f32", vL, vL, t2)
    a.v("v_mov_b32", t2, vL)
    a.v("v_permlane16_swap_b32", vL, t2)
    a.v("v_add_f32", vL, vL, t2)
    l = vT[0]
    a.v("v_and_b32", l, 63, vTID)
    a.v("v_bfe_u32", vT[2], l, 2, 2)
    a.s("s_lshl_b32", sT0, sWV, 5)
    a.v("v_lshl_add_u32", vT[3], vT[2], 3, sT0)
    a.s("s_lshl_b32", sT0, sWV, 11)
    a.v("v_lshl_add_u32", vT[4], vT[2], 9, sT0)
    a.v("v_lshrrev_b32", vT[5], 4, l)
    a.v("v_lshl_add_u32", vT[4], vT[5], 7, vT[4])
    set_exec(a, 0x11111111, 0x11111111)
    a.ds_write(2, vT[3], "v[6:7]", sc + SC_ML)
    for m in range(8):
        for r in range(4):
            a.ds_write(1, vT[4], vr(VO + 4 * m + r), sc + SC_O + (8 * r + m) * 4)
    exec_all(a)
    a.wait(lgkm=0)
    a.barrier()
    a.s("s_lshl_b32", sT0, sWV, 3)
    a.v("v_mov_b32", vT[3], sT0)
    a.s("s_lshl_b32", sT0, sWV, 9)
    a.v("v_lshl_add_u32", vT[4], l, 3, sT0)
    mlr = [8, 10, 12, 14]
    orr = [16, 18, 20, 22]
    for w in range(4):
        a.ds_read(2, vr(mlr[w], 2), vT[3], sc + SC_ML + w * 32)
        a.ds_read(2, vr(orr[w], 2), vT[4], sc + SC_O + w * 2048)
    a.wait(lgkm=0)
    Mg = vr(88)
    Lg = vr(89)
    a.v("v_max3_f32", Mg, vr(8), vr(10), vr(12))
    a.v("v_max_f32", Mg, Mg, vr(14))
    for w in range(4):
        a.v("v_sub_f32", vr(mlr[w]), vr(mlr[w]), Mg)
        a.v("v_mul_f32", vr(mlr[w]), sLOG2E, vr(mlr[w]))
        a.v("v_exp_f32", vr(mlr[w]), vr(mlr[w]))
    a.v("v_mul_f32", Lg, vr(8), vr(9))
    a.v("v_mul_f32", vr(90), vr(8), vr(16))
    a.v("v_mul_f32", vr(91), vr(8), vr(17))
    for w in range(1, 4):
        a.v("v_fmac_f32", Lg, vr(mlr[w]), vr(mlr[w] + 1))
        a.v("v_fmac_f32", vr(90), vr(mlr[w]), vr(orr[w]))
        a.v("v_fmac_f32", vr(91), vr(mlr[w]), vr(orr[w] + 1))
    for r in (88, 89, 90, 91):
        a.v("v_min_u32", vr(r), SENT_FIX, vr(r))
    a.s("s_lshr_b32", sT0, sWG, 5)
    a.s("s_lshl_b32", sT0, sT0, 2)
    a.s("s_add_u32", sT0, sT0, sWV)
    a.s("s_lshl_b32", sT0, sT0, 5)
    a.s("s_and_b32", sT1, sWG, 31)
    a.s("s_add_u32", sT0, sT0, sT1)
    a.s("s_lshl_b32", sT1, sT0, 9)
    a.s("s_add_u32", sT1, sT1, sLAY)
    a.s("s_add_u32", sT1, sT1, hex(PO))
    a.v("v_lshlrev_b32", vT[4], 3, l)
    a.bstore(2, "v[90:91]", vT[4], S_WS, sT1, 0, "sc1")
    a.s("s_lshl_b32", sT1, sT0, 3)
    a.s("s_add_u32", sT1, sT1, sLAY)
    a.s("s_add_u32", sT1, sT1, hex(ML))
    a.v("v_mov_b32", vT[4], 0)
    set_exec(a, 1, 0)
    a.bstore(2, "v[88:89]", vT[4], S_WS, sT1, 0, "sc1")
    exec_all(a)

    issue_wO(a, RAW_O)
    issue_wG(a, RAW_G)
    issue_wD(a, RAW_D)
    issue_wQ(a, RAW_Q)

    stamp(a, 3)
    GO = list(range(8, 24)) + list(range(96, 112))
    a.s("s_lshr_b32", sT2, sWR, 4)
    a.s("s_lshl_b32", sT2, sT2, 1)
    a.s("s_lshr_b32", sT3, sWV, 1)
    a.s("s_add_u32", sT2, sT2, sT3)
    a.v("v_and_b32", vT[3], 127, vTID)
    a.v("v_lshlrev_b32", vT[3], 2, vT[3])
    a.v("v_and_b32", vT[4], 31, vTID)
    a.v("v_lshlrev_b32", vT[4], 3, vT[4])
    a.s("s_lshl_b32", sT3, sT2, 14)
    a.s("s_add_u32", sT3, sT3, sLAY)
    a.s("s_add_u32", sT3, sT3, hex(PO))
    a.s("s_lshl_b32", sT4, sT2, 8)
    a.s("s_add_u32", sT4, sT4, sLAY)
    a.s("s_add_u32", sT4, sT4, hex(ML))
    mlp = "v[6:7]"

    def loadsO():
        a.bload(2, mlp, vT[4], S_WS, sT4, 0, "sc1")
        for c in range(32):
            if c % 8 == 0:
                a.s("s_add_u32", sT0, sT3, (c // 8) * 4096)
            a.bload(1, vr(GO[c]), vT[3], S_WS, sT0, (c % 8) * 512, "sc1")
    poll(a, loadsO, [vr(r) for r in GO] + ["v6", "v7"])
    mx, t2 = vT[0], vT[1]
    a.v("v_mov_b32", mx, vM)
    row_allreduce(a, "v_max_f32", [mx])
    a.v("v_mov_b32", t2, mx)
    a.v("v_permlane16_swap_b32", mx, t2)
    a.v("v_max_f32", mx, mx, t2)
    a.v("v_sub_f32", vM, vM, mx)
    a.v("v_mul_f32", vM, sLOG2E, vM)
    a.v("v_exp_f32", vM, vM)
    a.v("v_mul_f32", vL, vL, vM)
    row_allreduce(a, "v_add_f32", [vL])
    a.v("v_mov_b32", t2, vL)
    a.v("v_permlane16_swap_b32", vL, t2)
    a.v("v_add_f32", vL, vL, t2)
    a.v("v_rcp_f32", vL, vL)
    a.v("v_mul_f32", vM, vM, vL)
    for c in range(32):
        a.v("v_readlane_b32", sr(SW0 + c), vM, c)
    o0, o1 = vT[0], vT[1]
    a.v("v_mul_f32", o0, sr(SW0 + 0), vr(GO[0]))
    a.v("v_mul_f32", o1, sr(SW0 + 1), vr(GO[1]))
    for c in range(2, 32, 2):
        a.v("v_fmac_f32", o0, sr(SW0 + c), vr(GO[c]))
        a.v("v_fmac_f32", o1, sr(SW0 + c + 1), vr(GO[c + 1]))
    a.v("v_add_f32", o0, o0, o1)
    round_one(a, o0, vT[2])
    a.v("v_and_b32", vT[3], 0x3c, vTID)
    for i in range(4):
        a.v("v_add_u32", vT[4 + i], 64 * i, vT[3])
    for i in range(4):
        a.ds_bpermute(vr(8 + i), vT[4 + i], o0)
    unpack(a, RAW_O, 16, UU)
    a.wait(lgkm=0)
    acc = RAW_O
    for k in range(8):
        a.v("v_mul_f32", vr(acc + k), vr(8), vr(UU + k))
    for i in range(1, 4):
        for k in range(8):
            a.v("v_fmac_f32", vr(acc + k), vr(8 + i), vr(UU + 8 * i + k))
    for ctrl in ("row_ror:4", "row_ror:8"):
        for k in range(8):
            a.dpp("v_add_f32", vr(acc + k), vr(acc + k), vr(acc + k), ctrl=ctrl)
    a.v("v_lshrrev_b32", vT[3], 4, vTID)
    a.v("v_lshlrev_b32", vT[3], 7, vT[3])
    a.v("v_and_b32", vT[4], 3, vTID)
    a.v("v_lshl_add_u32", vT[3], vT[4], 5, vT[3])
    set_exec(a, 0x000f000f, 0x000f000f)
    a.ds_write(4, vT[3], vr(acc, 4), sc + SC_GO)
    a.ds_write(4, vT[3], vr(acc + 4, 4), sc + SC_GO + 16)
    exec_all(a)
    a.wait(lgkm=0)
    a.barrier()
    a.s("s_cmp_lg_u32", sWV, 0)
    a.s("s_cbranch_scc1", "L_skipO")
    a.v("v_and_b32", vT[3], 31, vTID)
    a.v("v_lshlrev_b32", vT[3], 2, vT[3])
    lds_sum16(a, vT[3], sc + SC_GO, 128, [vr(8 + i) for i in range(16)], vT[0])
    a.v("v_min_u32", vT[0], SENT_FIX, vT[0])
    a.s("s_lshr_b32", sT0, sWR, 4)
    a.s("s_lshl_b32", sT0, sT0, 11)
    a.s("s_and_b32", sT1, sWR, 15)
    a.s("s_lshl_b32", sT1, sT1, 7)
    a.s("s_add_u32", sT0, sT0, sT1)
    a.s("s_add_u32", sT0, sT0, sLAY)
    a.s("s_add_u32", sT0, sT0, hex(YP))
    set_exec(a, 0xffffffff, 0)
    a.bstore(1, vT[0], vT[3], S_WS, sT0, 0, "sc1")
    exec_all(a)
    a.label("L_skipO")

    stamp(a, 4)
    unpack(a, RAW_G, 16, UU)
    gather16_add_x(a, YP, SC_X1, 0)
    a.s("s_cmp_ge_u32", sWR, 224)
    a.s("s_cbranch_scc1", "L_skipG")
    a.wait(lgkm=0)
    a.barrier()
    g_block(a, sT2, sT3)
    a.v("v_bfe_u32", vT[5], vTID, 3, 3)
    a.v("v_lshlrev_b32", vT[5], 2, vT[5])
    a.s("s_lshl_b32", sT0, sT2, 2)
    a.s("s_add_u32", sT0, sT0, sWV)
    a.s("s_lshl_b32", sT0, sT0, 6)
    a.v("v_add_u32", vT[5], sT0, vT[5])
    A = [vr(16), vr(17)]
    ln_from_lds(a, SC_X1, vT[5], [0, 32], A, 8)
    ag, au = 32, 40
    for k in range(8):
        a.v("v_mul_f32", vr(ag + k), A[0], vr(UU + k))
        a.v("v_mul_f32", vr(au + k), A[0], vr(UU + 16 + k))
    for k in range(8):
        a.v("v_fmac_f32", vr(ag + k), A[1], vr(UU + 8 + k))
        a.v("v_fmac_f32", vr(au + k), A[1], vr(UU + 24 + k))
    reduce8(a, [ag, au], 8)
    red_addr(a, vT[5], 8, 512, vT[6])
    set_exec(a, 0x00ff00ff, 0x00ff00ff)
    a.ds_write(2, vT[5], vr(ag, 2), SC_RG)
    a.ds_write(2, vT[5], vr(au, 2), SC_RG + 256)
    exec_all(a)
    a.wait(lgkm=0)
    a.barrier()
    a.s("s_cmp_ge_u32", sWV, 2)
    a.s("s_cbranch_scc1", "L_skipG")
    a.v("v_lshlrev_b32", vT[5], 2, vTID)
    sum4_lds(a, vT[5], SC_RG, 512, [vr(8 + i) for i in range(4)], vT[0])
    a.v("v_min_u32", vT[0], SENT_FIX, vT[0])
    a.v("v_and_b32", vT[5], 63, vTID)
    a.v("v_lshlrev_b32", vT[5], 2, vT[5])
    a.s("s_mul_i32", sT0, sT2, 14336)
    a.s("s_mul_i32", sT1, sWV, 7168)
    a.s("s_add_u32", sT0, sT0, sT1)
    a.s("s_lshl_b32", sT1, sT3, 8)
    a.s("s_add_u32", sT0, sT0, sT1)
    a.s("s_add_u32", sT0, sT0, sLAY)
    a.s("s_add_u32", sT0, sT0, hex(GP))
    a.bstore(1, vT[0], vT[5], S_WS, sT0, 0, "sc1")
    a.label("L_skipG")

    stamp(a, 5)
    unpack(a, RAW_D, 8, UU)
    a.v("v_and_b32", vT[4], 31, vTID)
    a.v("v_min_u32", vT[3], 27, vT[4])
    a.v("v_lshlrev_b32", vT[3], 2, vT[3])
    a.v("v_bfe_u32", vT[5], vTID, 5, 1)
    a.s("s_mov_b32", sT4, 7168)
    a.v("v_mul_lo_u32", vT[5], vT[5], sT4)
    a.v("v_add_u32", vT[3], vT[3], vT[5])
    a.s("s_lshr_b32", sT3, sWR, 4)
    a.s("s_lshl_b32", sT3, sT3, 2)
    a.s("s_add_u32", sT3, sT3, sWV)
    a.s("s_mul_i32", sT3, sT3, 112)
    a.s("s_add_u32", sT3, sT3, sLAY)
    a.s("s_add_u32", sT3, sT3, hex(GP))

    def loadsD():
        for p in range(8):
            a.s("s_add_u32", sT0, sT3, p * 14336)
            a.bload(1, vr(8 + p), vT[3], S_WS, sT0, 0, "sc1")
    poll(a, loadsD, [vr(8 + i) for i in range(8)], 1)
    for n in (4, 2, 1):
        for i in range(n):
            a.v("v_add_f32", vr(8 + i), vr(8 + i), vr(8 + i + n))
    g_, u_ = vr(8), vr(9)
    round_one(a, g_, vT[0])
    a.v("v_mov_b32", u_, g_)
    a.v("v_permlane32_swap_b32", g_, u_)
    a.v("v_cmp_lt_f32", "vcc", 0, g_)
    a.v("v_cndmask_b32", vT[0], 0, "1.0", "vcc")
    a.v("v_mul_f32", g_, g_, vT[0])
    a.v("v_mul_f32", g_, g_, u_)
    round_one(a, g_, vT[0])
    a.v("v_cmp_gt_u32", "vcc", 28, vT[4])
    a.v("v_cndmask_b32", g_, 0, g_, "vcc")
    a.v("v_and_b32", vT[3], 0x3c, vTID)
    a.v("v_add_u32", vT[5], 64, vT[3])
    a.ds_bpermute(vr(10), vT[3], g_)
    a.ds_bpermute(vr(11), vT[5], g_)
    a.wait(lgkm=0)
    acc = 32
    for k in range(8):
        a.v("v_mul_f32", vr(acc + k), vr(10), vr(UU + k))
    for k in range(8):
        a.v("v_fmac_f32", vr(acc + k), vr(11), vr(UU + 8 + k))
    reduce8(a, [acc], 4)
    red_addr(a, vT[5], 4, 128, vT[6])
    set_exec(a, 0x000f000f, 0x000f000f)
    a.ds_write(2, vT[5], vr(acc, 2), SC_RD)
    exec_all(a)
    a.wait(lgkm=0)
    a.barrier()
    a.s("s_cmp_lg_u32", sWV, 0)
    a.s("s_cbranch_scc1", "L_skipD")
    a.v("v_and_b32", vT[5], 31, vTID)
    a.v("v_lshlrev_b32", vT[5], 2, vT[5])
    sum4_lds(a, vT[5], SC_RD, 128, [vr(8 + i) for i in range(4)], vT[0])
    a.v("v_min_u32", vT[0], SENT_FIX, vT[0])
    a.s("s_lshr_b32", sT0, sWR, 4)
    a.s("s_lshl_b32", sT0, sT0, 11)
    a.s("s_and_b32", sT1, sWR, 15)
    a.s("s_lshl_b32", sT1, sT1, 7)
    a.s("s_add_u32", sT0, sT0, sT1)
    a.s("s_add_u32", sT0, sT0, sLAY)
    a.s("s_add_u32", sT0, sT0, hex(DPP))
    set_exec(a, 0xffffffff, 0)
    a.bstore(1, vT[0], vT[5], S_WS, sT0, 0, "sc1")
    exec_all(a)
    a.label("L_skipD")
    stamp(a, 6)
    a.s("s_mul_i32", sT0, sWG, sLAYER)
    a.s("s_cmp_lg_u32", sT0, 0)
    a.s("s_cbranch_scc1", "L_end")

    unpack(a, RAW_Q, 16, UU)
    gather16_add_x(a, DPP, SC_X2, 2)
    a.s("s_cmp_eq_u32", sLAYER, 0)
    a.s("s_cbranch_scc1", "L_stQ")
    a.v("v_cvt_pk_bf16_f32", vT[0], vX0, vX1)
    a.v("v_lshlrev_b32", vT[3], 2, vTID)
    a.bstore(1, vT[0], vT[3], S_OUT, 0, 0)
    stamp(a, 7)
    a.s("s_branch", "L_end")
    a.label("L_stQ")
    a.wait(lgkm=0)
    a.barrier()
    q_gemv(a, SC_X2, hex(LSTR + QP), "L_skipQ")
    stamp(a, 7)
    a.s("s_mov_b32", sLAYER, 1)
    a.s("s_mov_b32", sLAY, hex(LSTR))
    a.s("s_mov_b32", sRLB, sKVB)
    a.s("s_lshr_b32", sT2, sWG, 5)
    a.s("s_lshl_b32", sT2, sT2, 11)
    a.s("s_add_u32", sQB, sT2, hex(LSTR + QP))
    poll(a, lambda: q_gather_issue(a), [vr(QG + i) for i in range(32)])
    q_gather_sum(a)
    a.s("s_branch", "L_pass")
    a.label("L_end", pad=False)
    a.raw("  s_endpgm")
    return a.text()


def gen_init():
    a = Asm()
    kn = "init_kernel"
    a.raw(f".globl {kn}\n.p2align 8\n.type {kn},@function\n{kn}:")
    prologue_common(a, "L_iend")
    load_x(a)
    issue_wQ(a, RAW_Q)
    for i in range(4):
        a.v("v_mov_b32", vr(8 + i), -1)
    a.v("v_lshlrev_b32", vT[4], 4, vTID)
    a.s("s_mul_i32", sT0, sWG, 3072)
    a.s("s_add_u32", sT1, sT0, hex(LSTR))
    a.s("s_cmp_ge_u32", sWV, 3)
    a.s("s_cbranch_scc1", "L_iskip")
    a.bstore(4, "v[8:11]", vT[4], S_WS, sT0, 0)
    a.bstore(4, "v[8:11]", vT[4], S_WS, sT1, 0)
    a.label("L_iskip")
    a.wait(vm=0)
    unpack_x(a)
    unpack(a, RAW_Q, 16, UU)
    a.v("v_lshlrev_b32", vT[3], 3, vTID)
    a.ds_write(2, vT[3], "v[4:5]", SC_X2)
    a.wait(lgkm=0)
    a.barrier()
    q_gemv(a, SC_X2, hex(Q0), "L_iskipQ")
    a.label("L_iend", pad=False)
    a.raw("  s_endpgm")
    return a.text()


def kd(name, nv, acc):
    return f""".amdhsa_kernel {name}
  .amdhsa_next_free_vgpr {nv}
  .amdhsa_next_free_sgpr 102
  .amdhsa_accum_offset {acc}
  .amdhsa_group_segment_fixed_size 0
  .amdhsa_kernarg_size 96
  .amdhsa_user_sgpr_count 2
  .amdhsa_user_sgpr_kernarg_segment_ptr 1
  .amdhsa_system_sgpr_workgroup_id_x 1
.end_amdhsa_kernel
"""


def main():
    ref = open(f"cdna_kernels/{NAME}.s.ref").read()
    head = []
    for line in ref.splitlines():
        if line.startswith("; @launch"):
            break
        head.append(line)
    out = "\n".join(head) + "\n"
    if SINGLE:
        out += "; @launch grid=(256,1,1) block=(256,1,1) lds=163840\n"
    else:
        out += f"; @launch kernel=init_kernel grid=(256,1,1) block=(256,1,1) lds={SC_END}\n"
        out += "; @launch kernel=main_kernel grid=(256,1,1) block=(256,1,1) lds=163840\n"
    out += '.amdgcn_target "amdgcn-amd-amdhsa--gfx950"\n.text\n'
    if not SINGLE:
        out += gen_init()
    out += gen_main()
    out += '.section .rodata,"a"\n.p2align 6\n'
    if not SINGLE:
        out += kd("init_kernel", 128, 128)
        out += ".p2align 6\n"
    out += kd(NAME + "_kernel" if SINGLE else "main_kernel", 512, 256)
    dst = sys.argv[1] if len(sys.argv) > 1 else f"cdna_kernels/{NAME}.s"
    open(dst, "w").write(out)
    print("wrote", dst, len(out), "bytes")


if __name__ == "__main__":
    main()
```

```python
import sys
from asmlib import *

NAME = "interleave_layers__gqa_block_cached__glu_gated_reglu__decode"
EMU_ROUND = True
import os
STAMPS = int(os.environ.get("STAMPS", "0"))
SINGLE = bool(int(os.environ.get("SINGLE", "1")))
PF = int(os.environ.get("PF", "0"))
PFPOL = os.environ.get("PFPOL", "")
WARM = int(os.environ.get("WARM", "0"))
KVPOL = os.environ.get("KVPOL", "nt")
DYN = int(os.environ.get("DYN", "0"))
ROT = int(os.environ.get("ROT", "0"))
REV = int(os.environ.get("REV", "0"))
SG = int(os.environ.get("SG", "16"))

LSTR = 0x100000
QP, DPP, YP, GP, ML, PO, ZONE = 0x0, 0x10000, 0x18000, 0x20000, 0x3C000, 0x40000, 0xC0000
TKT = 0x3E000
Q0 = 0x200000
WS_BYTES = 0x300000

SC_O = 0
SC_ML = 8192
SC_GO = 9216
SC_X1 = 11264
SC_X2 = 13312
SC_RG = 15360
SC_RD = 17408
SC_RQ = 17920
SC_Q = 18944
SC_QF = 19968
SC_END = 20224

S_K, S_V, S_WQ, S_WO, S_WG, S_WU, S_WD, S_WS, S_X, S_OUT = [sr(8 + 4 * i, 4) for i in range(10)]
sWG, sWV = "s2", "s3"
sLAYER, sKVB, sRLB, sT0, sT1, sLAY, sQB, sTO = "s48", "s49", "s50", "s51", "s52", "s53", "s54", "s55"
sC, sLOG2E, sSELLO, sSELHI, sT2, sLDSW, sT3, sT4 = "s56", "s57", "s58", "s59", "s60", "s61", "s62", "s63"
SW0 = 64
S_DBG = sr(88, 4)
sWR, sWRG = "s4", "s5"

vTID, vKOFF, vVOFF, vLDS = "v0", "v1", "v2", "v3"
vX0, vX1 = "v4", "v5"
vM, vL = "v6", "v7"
VQ = 8
VP = 12
VPB = (16, 20)
vT = [f"v{24+i}" for i in range(8)]
VO = 32
VD = 64
VTMP = 96
VV = 128

RAW_O, RAW_G, RAW_Q, RAW_D = 32, 48, 64, 80
UU = 96
GATH = list(range(8, 24)) + list(range(32, 48))

C_SCALE = 0x3DB504F3
LOG2E = 0x3FB8AA3B
SENT_FIX = "0xfffffffe"


def f32bits(x):
    import struct
    return struct.unpack("<I", struct.pack("<f", x))[0]


assert f32bits(128 ** -0.5) == C_SCALE, hex(f32bits(128 ** -0.5))


def set_exec(a, lo, hi):
    a.s("s_mov_b32", "exec_lo", hex(lo))
    a.s("s_mov_b32", "exec_hi", hex(hi))


def exec_all(a):
    a.s("s_mov_b64", "exec", "-1")


def round_pair(a, x0, x1, tmp):
    a.v("v_cvt_pk_bf16_f32", tmp, x0, x1)
    a.v("v_lshlrev_b32", x0, 16, tmp)
    a.v("v_and_b32", x1, "0xffff0000", tmp)


def round_one(a, x0, tmp):
    a.v("v_cvt_pk_bf16_f32", tmp, x0, x0)
    a.v("v_lshlrev_b32", x0, 16, tmp)


def row_allreduce(a, op, regs):
    for ctrl in ("quad_perm:[1,0,3,2]", "quad_perm:[2,3,0,1]", "row_half_mirror", "row_mirror"):
        for r in regs:
            a.dpp(op, r, r, r, ctrl=ctrl)


def prologue_common(a, lbl_end):
    a.s("s_cmp_ge_u32", sWG, 256)
    a.s("s_cbranch_scc1", lbl_end)
    a.raw("  s_load_dwordx16 s[64:79], s[0:1], 0")
    a.raw("  s_load_dwordx8 s[80:87], s[0:1], 64")
    a.v("v_lshrrev_b32", vT[0], 6, vTID)
    a.v("v_readfirstlane_b32", sWV, vT[0])
    a.raw("  s_waitcnt lgkmcnt(0)")
    srds = [(8, 66, 0x8000000), (12, 68, 0x8000000), (16, 70, 0x400000), (20, 72, 0x400000),
            (24, 76, 512 * 1792 * 2), (28, 78, 512 * 1792 * 2), (32, 80, 1792 * 512 * 2),
            (36, 86, WS_BYTES), (40, 64, 1024), (44, 82, 1024), (88, 84, 256)] + ([(96, 84, 256)] if STAMPS == 2 else [])
    for d, p, n in srds:
        a.s("s_mov_b32", sr(d), sr(p))
        a.s("s_and_b32", sr(d + 1), sr(p + 1), "0xffff")
        a.s("s_mov_b32", sr(d + 2), hex(n))
        a.s("s_mov_b32", sr(d + 3), "0x00020000")
    a.s("s_mov_b32", sC, hex(C_SCALE))
    a.s("s_mov_b32", sLOG2E, hex(LOG2E))
    a.s("s_mov_b32", sSELLO, "0x05040100")
    a.s("s_mov_b32", sSELHI, "0x07060302")
    a.s("s_mov_b32", sTO, hex(1 << 18))
    a.s("s_and_b32", sT0, sWG, 7)
    a.s("s_lshr_b32", sT1, sWG, 3)
    a.s("s_lshl_b32", sWR, sT0, 5)
    a.s("s_add_u32", sWR, sWR, sT1)
    a.s("s_mul_i32", sWRG, sT0, 28)
    a.s("s_add_u32", sWRG, sWRG, sT1)
    l = vT[0]
    a.v("v_and_b32", l, 63, vTID)
    a.v("v_lshlrev_b32", vVOFF, 4, l)
    a.v("v_bfe_u32", vT[1], l, 2, 2)
    a.v("v_lshlrev_b32", vKOFF, 8, vT[1])
    a.v("v_lshrrev_b32", vT[2], 4, l)
    a.v("v_lshl_add_u32", vKOFF, vT[2], 6, vKOFF)
    a.v("v_and_b32", vT[3], 3, l)
    a.v("v_lshl_add_u32", vKOFF, vT[3], 4, vKOFF)
    a.s("s_lshl_b32", sLDSW, sWV, 15)
    a.s("s_add_u32", sLDSW, sLDSW, 32768)
    a.v("v_add_u32", vLDS, sLDSW, vVOFF)


def load_x(a):
    a.v("v_lshlrev_b32", vT[4], 2, vTID)
    a.bload(1, vX0, vT[4], S_X, 0)


def unpack_x(a):
    a.v("v_and_b32", vX1, "0xffff0000", vX0)
    a.v("v_lshlrev_b32", vX0, 16, vX0)


class _Dma:
    def __init__(self, a):
        self.a = a

    def __getattr__(self, n):
        return getattr(self.a, n)

    def bload(self, width, dst, voff, srd, soff, offset=0, flags=""):
        self.a.bload_lds(voff, srd, soff, offset, flags)


def warm_weights(a):
    a.s("s_lshl_b32", "m0", sWV, 10)
    d = _Dma(a)
    issue_wO(d, 0)
    issue_wG(d, 0)
    issue_wD(d, 0)
    issue_wQ(d, 0)


def lane_voff(a, dst, sh_c, rowbytes, tmp):
    a.v("v_and_b32", tmp, 63, vTID)
    a.v("v_lshrrev_b32", dst, sh_c, tmp)
    a.s("s_mov_b32", sT4, rowbytes)
    a.v("v_mul_lo_u32", dst, dst, sT4)
    a.v("v_and_b32", tmp, (1 << sh_c) - 1, tmp)
    a.v("v_lshl_add_u32", dst, tmp, 4, dst)


def g_block(a, rb, cb):
    a.s("s_mul_i32", rb, sWR, 2341)
    a.s("s_lshr_b32", rb, rb, 16)
    a.s("s_mul_i32", cb, rb, 28)
    a.s("s_sub_u32", cb, sWR, cb)


def issue_wQ(a, raw):
    lane_voff(a, vT[5], 3, 8192, vT[6])
    a.s("s_lshr_b32", sT0, sWR, 6)
    a.s("s_lshl_b32", sT0, sT0, 20)
    a.s("s_lshl_b32", sT1, sWV, 18)
    a.s("s_add_u32", sT0, sT0, sT1)
    a.s("s_and_b32", sT1, sWR, 63)
    a.s("s_lshl_b32", sT1, sT1, 7)
    a.s("s_add_u32", sT0, sT0, sT1)
    for i in range(4):
        a.bload(4, vr(raw + 4 * i, 4), vT[5], S_WQ, sT0, 0)
        if i < 3:
            a.s("s_add_u32", sT0, sT0, 65536)


def issue_wG(a, raw):
    lane_voff(a, vT[5], 3, 3584, vT[6])
    g_block(a, sT2, sT3)
    a.s("s_lshl_b32", sT0, sT2, 2)
    a.s("s_add_u32", sT0, sT0, sWV)
    a.s("s_mul_i32", sT0, sT0, 16 * 3584)
    a.s("s_lshl_b32", sT1, sT3, 7)
    a.s("s_add_u32", sT0, sT0, sT1)
    a.s("s_add_u32", sT1, sT0, 8 * 3584)
    a.bload(4, vr(raw + 0, 4), vT[5], S_WG, sT0, 0)
    a.bload(4, vr(raw + 4, 4), vT[5], S_WG, sT1, 0)
    a.bload(4, vr(raw + 8, 4), vT[5], S_WU, sT0, 0)
    a.bload(4, vr(raw + 12, 4), vT[5], S_WU, sT1, 0)


def issue_wD(a, raw):
    lane_voff(a, vT[5], 2, 1024, vT[6])
    a.s("s_lshr_b32", sT0, sWR, 4)
    a.s("s_lshl_b32", sT0, sT0, 2)
    a.s("s_add_u32", sT0, sT0, sWV)
    a.s("s_mul_i32", sT0, sT0, 28 * 1024)
    a.s("s_and_b32", sT1, sWR, 15)
    a.s("s_lshl_b32", sT1, sT1, 6)
    a.s("s_add_u32", sT0, sT0, sT1)
    a.s("s_add_u32", sT1, sT0, 16384)
    a.bload(4, vr(raw + 0, 4), vT[5], S_WD, sT0, 0)
    a.bload(4, vr(raw + 4, 4), vT[5], S_WD, sT1, 0)


def issue_wO(a, raw):
    lane_voff(a, vT[5], 2, 1024, vT[6])
    a.s("s_lshr_b32", sT0, sWR, 4)
    a.s("s_lshl_b32", sT0, sT0, 18)
    a.s("s_lshl_b32", sT1, sWV, 16)
    a.s("s_add_u32", sT0, sT0, sT1)
    a.s("s_and_b32", sT1, sWR, 15)
    a.s("s_lshl_b32", sT1, sT1, 6)
    a.s("s_add_u32", sT0, sT0, sT1)
    for i in range(4):
        a.bload(4, vr(raw + 4 * i, 4), vT[5], S_WO, sT0, 0)
        if i < 3:
            a.s("s_add_u32", sT0, sT0, 16384)


def unpack(a, raw, n, dst):
    for i in range(n):
        a.v("v_lshlrev_b32", vr(dst + 2 * i), 16, vr(raw + i))
        a.v("v_and_b32", vr(dst + 2 * i + 1), "0xffff0000", vr(raw + i))


def lds_sum16(a, addr, base, stride, regs, out):
    for p in range(16):
        a.ds_read(1, regs[p], addr, base + p * stride)
    a.wait(lgkm=0)
    n = 16
    while n > 1:
        for i in range(n // 2):
            a.v("v_add_f32", regs[i], regs[i], regs[i + n // 2])
        n //= 2
    if out != regs[0]:
        a.v("v_mov_b32", out, regs[0])


def wave_allreduce_add(a, x, t):
    row_allreduce(a, "v_add_f32", [x])
    a.v("v_mov_b32", t, x)
    a.v("v_permlane32_swap_b32", x, t)
    a.v("v_add_f32", x, x, t)
    a.v("v_mov_b32", t, x)
    a.v("v_permlane16_swap_b32", x, t)
    a.v("v_add_f32", x, x, t)


def ln_from_lds(a, scx, vrows, offs, outs, tq):
    s, mean, t, tmp, la = vT[0], vT[1], vT[2], vT[3], vT[4]
    a.v("v_and_b32", la, 63, vTID)
    a.v("v_lshlrev_b32", la, 5, la)
    a.ds_read(4, vr(tq, 4), la, scx)
    a.ds_read(4, vr(tq + 4, 4), la, scx + 16)
    for o, off in zip(outs, offs):
        a.ds_read(1, o, vrows, scx + off)
    a.wait(lgkm=len(outs))
    X = [vr(tq + k) for k in range(8)]
    a.v("v_add_f32", s, X[0], X[1])
    a.v("v_add_f32", t, X[2], X[3])
    a.v("v_add_f32", s, s, X[4])
    a.v("v_add_f32", t, t, X[5])
    a.v("v_add_f32", s, s, X[6])
    a.v("v_add_f32", t, t, X[7])
    a.v("v_add_f32", s, s, t)
    wave_allreduce_add(a, s, t)
    a.v("v_mul_f32", mean, hex(f32bits(1.0 / 512)), s)
    for k in range(8):
        a.v("v_sub_f32", X[k], X[k], mean)
    a.v("v_mul_f32", s, X[0], X[0])
    a.v("v_mul_f32", t, X[1], X[1])
    for k in range(2, 8, 2):
        a.v("v_fmac_f32", s, X[k], X[k])
        a.v("v_fmac_f32", t, X[k + 1], X[k + 1])
    a.v("v_add_f32", s, s, t)
    wave_allreduce_add(a, s, t)
    a.v("v_mul_f32", s, hex(f32bits(1.0 / 512)), s)
    round_pair(a, mean, s, tmp)
    a.v("v_add_f32", s, hex(f32bits(1e-5)), s)
    round_one(a, s, tmp)
    a.v("v_sqrt_f32", s, s)
    round_one(a, s, tmp)
    a.v("v_rcp_f32", s, s)
    a.wait(lgkm=0)
    for i in range(0, len(outs), 2):
        a0, a1 = outs[i], outs[i + 1]
        a.v("v_sub_f32", a0, a0, mean)
        a.v("v_sub_f32", a1, a1, mean)
        round_pair(a, a0, a1, tmp)
        a.v("v_mul_f32", a0, a0, s)
        a.v("v_mul_f32", a1, a1, s)
        round_pair(a, a0, a1, tmp)


def reduce8(a, accs, nc):
    for b in accs:
        for k in range(4):
            a.v("v_permlane32_swap_b32", vr(b + k), vr(b + k + 4))
    for b in accs:
        for k in range(4):
            a.v("v_add_f32", vr(b + k), vr(b + k), vr(b + k + 4))
    for b in accs:
        a.v("v_permlane16_swap_b32", vr(b + 0), vr(b + 2))
        a.v("v_permlane16_swap_b32", vr(b + 1), vr(b + 3))
    for b in accs:
        a.v("v_add_f32", vr(b + 0), vr(b + 0), vr(b + 2))
        a.v("v_add_f32", vr(b + 1), vr(b + 1), vr(b + 3))
    steps = {8: ["row_ror:8"], 4: ["row_ror:4", "row_ror:8"]}[nc]
    for ctrl in steps:
        for b in accs:
            a.dpp("v_add_f32", vr(b), vr(b), vr(b), ctrl=ctrl)
            a.dpp("v_add_f32", vr(b + 1), vr(b + 1), vr(b + 1), ctrl=ctrl)


def red_addr(a, dst, nc, wvstride, tmp):
    a.v("v_and_b32", tmp, nc - 1, vTID)
    a.v("v_lshlrev_b32", dst, 5, tmp)
    a.v("v_bfe_u32", tmp, vTID, 4, 2)
    a.v("v_lshl_add_u32", dst, tmp, 3, dst)
    a.s("s_mul_i32", sT4, sWV, wvstride)
    a.v("v_add_u32", dst, sT4, dst)


def sum4_lds(a, addr, base, stride, regs, out):
    for p in range(4):
        a.ds_read(1, regs[p], addr, base + p * stride)
    a.wait(lgkm=0)
    a.v("v_add_f32", regs[0], regs[0], regs[1])
    a.v("v_add_f32", regs[2], regs[2], regs[3])
    a.v("v_add_f32", out, regs[0], regs[2])


def q_gemv(a, scx, base_s, lbl):
    a.v("v_bfe_u32", vT[5], vTID, 3, 3)
    a.v("v_lshlrev_b32", vT[5], 2, vT[5])
    a.s("s_lshr_b32", sT0, sWR, 6)
    a.s("s_lshl_b32", sT0, sT0, 9)
    a.s("s_lshl_b32", sT1, sWV, 7)
    a.s("s_add_u32", sT0, sT0, sT1)
    a.v("v_add_u32", vT[5], sT0, vT[5])
    A = [vr(16 + i) for i in range(4)]
    ln_from_lds(a, scx, vT[5], [32 * i for i in range(4)], A, 8)
    acc = 32
    for k in range(8):
        a.v("v_mul_f32", vr(acc + k), A[0], vr(UU + k))
    for i in range(1, 4):
        for k in range(8):
            a.v("v_fmac_f32", vr(acc + k), A[i], vr(UU + 8 * i + k))
    reduce8(a, [acc], 8)
    red_addr(a, vT[5], 8, 256, vT[6])
    set_exec(a, 0x00ff00ff, 0x00ff00ff)
    a.ds_write(2, vT[5], vr(acc, 2), SC_RQ)
    exec_all(a)
    a.wait(lgkm=0)
    a.barrier()
    a.s("s_cmp_lg_u32", sWV, 0)
    a.s("s_cbranch_scc1", lbl)
    a.v("v_lshlrev_b32", vT[5], 2, vTID)
    sum4_lds(a, vT[5], SC_RQ, 256, [vr(8 + i) for i in range(4)], vT[0])
    a.v("v_min_u32", vT[0], SENT_FIX, vT[0])
    a.s("s_lshr_b32", sT0, sWR, 6)
    a.s("s_lshl_b32", sT0, sT0, 14)
    a.s("s_and_b32", sT1, sWR, 63)
    a.s("s_lshl_b32", sT1, sT1, 8)
    a.s("s_add_u32", sT0, sT0, sT1)
    a.s("s_add_u32", sT0, sT0, base_s)
    a.bstore(1, vT[0], vT[5], S_WS, sT0, 0, "sc1")
    a.label(lbl)


QG = 64


def q_gather_issue(a):
    a.v("v_lshlrev_b32", vT[3], 1, vKOFF)
    for p in range(4):
        a.s("s_add_u32", sT0, sQB, p * 16384)
        a.bload(4, vr(QG + 8 * p, 4), vT[3], S_WS, sT0, 0, "sc1")
        a.bload(4, vr(QG + 8 * p + 4, 4), vT[3], S_WS, sT0, 16, "sc1")


def q_gather_sum(a):
    for k in range(8):
        a.v("v_add_f32", vr(QG + k), vr(QG + k), vr(QG + 8 + k))
        a.v("v_add_f32", vr(QG + 16 + k), vr(QG + 16 + k), vr(QG + 24 + k))
    for k in range(8):
        a.v("v_add_f32", vr(QG + k), vr(QG + k), vr(QG + 16 + k))
    for e in range(4):
        a.v("v_cvt_pk_bf16_f32", vr(VQ + e), vr(QG + 2 * e), vr(QG + 2 * e + 1))


def gather16_add_x(a, base_off, scx, tch=None):
    a.v("v_lshlrev_b32", vT[3], 3, vTID)
    a.s("s_add_u32", sT3, sLAY, hex(base_off))

    def loads():
        for p in range(16):
            if p % 2 == 0:
                a.s("s_add_u32", sT0, sT3, (p // 2) * 4096)
            a.bload(2, vr(GATH[2 * p], 2), vT[3], S_WS, sT0, (p % 2) * 2048, "sc1")
    poll(a, loads, [vr(r) for r in GATH], tch)
    n = 16
    while n > 1:
        for i in range(n // 2):
            for h in range(2):
                a.v("v_add_f32", vr(GATH[2 * i + h]), vr(GATH[2 * i + h]), vr(GATH[2 * (i + n // 2) + h]))
        n //= 2
    round_pair(a, vr(GATH[0]), vr(GATH[1]), vT[0])
    a.v("v_add_f32", vX0, vX0, vr(GATH[0]))
    a.v("v_add_f32", vX1, vX1, vr(GATH[1]))
    round_pair(a, vX0, vX1, vT[0])
    if scx is not None:
        a.ds_write(2, vT[3], "v[4:5]", scx)


_pollid = [0]


def stamp(a, idx, layered=True):
    if not STAMPS:
        return
    if STAMPS == 2:
        _pollid[0] += 1
        lb = f"L_st{_pollid[0]}"
        a.s("s_and_b32", "s100", sWG, 31)
        a.s("s_or_b32", "s100", "s100", sWV)
        a.s("s_cmp_lg_u32", "s100", 0)
        a.s("s_cbranch_scc1", lb)
        a.raw("  s_memrealtime s[100:101]")
        a.raw("  s_waitcnt lgkmcnt(0)")
        if idx == 0:
            a.s("s_not_b32", "s100", "s100")
        a.v("v_mov_b32", vT[7], "s100")
        a.s("s_lshl_b32", "s101", sLAYER, 5) if layered else a.s("s_mov_b32", "s101", 0)
        a.s("s_add_u32", "s101", "s101", 4 + 4 * idx)
        a.v("v_mov_b32", vT[0], 0)
        set_exec(a, 1, 0)
        a.raw(f"  buffer_atomic_umax {vT[7]}, {vT[0]}, s[96:99], s101 offen sc1")
        exec_all(a)
        a.label(lb)
        return
    a.raw("  s_memrealtime s[98:99]")
    a.s("s_lshl_b32", "s100", sWG, 2)
    a.s("s_add_u32", "s100", "s100", sWV)
    a.s("s_lshl_b32", "s100", "s100", 7)
    a.s("s_add_u32", "s100", "s100", hex(0x280000 + idx * 4))
    if layered:
        a.s("s_lshl_b32", "s101", sLAYER, 6)
        a.s("s_add_u32", "s100", "s100", "s101")
    a.raw("  s_waitcnt lgkmcnt(0)")
    a.v("v_mov_b32", vT[7], "s98")
    a.v("v_mov_b32", vT[0], 0)
    set_exec(a, 1, 0)
    a.bstore(1, vT[7], vT[0], S_WS, "s100", 0)
    exec_all(a)


PFD = [int(x) for x in os.environ.get("PFD", "0,0,0").split(",")]


def touch(a, ks):
    _pollid[0] += 1
    lb = f"L_tch{_pollid[0]}"
    a.s("s_cmp_lg_u32", sLAYER, 0)
    a.s("s_cbranch_scc1", lb + "a")
    a.s("s_lshr_b32", sT1, sWG, 3)
    a.s("s_and_b32", sT1, sT1, 3)
    a.s("s_lshl_b32", sT1, sT1, 16)
    a.s("s_add_u32", sT1, sT1, sKVB)
    a.s("s_add_u32", sT0, sT1, 32768)
    a.v("v_lshlrev_b32", vM, 3, vVOFF)
    for k in ks:
        a.bload(1, vL, vM, S_K if k % 2 == 0 else S_V, sT1 if k < 2 else sT0, 0, PFPOL)
    a.wait(vm=len(ks))
    a.s("s_branch", lb + "b")
    a.label(lb + "a")
    a.wait(vm=0)
    a.label(lb + "b")


def poll(a, issue_loads, regs, tch=None):
    _pollid[0] += 1
    n = _pollid[0]
    if tch is not None and PFD[tch]:
        k0 = sum(PFD[:tch])
        issue_loads()
        touch(a, list(range(k0, k0 + PFD[tch])))
        sent_check(a, regs)
        a.s("s_cbranch_vccz", f"L_pdone{n}")
    a.label(f"L_poll{n}")
    issue_loads()
    a.wait(vm=0)
    sent_check(a, regs)
    a.s("s_cbranch_vccz", f"L_pdone{n}")
    a.s("s_sub_u32", sTO, sTO, 1)
    a.s("s_cmp_le_i32", sTO, 0)
    a.s("s_cbranch_scc1", f"L_pdone{n}")
    a.s("s_sleep", 1)
    a.s("s_branch", f"L_poll{n}")
    a.label(f"L_pdone{n}")


def sent_check(a, regs):
    acc = vT[7]
    rs = list(regs)
    a.v("v_max_u32", acc, rs[0], rs[1] if len(rs) > 1 else rs[0])
    rs = rs[2:]
    while rs:
        if len(rs) >= 2:
            a.v("v_max3_u32", acc, acc, rs[0], rs[1])
            rs = rs[2:]
        else:
            a.v("v_max_u32", acc, acc, rs[0])
            rs = rs[1:]
    a.v("v_cmp_eq_u32", "vcc", -1, acc)
    a.nop(1)


def slot_kreg(s, i):
    return ar(32 * s + 4 * i, 4)


def slot_vraw(s, i):
    if s < 4:
        return vr(VV + 32 * s + 4 * i, 4)
    return ar(192 + 32 * (s - 4) + 4 * i, 4)


def issue_slot(a, s, sbase, toff, guard=47):
    a.wait(vm=guard)
    if ROT:
        a.s("s_add_u32", sT0, "s6", toff)
        a.s("s_and_b32", sT0, sT0, 7 * 32768)
        a.s("s_add_u32", sT0, sT0, sbase)
        a.s("s_add_u32", sT1, sT0, 4096)
    else:
        a.s("s_add_u32", sT0, sbase, toff)
        a.s("s_add_u32", sT1, sbase, toff + 4096)
    slot_loads(a, s)


def slot_loads(a, s):
    if s < 6:
        for i in range(8):
            a.bload(4, slot_kreg(s, i), vKOFF, S_K, sT0 if i < 4 else sT1, (i % 4) * 1024, KVPOL)
        for i in range(8):
            a.bload(4, slot_vraw(s, i), vVOFF, S_V, sT0 if i < 4 else sT1, (i % 4) * 1024, KVPOL)
    else:
        for half, (srd, voff) in enumerate(((S_K, vKOFF), (S_V, vVOFF))):
            for hi in range(2):
                a.s("s_add_u32", "m0", sLDSW, (s - 6) * 16384 + half * 8192 + hi * 4096)
                for i in range(4):
                    a.bload_lds(voff, srd, sT0 if hi == 0 else sT1, i * 1024, KVPOL)


ORD = [(6, 8), (7, 9), (0, 0), (1, 1), (2, 2), (3, 3), (4, 4), (5, 5)] if DYN else [(i, i) for i in range(8)]
sE = {6: "s6", 7: "s7"}
sPB, sNP, sCT = "s64", "s65", "s66"
vTK = {6: vT[5], 7: vT[6]}
vZ = vT[7]


def ticket(a, x):
    a.v("v_mov_b32", vTK[x], 1)
    set_exec(a, 1, 0)
    a.raw(f"  buffer_atomic_add {vTK[x]}, {vZ}, {S_WS}, {sCT} offen sc0 sc1")
    a.hist.append((Ins("vmem", regs_of(vTK[x]), regs_of(vTK[x]) | regs_of(vZ)), 1))
    exec_all(a)


def reload(a, x):
    _pollid[0] += 1
    n = _pollid[0]
    a.v("v_readfirstlane_b32", sT2, vTK[x])
    a.s("s_add_u32", sT2, sT2, 1)
    a.s("s_cmp_ge_u32", sT2, sNP)
    a.s("s_cbranch_scc1", f"L_ex{n}")
    a.s("s_lshr_b32", sT3, sT2, 2)
    a.s("s_and_b32", sT3, sT3, 31)
    a.s("s_lshl_b32", sT3, sT3, 19)
    a.s("s_lshr_b32", sT4, sT2, 7)
    a.s("s_lshl_b32", sT4, sT4, 15)
    a.s("s_add_u32", sT3, sT3, sT4)
    a.s("s_and_b32", sT4, sT2, 3)
    a.s("s_lshl_b32", sT4, sT4, 13)
    a.s("s_add_u32", sT3, sT3, sT4)
    a.s("s_add_u32", sT0, sT3, sPB)
    a.s("s_branch", f"L_ld{n}")
    a.label(f"L_ex{n}")
    a.s("s_mov_b32", sE[x], 2)
    a.s("s_cmp_lg_u32", sLAYER, 0)
    a.s("s_cbranch_scc1", f"L_dn{n}")
    a.s("s_mov_b32", sE[x], 1)
    a.s("s_add_u32", sT0, sKVB, x * 32768)
    a.label(f"L_ld{n}")
    a.s("s_add_u32", sT1, sT0, 4096)
    ticket(a, x)
    slot_loads(a, x)
    a.label(f"L_dn{n}")


def dyn_setup(a):
    a.s("s_mov_b32", sE[6], 0)
    a.s("s_mov_b32", sE[7], 0)
    a.s("s_lshr_b32", sT2, sWG, 5)
    a.s("s_lshl_b32", sPB, sT2, 24)
    a.s("s_lshl_b32", sCT, sT2, 7)
    a.s("s_add_u32", sCT, sCT, sLAY)
    a.s("s_add_u32", sCT, sCT, hex(TKT))
    a.s("s_add_u32", sPB, sPB, 10 * 32768)
    a.s("s_mov_b32", sNP, 768)
    a.v("v_mov_b32", vZ, 0)


def dyn_pass(a):
    dyn_setup(a)
    a.s("s_cmp_lg_u32", sLAYER, 0)
    a.s("s_cbranch_scc1", "L_early")
    if WARM:
        warm_weights(a)
    ticket(a, 6)
    ticket(a, 7)
    tile(a, 6)
    tile(a, 7)
    a.s("s_branch", "L_early_skip")
    a.label("L_early")
    for x in (6, 7):
        tile(a, x)
        a.s("s_add_u32", sT0, sKVB, (x + 2) * 32768)
        a.s("s_add_u32", sT1, sT0, 4096)
        ticket(a, x)
        slot_loads(a, x)
    a.label("L_early_skip")
    tile(a, 0)
    tile(a, 1)
    a.wait(vm=min(63, 50 + 14 * WARM))
    tile(a, 2)
    a.wait(vm=34 + 14 * WARM)
    tile(a, 3)
    a.s("s_cmp_lg_u32", sLAYER, 0)
    a.s("s_cbranch_scc1", "L_late_skip")
    a.wait(vm=0)
    reload(a, 6)
    reload(a, 7)
    a.label("L_late_skip")
    tile(a, 4)
    tile(a, 5)
    a.label("L_loop")
    for x, y in ((6, 7), (7, 6)):
        a.s("s_cmp_eq_u32", sE[x], 2)
        a.s("s_cbranch_scc1", f"L_nx{x}")
        a.s("s_cmp_eq_u32", sE[y], 2)
        a.s("s_cbranch_scc1", f"L_w0{x}")
        a.wait(vm=17)
        a.s("s_branch", f"L_w1{x}")
        a.label(f"L_w0{x}")
        a.wait(vm=0)
        a.label(f"L_w1{x}")
        tile(a, x)
        a.s("s_cmp_eq_u32", sE[x], 0)
        a.s("s_cbranch_scc1", f"L_rl{x}")
        a.s("s_mov_b32", sE[x], 2)
        a.s("s_branch", f"L_nx{x}")
        a.label(f"L_rl{x}")
        reload(a, x)
        a.label(f"L_nx{x}")
    a.s("s_add_u32", sT0, sE[6], sE[7])
    a.s("s_cmp_lt_u32", sT0, 4)
    a.s("s_cbranch_scc1", "L_loop")


def tile(a, s):
    a.comment(f"---- tile slot {s}")
    lds = s >= 6
    if lds:
        for i in range(8):
            a.ds_read(4, vr(VTMP + 4 * i, 4), vLDS, (s - 6) * 16384 + i * 1024)
        a.wait(lgkm=0)
        kf = lambda i: vr(VTMP + 4 * i, 4)
    else:
        kf = lambda i: slot_kreg(s, i)
    for i in range(8):
        a.mfma(vr(VD + 4 * i, 4), kf(i), vr(VQ, 4), 0)
    if lds:
        for i in range(8):
            a.ds_read(4, vr(VTMP + 4 * i, 4), vLDS, (s - 6) * 16384 + 8192 + i * 1024)
        vsrc = lambda i, d: vr(VTMP + 4 * i + d)
    elif s >= 4:
        for i in range(32):
            a.v("v_accvgpr_read_b32", vr(VTMP + i), ar(192 + 32 * (s - 4) + i))
        vsrc = lambda i, d: vr(VTMP + 4 * i + d)
    else:
        vsrc = lambda i, d: vr(VV + 32 * s + 4 * i + d)

    def perms(m):
        d = m // 2
        sel = sSELLO if m % 2 == 0 else sSELHI
        b = VPB[m % 2]
        for e in range(4):
            a.v("v_perm_b32", vr(b + e), vsrc(2 * e + 1, d), vsrc(2 * e, d), sel)

    if not lds:
        perms(0)
        perms(1)
    S = [vr(VD + 4 * i) for i in range(8)]
    for i in range(8):
        a.dpp("v_mov_b32", S[i], S[i], ctrl="quad_perm:[0,0,0,0]")
    for r in (1, 2, 3):
        for i in range(8):
            a.dpp("v_add_f32", S[i], vr(VD + 4 * i + r), S[i], ctrl=f"quad_perm:[{r},{r},{r},{r}]")
    if EMU_ROUND:
        for i in range(0, 8, 2):
            round_pair(a, S[i], S[i + 1], vr(VD + 4 * i + 1))
        for i in range(8):
            a.v("v_mul_f32", S[i], sC, S[i])
        for i in range(0, 8, 2):
            round_pair(a, S[i], S[i + 1], vr(VD + 4 * i + 1))
    else:
        for i in range(8):
            a.v("v_mul_f32", S[i], sC, S[i])
    tm, t2, alpha, mneg, ps = vT[0], vT[1], vT[2], vT[3], vT[4]
    a.v("v_max3_f32", tm, S[0], S[1], S[2])
    a.v("v_max3_f32", t2, S[3], S[4], S[5])
    a.v("v_max3_f32", tm, tm, S[6], S[7])
    a.v("v_max3_f32", tm, tm, t2, vM)
    a.v("v_mov_b32", t2, tm)
    a.v("v_permlane32_swap_b32", tm, t2)
    a.v("v_max_f32", tm, tm, t2)
    a.v("v_mov_b32", t2, tm)
    a.v("v_permlane16_swap_b32", tm, t2)
    a.v("v_max_f32", tm, tm, t2)
    a.v("v_sub_f32", alpha, vM, tm)
    a.v("v_mul_f32", alpha, sLOG2E, alpha)
    a.v("v_exp_f32", alpha, alpha)
    a.v("v_mov_b32", vM, tm)
    a.v("v_mul_f32", mneg, sLOG2E, tm)
    for i in range(8):
        a.v("v_fma_f32", S[i], S[i], sLOG2E, "-" + mneg)
    for i in range(8):
        a.v("v_exp_f32", S[i], S[i])
    for i in range(32):
        a.v("v_mul_f32", vr(VO + i), alpha, vr(VO + i))
    a.v("v_mul_f32", vL, alpha, vL)
    a.v("v_add_f32", ps, S[0], S[1])
    a.v("v_add_f32", t2, S[2], S[3])
    a.v("v_add_f32", ps, ps, S[4])
    a.v("v_add_f32", t2, t2, S[5])
    a.v("v_add_f32", ps, ps, S[6])
    a.v("v_add_f32", t2, t2, S[7])
    a.v("v_add_f32", vL, vL, ps)
    a.v("v_add_f32", vL, vL, t2)
    for e in range(4):
        a.v("v_cvt_pk_bf16_f32", vr(VP + e), S[2 * e], S[2 * e + 1])
    if lds:
        a.wait(lgkm=0)
        perms(0)
        perms(1)
    for m in range(8):
        a.mfma(vr(VO + 4 * m, 4), vr(VPB[m % 2], 4), vr(VP, 4), vr(VO + 4 * m, 4))
        if m + 2 < 8:
            perms(m + 2)


def gen_main():
    a = Asm()
    sc = 0
    kn = NAME + "_kernel" if SINGLE else "main_kernel"
    a.raw(f".globl {kn}\n.p2align 8\n.type {kn},@function\n{kn}:")
    prologue_common(a, "L_end")
    stamp(a, 0, False)
    load_x(a)
    a.s("s_lshr_b32", sT2, sWG, 5)
    a.s("s_lshl_b32", sT2, sT2, 11)
    a.s("s_add_u32", sQB, sT2, hex(Q0))
    a.s("s_lshl_b32", sKVB, sWG, 19)
    a.s("s_lshl_b32", sT2, sWV, 13)
    a.s("s_add_u32", sKVB, sKVB, sT2)
    a.s("s_add_u32", sRLB, sKVB, 8 * 32768)
    if REV:
        a.s("s_mov_b32", "s6", 32768)
    if ROT:
        a.s("s_lshr_b32", "s6", sWG, ROT - 1)
        a.s("s_and_b32", "s6", "s6", 7)
        a.s("s_lshl_b32", "s6", "s6", 15)
    a.s("s_mov_b32", sLAYER, 0)
    a.s("s_mov_b32", sLAY, 0)
    if not SINGLE:
        q_gather_issue(a)
        for s in range(8):
            issue_slot(a, s, sKVB, s * 32768)
        unpack_x(a)
        q_gather_sum(a)
    else:
        issue_wQ(a, RAW_Q)
        for i in range(4):
            a.v("v_mov_b32", vr(8 + i), -1)
        a.v("v_mov_b32", vr(12), 0)
        a.v("v_lshlrev_b32", vT[4], 4, vTID)
        a.s("s_mul_i32", sT0, sWG, 3072)
        a.s("s_add_u32", sT1, sT0, hex(LSTR))
        a.s("s_cmp_ge_u32", sWV, 3)
        a.s("s_cbranch_scc1", "L_clr_done")
        a.bstore(4, "v[8:11]", vT[4], S_WS, sT0, 0, "sc1")
        a.bstore(4, "v[8:11]", vT[4], S_WS, sT1, 0, "sc1")
        a.s("s_cmp_lg_u32", sWV, 0)
        a.s("s_cbranch_scc1", "L_clr_done")
        a.v("v_lshlrev_b32", vT[4], 2, vTID)
        a.s("s_lshr_b32", sT0, sWR, 6)
        a.s("s_lshl_b32", sT0, sT0, 14)
        a.s("s_and_b32", sT1, sWR, 63)
        a.s("s_lshl_b32", sT1, sT1, 8)
        a.s("s_add_u32", sT0, sT0, sT1)
        a.s("s_add_u32", sT0, sT0, hex(Q0))
        a.bstore(1, vr(8), vT[4], S_WS, sT0, 0, "sc1")
        a.ds_write(1, vr(12), vr(12), SC_QF)
        a.label("L_clr_done")
        for s, t in ORD[:2]:
            issue_slot(a, s, sKVB, t * 32768)
        a.wait(vm=32)
        unpack_x(a)
        unpack(a, RAW_Q, 16, UU)
        a.v("v_lshlrev_b32", vT[3], 3, vTID)
        a.ds_write(2, vT[3], "v[4:5]", SC_X2)
        a.wait(lgkm=0)
        a.barrier()
        a.s("s_cmp_lg_u32", sWV, 0)
        a.s("s_cbranch_scc1", "L_noat")
        a.v("v_mov_b32", vT[4], 1)
        set_exec(a, 1, 0)
        a.batomic_add(vT[4], vr(12), S_DBG, 0, "sc1")
        exec_all(a)
        a.label("L_noat")
        q_gemv(a, SC_X2, hex(Q0), "L_skipQ0")
        a.s("s_cmp_lg_u32", sWV, 0)
        a.s("s_cbranch_scc1", "L_w123")
        a.v("v_mov_b32", vT[4], 0)
        a.label("L_cnt")
        a.bload(1, vT[0], vT[4], S_DBG, 0, 0, "sc1")
        a.wait(vm=0)
        a.v("v_readfirstlane_b32", sT0, vT[0])
        a.s("s_cmp_ge_u32", sT0, 256)
        a.s("s_cbranch_scc1", "L_cntok")
        a.s("s_sub_u32", sTO, sTO, 1)
        a.s("s_cmp_le_i32", sTO, 0)
        a.s("s_cbranch_scc1", "L_cntok")
        a.s("s_sleep", 2)
        a.s("s_branch", "L_cnt")
        a.label("L_cntok")
        q_gather_issue(a)
        for s, t in ORD[2:4]:
            issue_slot(a, s, sKVB, t * 32768)
        a.wait(vm=32)
        sent_check(a, [vr(QG + i) for i in range(32)])
        a.s("s_cbranch_vccz", "L_qok")
        poll(a, lambda: q_gather_issue(a), [vr(QG + i) for i in range(32)])
        a.label("L_qok")
        q_gather_sum(a)
        a.v("v_mov_b32", vT[4], 1)
        a.v("v_mov_b32", vT[5], 0)
        a.ds_write(4, vVOFF, vr(VQ, 4), SC_Q)
        a.ds_write(1, vT[5], vT[4], SC_QF)
        for s, t in ORD[4:]:
            issue_slot(a, s, sKVB, t * 32768)
        a.s("s_branch", "L_pass")
        a.label("L_w123")
        for s, t in ORD[2:]:
            issue_slot(a, s, sKVB, t * 32768, SG)
        a.v("v_mov_b32", vT[5], 0)
        a.label("L_qf")
        a.ds_read(1, vT[4], vT[5], SC_QF)
        a.wait(lgkm=0)
        a.v("v_readfirstlane_b32", sT0, vT[4])
        a.s("s_cmp_lg_u32", sT0, 0)
        a.s("s_cbranch_scc1", "L_qfok")
        a.s("s_sub_u32", sTO, sTO, 1)
        a.s("s_cmp_le_i32", sTO, 0)
        a.s("s_cbranch_scc1", "L_qfok")
        a.s("s_sleep", 1)
        a.s("s_branch", "L_qf")
        a.label("L_qfok")
        a.ds_read(4, vr(VQ, 4), vVOFF, SC_Q)
        a.wait(lgkm=0)

    a.label("L_pass")
    stamp(a, 1)
    a.v("v_mov_b32", vM, "0xff7fffff")
    a.v("v_mov_b32", vL, 0)
    for i in range(32):
        a.v("v_mov_b32", vr(VO + i), 0)
    if DYN:
        dyn_pass(a)
    else:
        for s in range(8):
            tile(a, s)
            if REV:
                issue_slot(a, s, sRLB, 0, int(os.environ.get("GRD", "47")))
                a.s("s_add_u32", sRLB, sRLB, "s6")
            else:
                issue_slot(a, s, sRLB, s * 32768, int(os.environ.get("GRD", "47")))
        for s in range(8):
            a.wait(vm=min(63, 16 * (7 - s)))
            tile(a, s)

    stamp(a, 2)
    t2 = vT[1]
    a.v("v_mov_b32", t2, vL)
    a.v("v_permlane32_swap_b32", vL, t2)
    a.v("v_add_f32", vL, vL, t2)
    a.v("v_mov_b32", t2, vL)
    a.v("v_permlane16_swap_b32", vL, t2)
    a.v("v_add_f32", vL, vL, t2)
    l = vT[0]
    a.v("v_and_b32", l, 63, vTID)
    a.v("v_bfe_u32", vT[2], l, 2, 2)
    a.s("s_lshl_b32", sT0, sWV, 5)
    a.v("v_lshl_add_u32", vT[3], vT[2], 3, sT0)
    a.s("s_lshl_b32", sT0, sWV, 11)
    a.v("v_lshl_add_u32", vT[4], vT[2], 9, sT0)
    a.v("v_lshrrev_b32", vT[5], 4, l)
    a.v("v_lshl_add_u32", vT[4], vT[5], 7, vT[4])
    set_exec(a, 0x11111111, 0x11111111)
    a.ds_write(2, vT[3], "v[6:7]", sc + SC_ML)
    for m in range(8):
        for r in range(4):
            a.ds_write(1, vT[4], vr(VO + 4 * m + r), sc + SC_O + (8 * r + m) * 4)
    exec_all(a)
    a.wait(lgkm=0)
    a.barrier()
    a.s("s_lshl_b32", sT0, sWV, 3)
    a.v("v_mov_b32", vT[3], sT0)
    a.s("s_lshl_b32", sT0, sWV, 9)
    a.v("v_lshl_add_u32", vT[4], l, 3, sT0)
    mlr = [8, 10, 12, 14]
    orr = [16, 18, 20, 22]
    for w in range(4):
        a.ds_read(2, vr(mlr[w], 2), vT[3], sc + SC_ML + w * 32)
        a.ds_read(2, vr(orr[w], 2), vT[4], sc + SC_O + w * 2048)
    a.wait(lgkm=0)
    Mg = vr(88)
    Lg = vr(89)
    a.v("v_max3_f32", Mg, vr(8), vr(10), vr(12))
    a.v("v_max_f32", Mg, Mg, vr(14))
    for w in range(4):
        a.v("v_sub_f32", vr(mlr[w]), vr(mlr[w]), Mg)
        a.v("v_mul_f32", vr(mlr[w]), sLOG2E, vr(mlr[w]))
        a.v("v_exp_f32", vr(mlr[w]), vr(mlr[w]))
    a.v("v_mul_f32", Lg, vr(8), vr(9))
    a.v("v_mul_f32", vr(90), vr(8), vr(16))
    a.v("v_mul_f32", vr(91), vr(8), vr(17))
    for w in range(1, 4):
        a.v("v_fmac_f32", Lg, vr(mlr[w]), vr(mlr[w] + 1))
        a.v("v_fmac_f32", vr(90), vr(mlr[w]), vr(orr[w]))
        a.v("v_fmac_f32", vr(91), vr(mlr[w]), vr(orr[w] + 1))
    for r in (88, 89, 90, 91):
        a.v("v_min_u32", vr(r), SENT_FIX, vr(r))
    a.s("s_lshr_b32", sT0, sWG, 5)
    a.s("s_lshl_b32", sT0, sT0, 2)
    a.s("s_add_u32", sT0, sT0, sWV)
    a.s("s_lshl_b32", sT0, sT0, 5)
    a.s("s_and_b32", sT1, sWG, 31)
    a.s("s_add_u32", sT0, sT0, sT1)
    a.s("s_lshl_b32", sT1, sT0, 9)
    a.s("s_add_u32", sT1, sT1, sLAY)
    a.s("s_add_u32", sT1, sT1, hex(PO))
    a.v("v_lshlrev_b32", vT[4], 3, l)
    a.bstore(2, "v[90:91]", vT[4], S_WS, sT1, 0, "sc1")
    a.s("s_lshl_b32", sT1, sT0, 3)
    a.s("s_add_u32", sT1, sT1, sLAY)
    a.s("s_add_u32", sT1, sT1, hex(ML))
    a.v("v_mov_b32", vT[4], 0)
    set_exec(a, 1, 0)
    a.bstore(2, "v[88:89]", vT[4], S_WS, sT1, 0, "sc1")
    exec_all(a)

    issue_wO(a, RAW_O)
    issue_wG(a, RAW_G)
    issue_wD(a, RAW_D)
    issue_wQ(a, RAW_Q)

    stamp(a, 3)
    GO = list(range(8, 24)) + list(range(96, 112))
    a.s("s_lshr_b32", sT2, sWR, 4)
    a.s("s_lshl_b32", sT2, sT2, 1)
    a.s("s_lshr_b32", sT3, sWV, 1)
    a.s("s_add_u32", sT2, sT2, sT3)
    a.v("v_and_b32", vT[3], 127, vTID)
    a.v("v_lshlrev_b32", vT[3], 2, vT[3])
    a.v("v_and_b32", vT[4], 31, vTID)
    a.v("v_lshlrev_b32", vT[4], 3, vT[4])
    a.s("s_lshl_b32", sT3, sT2, 14)
    a.s("s_add_u32", sT3, sT3, sLAY)
    a.s("s_add_u32", sT3, sT3, hex(PO))
    a.s("s_lshl_b32", sT4, sT2, 8)
    a.s("s_add_u32", sT4, sT4, sLAY)
    a.s("s_add_u32", sT4, sT4, hex(ML))
    mlp = "v[6:7]"

    def loadsO():
        a.bload(2, mlp, vT[4], S_WS, sT4, 0, "sc1")
        for c in range(32):
            if c % 8 == 0:
                a.s("s_add_u32", sT0, sT3, (c // 8) * 4096)
            a.bload(1, vr(GO[c]), vT[3], S_WS, sT0, (c % 8) * 512, "sc1")
    poll(a, loadsO, [vr(r) for r in GO] + ["v6", "v7"])
    mx, t2 = vT[0], vT[1]
    a.v("v_mov_b32", mx, vM)
    row_allreduce(a, "v_max_f32", [mx])
    a.v("v_mov_b32", t2, mx)
    a.v("v_permlane16_swap_b32", mx, t2)
    a.v("v_max_f32", mx, mx, t2)
    a.v("v_sub_f32", vM, vM, mx)
    a.v("v_mul_f32", vM, sLOG2E, vM)
    a.v("v_exp_f32", vM, vM)
    a.v("v_mul_f32", vL, vL, vM)
    row_allreduce(a, "v_add_f32", [vL])
    a.v("v_mov_b32", t2, vL)
    a.v("v_permlane16_swap_b32", vL, t2)
    a.v("v_add_f32", vL, vL, t2)
    a.v("v_rcp_f32", vL, vL)
    a.v("v_mul_f32", vM, vM, vL)
    for c in range(32):
        a.v("v_readlane_b32", sr(SW0 + c), vM, c)
    o0, o1 = vT[0], vT[1]
    a.v("v_mul_f32", o0, sr(SW0 + 0), vr(GO[0]))
    a.v("v_mul_f32", o1, sr(SW0 + 1), vr(GO[1]))
    for c in range(2, 32, 2):
        a.v("v_fmac_f32", o0, sr(SW0 + c), vr(GO[c]))
        a.v("v_fmac_f32", o1, sr(SW0 + c + 1), vr(GO[c + 1]))
    a.v("v_add_f32", o0, o0, o1)
    round_one(a, o0, vT[2])
    a.v("v_and_b32", vT[3], 0x3c, vTID)
    for i in range(4):
        a.v("v_add_u32", vT[4 + i], 64 * i, vT[3])
    for i in range(4):
        a.ds_bpermute(vr(8 + i), vT[4 + i], o0)
    unpack(a, RAW_O, 16, UU)
    a.wait(lgkm=0)
    acc = RAW_O
    for k in range(8):
        a.v("v_mul_f32", vr(acc + k), vr(8), vr(UU + k))
    for i in range(1, 4):
        for k in range(8):
            a.v("v_fmac_f32", vr(acc + k), vr(8 + i), vr(UU + 8 * i + k))
    for ctrl in ("row_ror:4", "row_ror:8"):
        for k in range(8):
            a.dpp("v_add_f32", vr(acc + k), vr(acc + k), vr(acc + k), ctrl=ctrl)
    a.v("v_lshrrev_b32", vT[3], 4, vTID)
    a.v("v_lshlrev_b32", vT[3], 7, vT[3])
    a.v("v_and_b32", vT[4], 3, vTID)
    a.v("v_lshl_add_u32", vT[3], vT[4], 5, vT[3])
    set_exec(a, 0x000f000f, 0x000f000f)
    a.ds_write(4, vT[3], vr(acc, 4), sc + SC_GO)
    a.ds_write(4, vT[3], vr(acc + 4, 4), sc + SC_GO + 16)
    exec_all(a)
    a.wait(lgkm=0)
    a.barrier()
    a.s("s_cmp_lg_u32", sWV, 0)
    a.s("s_cbranch_scc1", "L_skipO")
    a.v("v_and_b32", vT[3], 31, vTID)
    a.v("v_lshlrev_b32", vT[3], 2, vT[3])
    lds_sum16(a, vT[3], sc + SC_GO, 128, [vr(8 + i) for i in range(16)], vT[0])
    a.v("v_min_u32", vT[0], SENT_FIX, vT[0])
    a.s("s_lshr_b32", sT0, sWR, 4)
    a.s("s_lshl_b32", sT0, sT0, 11)
    a.s("s_and_b32", sT1, sWR, 15)
    a.s("s_lshl_b32", sT1, sT1, 7)
    a.s("s_add_u32", sT0, sT0, sT1)
    a.s("s_add_u32", sT0, sT0, sLAY)
    a.s("s_add_u32", sT0, sT0, hex(YP))
    set_exec(a, 0xffffffff, 0)
    a.bstore(1, vT[0], vT[3], S_WS, sT0, 0, "sc1")
    exec_all(a)
    a.label("L_skipO")

    stamp(a, 4)
    unpack(a, RAW_G, 16, UU)
    gather16_add_x(a, YP, SC_X1, 0)
    a.s("s_cmp_ge_u32", sWR, 224)
    a.s("s_cbranch_scc1", "L_skipG")
    a.wait(lgkm=0)
    a.barrier()
    g_block(a, sT2, sT3)
    a.v("v_bfe_u32", vT[5], vTID, 3, 3)
    a.v("v_lshlrev_b32", vT[5], 2, vT[5])
    a.s("s_lshl_b32", sT0, sT2, 2)
    a.s("s_add_u32", sT0, sT0, sWV)
    a.s("s_lshl_b32", sT0, sT0, 6)
    a.v("v_add_u32", vT[5], sT0, vT[5])
    A = [vr(16), vr(17)]
    ln_from_lds(a, SC_X1, vT[5], [0, 32], A, 8)
    ag, au = 32, 40
    for k in range(8):
        a.v("v_mul_f32", vr(ag + k), A[0], vr(UU + k))
        a.v("v_mul_f32", vr(au + k), A[0], vr(UU + 16 + k))
    for k in range(8):
        a.v("v_fmac_f32", vr(ag + k), A[1], vr(UU + 8 + k))
        a.v("v_fmac_f32", vr(au + k), A[1], vr(UU + 24 + k))
    reduce8(a, [ag, au], 8)
    red_addr(a, vT[5], 8, 512, vT[6])
    set_exec(a, 0x00ff00ff, 0x00ff00ff)
    a.ds_write(2, vT[5], vr(ag, 2), SC_RG)
    a.ds_write(2, vT[5], vr(au, 2), SC_RG + 256)
    exec_all(a)
    a.wait(lgkm=0)
    a.barrier()
    a.s("s_cmp_ge_u32", sWV, 2)
    a.s("s_cbranch_scc1", "L_skipG")
    a.v("v_lshlrev_b32", vT[5], 2, vTID)
    sum4_lds(a, vT[5], SC_RG, 512, [vr(8 + i) for i in range(4)], vT[0])
    a.v("v_min_u32", vT[0], SENT_FIX, vT[0])
    a.v("v_and_b32", vT[5], 63, vTID)
    a.v("v_lshlrev_b32", vT[5], 2, vT[5])
    a.s("s_mul_i32", sT0, sT2, 14336)
    a.s("s_mul_i32", sT1, sWV, 7168)
    a.s("s_add_u32", sT0, sT0, sT1)
    a.s("s_lshl_b32", sT1, sT3, 8)
    a.s("s_add_u32", sT0, sT0, sT1)
    a.s("s_add_u32", sT0, sT0, sLAY)
    a.s("s_add_u32", sT0, sT0, hex(GP))
    a.bstore(1, vT[0], vT[5], S_WS, sT0, 0, "sc1")
    a.label("L_skipG")

    stamp(a, 5)
    unpack(a, RAW_D, 8, UU)
    a.v("v_and_b32", vT[4], 31, vTID)
    a.v("v_min_u32", vT[3], 27, vT[4])
    a.v("v_lshlrev_b32", vT[3], 2, vT[3])
    a.v("v_bfe_u32", vT[5], vTID, 5, 1)
    a.s("s_mov_b32", sT4, 7168)
    a.v("v_mul_lo_u32", vT[5], vT[5], sT4)
    a.v("v_add_u32", vT[3], vT[3], vT[5])
    a.s("s_lshr_b32", sT3, sWR, 4)
    a.s("s_lshl_b32", sT3, sT3, 2)
    a.s("s_add_u32", sT3, sT3, sWV)
    a.s("s_mul_i32", sT3, sT3, 112)
    a.s("s_add_u32", sT3, sT3, sLAY)
    a.s("s_add_u32", sT3, sT3, hex(GP))

    def loadsD():
        for p in range(8):
            a.s("s_add_u32", sT0, sT3, p * 14336)
            a.bload(1, vr(8 + p), vT[3], S_WS, sT0, 0, "sc1")
    poll(a, loadsD, [vr(8 + i) for i in range(8)], 1)
    for n in (4, 2, 1):
        for i in range(n):
            a.v("v_add_f32", vr(8 + i), vr(8 + i), vr(8 + i + n))
    g_, u_ = vr(8), vr(9)
    round_one(a, g_, vT[0])
    a.v("v_mov_b32", u_, g_)
    a.v("v_permlane32_swap_b32", g_, u_)
    a.v("v_cmp_lt_f32", "vcc", 0, g_)
    a.v("v_cndmask_b32", vT[0], 0, "1.0", "vcc")
    a.v("v_mul_f32", g_, g_, vT[0])
    a.v("v_mul_f32", g_, g_, u_)
    round_one(a, g_, vT[0])
    a.v("v_cmp_gt_u32", "vcc", 28, vT[4])
    a.v("v_cndmask_b32", g_, 0, g_, "vcc")
    a.v("v_and_b32", vT[3], 0x3c, vTID)
    a.v("v_add_u32", vT[5], 64, vT[3])
    a.ds_bpermute(vr(10), vT[3], g_)
    a.ds_bpermute(vr(11), vT[5], g_)
    a.wait(lgkm=0)
    acc = 32
    for k in range(8):
        a.v("v_mul_f32", vr(acc + k), vr(10), vr(UU + k))
    for k in range(8):
        a.v("v_fmac_f32", vr(acc + k), vr(11), vr(UU + 8 + k))
    reduce8(a, [acc], 4)
    red_addr(a, vT[5], 4, 128, vT[6])
    set_exec(a, 0x000f000f, 0x000f000f)
    a.ds_write(2, vT[5], vr(acc, 2), SC_RD)
    exec_all(a)
    a.wait(lgkm=0)
    a.barrier()
    a.s("s_cmp_lg_u32", sWV, 0)
    a.s("s_cbranch_scc1", "L_skipD")
    a.v("v_and_b32", vT[5], 31, vTID)
    a.v("v_lshlrev_b32", vT[5], 2, vT[5])
    sum4_lds(a, vT[5], SC_RD, 128, [vr(8 + i) for i in range(4)], vT[0])
    a.v("v_min_u32", vT[0], SENT_FIX, vT[0])
    a.s("s_lshr_b32", sT0, sWR, 4)
    a.s("s_lshl_b32", sT0, sT0, 11)
    a.s("s_and_b32", sT1, sWR, 15)
    a.s("s_lshl_b32", sT1, sT1, 7)
    a.s("s_add_u32", sT0, sT0, sT1)
    a.s("s_add_u32", sT0, sT0, sLAY)
    a.s("s_add_u32", sT0, sT0, hex(DPP))
    set_exec(a, 0xffffffff, 0)
    a.bstore(1, vT[0], vT[5], S_WS, sT0, 0, "sc1")
    exec_all(a)
    a.label("L_skipD")
    stamp(a, 6)
    a.s("s_mul_i32", sT0, sWG, sLAYER)
    a.s("s_cmp_lg_u32", sT0, 0)
    a.s("s_cbranch_scc1", "L_end")

    unpack(a, RAW_Q, 16, UU)
    gather16_add_x(a, DPP, SC_X2, 2)
    a.s("s_cmp_eq_u32", sLAYER, 0)
    a.s("s_cbranch_scc1", "L_stQ")
    a.v("v_cvt_pk_bf16_f32", vT[0], vX0, vX1)
    a.v("v_lshlrev_b32", vT[3], 2, vTID)
    a.bstore(1, vT[0], vT[3], S_OUT, 0, 0)
    stamp(a, 7)
    a.s("s_branch", "L_end")
    a.label("L_stQ")
    a.wait(lgkm=0)
    a.barrier()
    q_gemv(a, SC_X2, hex(LSTR + QP), "L_skipQ")
    stamp(a, 7)
    a.s("s_mov_b32", sLAYER, 1)
    a.s("s_mov_b32", sLAY, hex(LSTR))
    if REV:
        a.s("s_add_u32", sRLB, sKVB, 7 * 32768)
        a.s("s_mov_b32", "s6", hex((-32768) & 0xffffffff))
    else:
        a.s("s_mov_b32", sRLB, sKVB)
    a.s("s_lshr_b32", sT2, sWG, 5)
    a.s("s_lshl_b32", sT2, sT2, 11)
    a.s("s_add_u32", sQB, sT2, hex(LSTR + QP))
    poll(a, lambda: q_gather_issue(a), [vr(QG + i) for i in range(32)])
    q_gather_sum(a)
    a.s("s_branch", "L_pass")
    a.label("L_end", pad=False)
    a.raw("  s_endpgm")
    return a.text()


def gen_init():
    a = Asm()
    kn = "init_kernel"
    a.raw(f".globl {kn}\n.p2align 8\n.type {kn},@function\n{kn}:")
    prologue_common(a, "L_iend")
    load_x(a)
    issue_wQ(a, RAW_Q)
    for i in range(4):
        a.v("v_mov_b32", vr(8 + i), -1)
    a.v("v_lshlrev_b32", vT[4], 4, vTID)
    a.s("s_mul_i32", sT0, sWG, 3072)
    a.s("s_add_u32", sT1, sT0, hex(LSTR))
    a.s("s_cmp_ge_u32", sWV, 3)
    a.s("s_cbranch_scc1", "L_iskip")
    a.bstore(4, "v[8:11]", vT[4], S_WS, sT0, 0)
    a.bstore(4, "v[8:11]", vT[4], S_WS, sT1, 0)
    a.label("L_iskip")
    a.wait(vm=0)
    unpack_x(a)
    unpack(a, RAW_Q, 16, UU)
    a.v("v_lshlrev_b32", vT[3], 3, vTID)
    a.ds_write(2, vT[3], "v[4:5]", SC_X2)
    a.wait(lgkm=0)
    a.barrier()
    q_gemv(a, SC_X2, hex(Q0), "L_iskipQ")
    a.label("L_iend", pad=False)
    a.raw("  s_endpgm")
    return a.text()


def kd(name, nv, acc):
    return f""".amdhsa_kernel {name}
  .amdhsa_next_free_vgpr {nv}
  .amdhsa_next_free_sgpr 102
  .amdhsa_accum_offset {acc}
  .amdhsa_group_segment_fixed_size 0
  .amdhsa_kernarg_size 96
  .amdhsa_user_sgpr_count 2
  .amdhsa_user_sgpr_kernarg_segment_ptr 1
  .amdhsa_system_sgpr_workgroup_id_x 1
.end_amdhsa_kernel
"""


def main():
    ref = open(f"cdna_kernels/{NAME}.s.ref").read()
    head = []
    for line in ref.splitlines():
        if line.startswith("; @launch"):
            break
        head.append(line)
    out = "\n".join(head) + "\n"
    if SINGLE:
        out += "; @launch grid=(256,1,1) block=(256,1,1) lds=163840\n"
    else:
        out += f"; @launch kernel=init_kernel grid=(256,1,1) block=(256,1,1) lds={SC_END}\n"
        out += "; @launch kernel=main_kernel grid=(256,1,1) block=(256,1,1) lds=163840\n"
    out += '.amdgcn_target "amdgcn-amd-amdhsa--gfx950"\n.text\n'
    if not SINGLE:
        out += gen_init()
    out += gen_main()
    out += '.section .rodata,"a"\n.p2align 6\n'
    if not SINGLE:
        out += kd("init_kernel", 128, 128)
        out += ".p2align 6\n"
    out += kd(NAME + "_kernel" if SINGLE else "main_kernel", 512, 256)
    dst = sys.argv[1] if len(sys.argv) > 1 else f"cdna_kernels/{NAME}.s"
    open(dst, "w").write(out)
    print("wrote", dst, len(out), "bytes")


if __name__ == "__main__":
    main()
```

```python
import sys
import os
from asmlib import *

NAME = "interleave_layers__gqa_block_cached__glu_gated_reglu__decode"
E = lambda k, d: os.environ.get(k, d)
STAMPS = int(E("STAMPS", "0"))
KVPOL = E("KVPOL", "nt")
SG = int(E("SG", "16"))
GRD = int(E("GRD", "16"))
ILV = int(E("ILV", "2"))
NP = 2
CSTEP = int(E("CSTEP", "4"))
NV = int(E("NV", "5"))
S9 = int(E("S9", "1"))
SPOS = [int(x) for x in E("SPOS", "1,1").split(",")]
PK = int(E("PK", "1"))
WT = int(E("WT", "0"))
NOLD = int(E("NOLD", "0"))
PDL = [int(x) for x in E("PDL", "0,8,3,10,8").split(",")]

LSTR = 0x100000
QP, DPP, YP, GP, ML, PO, ZONE = 0x0, 0x10000, 0x18000, 0x20000, 0x3C000, 0x40000, 0xC0000
STG, CG, STQ = 0xE0000, 0xC0000, 0xDC000
Q0, CQ = 0x200000, 0x210000
WS_BYTES = 0x300000
TSTR = 32768

SC_O = 0
SC_XF = 0
SC_GO = 0
SC_RG = 2048
SC_CT = 4096
SC_RQ = 8192
SC_Q = 8192
SC_RD = 9216
SC_X = 9728
SC_CS = 10240
SC_ML = 11264
SC_ST = 11392
SC_QF = 11424
VIC = 12288

S_K, S_V, S_WQ, S_WO, S_WG, S_WU, S_WD, S_WS, S_X, S_OUT = [sr(8 + 4 * i, 4) for i in range(10)]
sWG, sWV = "s2", "s3"
sWR = "s4"
sONE_LO, sONE_HI = "s6", "s7"
sLAYER, sKVB, sVIC, sT0, sT1, sLAY, sQB, sTO = "s48", "s49", "s50", "s51", "s52", "s53", "s54", "s55"
sC, sLOG2E, sFFFF, sT2, sLDSW, sT3, sT4 = "s56", "s57", "s[58:59]", "s60", "s61", "s62", "s63"
SW0 = 64
S_DBG = sr(88, 4)

vTID, vKOFF, vVOFF, vLDS = "v0", "v1", "v2", "v3"
vM, vL = "v4", "v5"
MK0, MK1 = "v6", "v7"
VQ = 8
VO = 12
vP = [f"v{20+i}" for i in range(4)]
vT = [f"v{24+i}" for i in range(8)]
VA = 32
VV = 128
RAW_O, RAW_G, RAW_Q, RAW_D, XR = 48, 32, 32, 48, 56
QG = 32

C_SCALE = 0x3DB504F3
LOG2E = 0x3FB8AA3B
SENT_FIX = "0xfffffffe"
_id = [0]


def uid():
    _id[0] += 1
    return _id[0]


def f32bits(x):
    import struct
    return struct.unpack("<I", struct.pack("<f", x))[0]


assert f32bits(128 ** -0.5) == C_SCALE


def set_exec(a, lo, hi):
    a.s("s_mov_b32", "exec_lo", hex(lo))
    a.s("s_mov_b32", "exec_hi", hex(hi))


def exec_all(a):
    a.s("s_mov_b64", "exec", "-1")


def round_pair(a, x0, x1, tmp):
    a.v("v_cvt_pk_bf16_f32", tmp, x0, x1)
    a.v("v_lshlrev_b32", x0, 16, tmp)
    a.v("v_and_b32", x1, "0xffff0000", tmp)


def round_one(a, x0, tmp):
    a.v("v_cvt_pk_bf16_f32", tmp, x0, x0)
    a.v("v_lshlrev_b32", x0, 16, tmp)


def row_allreduce(a, op, regs):
    for ctrl in ("quad_perm:[1,0,3,2]", "quad_perm:[2,3,0,1]", "row_half_mirror", "row_mirror"):
        for r in regs:
            a.dpp(op, r, r, r, ctrl=ctrl)


def mfma16(a, d, x, b, c):
    rc = regs_of(str(c))
    a._push(f"v_mfma_f32_16x16x16_bf16 {d}, {x}, {b}, {c}",
            Ins("mfma", regs_of(d), regs_of(x) | regs_of(b) | rc, rc, "mfma"))


def prologue(a):
    a.s("s_cmp_ge_u32", sWG, 256)
    a.s("s_cbranch_scc1", "L_end")
    a.raw("  s_load_dwordx16 s[64:79], s[0:1], 0")
    a.raw("  s_load_dwordx8 s[80:87], s[0:1], 64")
    a.v("v_lshrrev_b32", vT[0], 6, vTID)
    a.v("v_readfirstlane_b32", sWV, vT[0])
    a.raw("  s_waitcnt lgkmcnt(0)")
    srds = [(8, 66, 0x8000000), (12, 68, 0x8000000), (16, 70, 0x400000), (20, 72, 0x400000),
            (24, 76, 512 * 1792 * 2), (28, 78, 512 * 1792 * 2), (32, 80, 1792 * 512 * 2),
            (36, 86, WS_BYTES), (40, 64, 1024), (44, 82, 1024), (88, 84, 256)]
    for d, p, n in srds:
        a.s("s_mov_b32", sr(d), sr(p))
        a.s("s_and_b32", sr(d + 1), sr(p + 1), "0xffff")
        a.s("s_mov_b32", sr(d + 2), hex(n))
        a.s("s_mov_b32", sr(d + 3), "0x00020000")
    a.s("s_mov_b32", sC, hex(C_SCALE))
    a.s("s_mov_b32", sLOG2E, hex(LOG2E))
    a.s("s_mov_b32", "s58", "0xffff")
    a.s("s_mov_b32", "s59", 0)
    a.s("s_mov_b32", sONE_LO, "0x3f80")
    a.s("s_mov_b32", sONE_HI, "0x3f800000")
    a.s("s_mov_b32", sTO, hex(1 << 18))
    a.s("s_and_b32", sT0, sWG, 7)
    a.s("s_lshr_b32", sT1, sWG, 3)
    a.s("s_lshl_b32", sWR, sT0, 5)
    a.s("s_add_u32", sWR, sWR, sT1)
    l = vT[0]
    a.v("v_and_b32", l, 63, vTID)
    a.v("v_lshlrev_b32", vVOFF, 4, l)
    a.v("v_bfe_u32", vT[1], l, 2, 2)
    a.v("v_lshlrev_b32", vKOFF, 8, vT[1])
    a.v("v_lshrrev_b32", vT[2], 4, l)
    a.v("v_lshl_add_u32", vKOFF, vT[2], 6, vKOFF)
    a.v("v_and_b32", vT[3], 3, l)
    a.v("v_lshl_add_u32", vKOFF, vT[3], 4, vKOFF)
    a.s("s_lshl_b32", sLDSW, sWV, 15)
    a.s("s_add_u32", sLDSW, sLDSW, 32768)
    a.v("v_add_u32", vLDS, sLDSW, vVOFF)
    a.s("s_mul_i32", sVIC, sWV, 5120)
    a.s("s_add_u32", sVIC, sVIC, VIC)


class _Touch:
    def __init__(self, a):
        self.a = a

    def __getattr__(self, n):
        return getattr(self.a, n)

    def bload(self, width, dst, voff, srd, soff, offset=0, flags=""):
        self.a.bload(1, "v7", voff, srd, soff, offset, flags)


def lane_voff(a, dst, sh_c, rowbytes, tmp):
    a.v("v_and_b32", tmp, 63, vTID)
    a.v("v_lshrrev_b32", dst, sh_c, tmp)
    a.s("s_mov_b32", sT4, rowbytes)
    a.v("v_mul_lo_u32", dst, dst, sT4)
    a.v("v_and_b32", tmp, (1 << sh_c) - 1, tmp)
    a.v("v_lshl_add_u32", dst, tmp, 4, dst)


def g_block(a, rb, cb):
    a.s("s_and_b32", cb, sWR, 63)
    a.s("s_lshr_b32", rb, sWR, 6)
    a.s("s_lshl_b32", rb, rb, 1)
    a.s("s_cmp_ge_u32", cb, 28)
    a.s("s_addc_u32", rb, rb, 0)
    a.s("s_cmp_ge_u32", cb, 28)
    a.s("s_cselect_b32", sT4, 28, 0)
    a.s("s_sub_u32", cb, cb, sT4)


def issue_wQ(a, raw):
    lane_voff(a, vT[5], 3, 16384, vT[6])
    a.s("s_lshr_b32", sT0, sWR, 6)
    a.s("s_lshl_b32", sT0, sT0, 20)
    a.s("s_lshl_b32", sT1, sWV, 17)
    a.s("s_add_u32", sT0, sT0, sT1)
    a.s("s_and_b32", sT1, sWR, 63)
    a.s("s_lshl_b32", sT1, sT1, 7)
    a.s("s_add_u32", sT0, sT0, sT1)
    for i in range(4):
        a.bload(4, vr(raw + 4 * i, 4), vT[5], S_WQ, sT0, 0)
        if i < 3:
            a.s("s_add_u32", sT0, sT0, 8192 if i % 2 == 0 else 64 * 8192 - 8192)


def issue_wG(a, raw):
    lane_voff(a, vT[5], 3, 7168, vT[6])
    g_block(a, sT2, sT3)
    a.s("s_lshl_b32", sT0, sT2, 2)
    a.s("s_add_u32", sT0, sT0, sWV)
    a.s("s_mul_i32", sT0, sT0, 16 * 3584)
    a.s("s_lshl_b32", sT1, sT3, 7)
    a.s("s_add_u32", sT0, sT0, sT1)
    a.s("s_add_u32", sT1, sT0, 3584)
    a.bload(4, vr(raw + 0, 4), vT[5], S_WG, sT0, 0)
    a.bload(4, vr(raw + 4, 4), vT[5], S_WG, sT1, 0)
    a.bload(4, vr(raw + 8, 4), vT[5], S_WU, sT0, 0)
    a.bload(4, vr(raw + 12, 4), vT[5], S_WU, sT1, 0)


def colblk32(a):
    lane_voff(a, vT[5], 2, 1024, vT[6])
    a.s("s_and_b32", sT1, sWR, 15)
    a.s("s_lshl_b32", sT1, sT1, 6)


def issue_wD(a, raw):
    colblk32(a)
    a.s("s_lshr_b32", sT0, sWR, 4)
    a.s("s_lshl_b32", sT0, sT0, 2)
    a.s("s_add_u32", sT0, sT0, sWV)
    a.s("s_mul_i32", sT0, sT0, 28 * 1024)
    a.s("s_add_u32", sT0, sT0, sT1)
    a.s("s_add_u32", sT1, sT0, 16384)
    a.bload(4, vr(raw + 0, 4), vT[5], S_WD, sT0, 0)
    a.bload(4, vr(raw + 4, 4), vT[5], S_WD, sT1, 0)


def issue_wO(a, raw):
    colblk32(a)
    a.s("s_lshr_b32", sT0, sWR, 4)
    a.s("s_lshl_b32", sT0, sT0, 18)
    a.s("s_add_u32", sT0, sT0, sT1)
    a.s("s_lshl_b32", sT1, sWV, 16)
    a.s("s_add_u32", sT0, sT0, sT1)
    for i in range(4):
        a.bload(4, vr(raw + 4 * i, 4), vT[5], S_WO, sT0, 0)
        if i < 3:
            a.s("s_add_u32", sT0, sT0, 16384)


def gemv(a, groups):
    n = len(groups[0][1])
    for i in range(n):
        for acc, rows in groups:
            raw, xlo, xhi = rows[i]
            for k in range(4):
                for h, x in enumerate((xlo, xhi)):
                    d = vr(acc + 2 * k + h)
                    a.v("v_dot2_f32_bf16", d, vr(raw + k), x, 0 if i == 0 else d)


def lds_sum16(a, addr, base, stride, regs, out):
    for p in range(16):
        a.ds_read(1, regs[p], addr, base + p * stride)
    a.wait(lgkm=0)
    n = 16
    while n > 1:
        for i in range(n // 2):
            a.v("v_add_f32", regs[i], regs[i], regs[i + n // 2])
        n //= 2
    if out != regs[0]:
        a.v("v_mov_b32", out, regs[0])


def wave_allreduce_add(a, x, t):
    row_allreduce(a, "v_add_f32", [x])
    a.v("v_mov_b32", t, x)
    a.v("v_permlane32_swap_b32", x, t)
    a.v("v_add_f32", x, x, t)
    a.v("v_mov_b32", t, x)
    a.v("v_permlane16_swap_b32", x, t)
    a.v("v_add_f32", x, x, t)


def ln_from_lds(a, scx, vrows, offs, outs, tq):
    s, mean, t, tmp, la = vT[0], vT[1], vT[2], vT[3], vT[4]
    a.v("v_and_b32", la, 63, vTID)
    a.v("v_lshlrev_b32", la, 5, la)
    a.ds_read(4, vr(tq, 4), la, scx)
    a.ds_read(4, vr(tq + 4, 4), la, scx + 16)
    for o, off in zip(outs, offs):
        a.ds_read(1, o, vrows, scx + off)
    a.wait(lgkm=len(outs))
    X = [vr(tq + k) for k in range(8)]
    a.v("v_add_f32", s, X[0], X[1])
    a.v("v_add_f32", t, X[2], X[3])
    a.v("v_add_f32", s, s, X[4])
    a.v("v_add_f32", t, t, X[5])
    a.v("v_add_f32", s, s, X[6])
    a.v("v_add_f32", t, t, X[7])
    a.v("v_add_f32", s, s, t)
    wave_allreduce_add(a, s, t)
    a.v("v_mul_f32", mean, hex(f32bits(1.0 / 512)), s)
    for k in range(8):
        a.v("v_sub_f32", X[k], X[k], mean)
    a.v("v_mul_f32", s, X[0], X[0])
    a.v("v_mul_f32", t, X[1], X[1])
    for k in range(2, 8, 2):
        a.v("v_fmac_f32", s, X[k], X[k])
        a.v("v_fmac_f32", t, X[k + 1], X[k + 1])
    a.v("v_add_f32", s, s, t)
    wave_allreduce_add(a, s, t)
    a.v("v_mul_f32", s, hex(f32bits(1.0 / 512)), s)
    round_pair(a, mean, s, tmp)
    a.v("v_add_f32", s, hex(f32bits(1e-5)), s)
    round_one(a, s, tmp)
    a.v("v_sqrt_f32", s, s)
    round_one(a, s, tmp)
    a.v("v_rcp_f32", s, s)
    a.wait(lgkm=0)
    for i in range(0, len(outs), 2):
        a0, a1 = outs[i], outs[i + 1]
        a.v("v_sub_f32", a0, a0, mean)
        a.v("v_sub_f32", a1, a1, mean)
        round_pair(a, a0, a1, tmp)
        a.v("v_mul_f32", a0, a0, s)
        a.v("v_mul_f32", a1, a1, s)
        round_pair(a, a0, a1, tmp)


def reduce8(a, accs, nc):
    for b in accs:
        for k in range(4):
            a.v("v_permlane32_swap_b32", vr(b + k), vr(b + k + 4))
    for b in accs:
        for k in range(4):
            a.v("v_add_f32", vr(b + k), vr(b + k), vr(b + k + 4))
    for b in accs:
        a.v("v_permlane16_swap_b32", vr(b + 0), vr(b + 2))
        a.v("v_permlane16_swap_b32", vr(b + 1), vr(b + 3))
    for b in accs:
        a.v("v_add_f32", vr(b + 0), vr(b + 0), vr(b + 2))
        a.v("v_add_f32", vr(b + 1), vr(b + 1), vr(b + 3))
    steps = {8: ["row_ror:8"], 4: ["row_ror:4", "row_ror:8"]}[nc]
    for ctrl in steps:
        for b in accs:
            a.dpp("v_add_f32", vr(b), vr(b), vr(b), ctrl=ctrl)
            a.dpp("v_add_f32", vr(b + 1), vr(b + 1), vr(b + 1), ctrl=ctrl)


def red_addr(a, dst, nc, wvstride, tmp):
    a.v("v_and_b32", tmp, nc - 1, vTID)
    a.v("v_lshlrev_b32", dst, 5, tmp)
    a.v("v_bfe_u32", tmp, vTID, 4, 2)
    a.v("v_lshl_add_u32", dst, tmp, 3, dst)
    a.s("s_mul_i32", sT4, sWV, wvstride)
    a.v("v_add_u32", dst, sT4, dst)


def sum4_lds(a, addr, base, stride, regs, out):
    for p in range(4):
        a.ds_read(1, regs[p], addr, base + p * stride)
    a.wait(lgkm=0)
    a.v("v_add_f32", regs[0], regs[0], regs[1])
    a.v("v_add_f32", regs[2], regs[2], regs[3])
    a.v("v_add_f32", out, regs[0], regs[2])


def xrow_addr(a, dst, full):
    a.v("v_bfe_u32", dst, vTID, 3, 3)
    a.v("v_lshlrev_b32", dst, 3, dst)
    a.s("s_lshl_b32", sT1, sWV, 6)
    if full:
        a.s("s_lshr_b32", sT0, sWR, 6)
        a.s("s_lshl_b32", sT0, sT0, 9)
        a.s("s_add_u32", sT1, sT0, sT1)
    a.v("v_add_u32", dst, sT1, dst)


def q_pos(a, dst, tmp, base_s):
    a.s("s_lshr_b32", sT0, sWR, 6)
    a.s("s_lshl_b32", sT0, sT0, 14)
    a.s("s_add_u32", sT0, sT0, base_s)
    a.v("v_bfe_u32", dst, vTID, 2, 1)
    a.v("v_lshlrev_b32", dst, 10, dst)
    a.v("v_bfe_u32", tmp, vTID, 5, 1)
    a.v("v_lshl_add_u32", dst, tmp, 8, dst)
    a.v("v_bfe_u32", tmp, vTID, 3, 2)
    a.v("v_lshl_add_u32", dst, tmp, 4, dst)
    a.v("v_and_b32", tmp, 3, vTID)
    a.v("v_lshl_add_u32", dst, tmp, 2, dst)
    a.s("s_bfe_u32", sT1, sWR, hex(3 | (3 << 16)))
    a.s("s_lshl_b32", sT1, sT1, 11)
    a.s("s_add_u32", sT0, sT0, sT1)
    a.s("s_and_b32", sT1, sWR, 1)
    a.s("s_lshl_b32", sT1, sT1, 9)
    a.s("s_add_u32", sT0, sT0, sT1)
    a.s("s_and_b32", sT1, sWR, 6)
    a.s("s_lshl_b32", sT1, sT1, 5)
    a.s("s_add_u32", sT0, sT0, sT1)


def q_publish(a, src, base_s):
    a.v("v_and_b32", vT[5], 63, vTID)
    a.v("v_lshlrev_b32", vT[5], 2, vT[5])
    q_pos(a, vT[4], vT[6], base_s)
    sum4_lds(a, vT[5], src, 256, [vr(8 + i) for i in range(4)], vT[0])
    a.v("v_min_u32", vT[0], SENT_FIX, vT[0])
    a.bstore(1, vT[0], vT[4], S_WS, sT0, 0, "sc1")


def q_gather_issue(a):
    for p in range(4):
        a.s("s_add_u32", sT0, sQB, p * 16384)
        a.bload(4, vr(QG + 8 * p, 4), vVOFF, S_WS, sT0, 0, "sc1")
        a.bload(4, vr(QG + 8 * p + 4, 4), vVOFF, S_WS, sT0, 1024, "sc1")


def q_gather_sum(a):
    for k in range(8):
        a.v("v_add_f32", vr(QG + k), vr(QG + k), vr(QG + 8 + k))
        a.v("v_add_f32", vr(QG + 16 + k), vr(QG + 16 + k), vr(QG + 24 + k))
    for k in range(8):
        a.v("v_add_f32", vr(QG + k), vr(QG + k), vr(QG + 16 + k))
    for e in range(4):
        a.v("v_cvt_pk_bf16_f32", vr(VQ + e), vr(QG + 2 * e), vr(QG + 2 * e + 1))


def stamp(a, idx, layered=True):
    if not STAMPS:
        return
    a.raw("  s_memrealtime s[98:99]")
    a.s("s_lshl_b32", "s100", sWG, 2)
    a.s("s_add_u32", "s100", "s100", sWV)
    a.s("s_lshl_b32", "s100", "s100", 7)
    a.s("s_add_u32", "s100", "s100", hex(0x280000 + idx * 4))
    if layered:
        a.s("s_lshl_b32", "s101", sLAYER, 6)
        a.s("s_add_u32", "s100", "s100", "s101")
    a.raw("  s_waitcnt lgkmcnt(0)")
    a.v("v_mov_b32", vT[7], "s98")
    a.v("v_mov_b32", vT[0], 0)
    set_exec(a, 1, 0)
    a.bstore(1, vT[7], vT[0], S_WS, "s100", 0)
    exec_all(a)


def pdiag(a, hop, phase):
    if STAMPS != 1 or hop is None:
        return
    if phase == 0:
        a.raw("  s_memrealtime s[96:97]")
        a.raw("  s_waitcnt lgkmcnt(0)")
        a.s("s_mov_b32", "s97", 0)
        return
    if phase == 1:
        a.s("s_add_u32", "s97", "s97", 1)
        return
    a.raw("  s_memrealtime s[98:99]")
    a.s("s_lshl_b32", "s100", sWG, 2)
    a.s("s_add_u32", "s100", "s100", sWV)
    a.s("s_lshl_b32", "s100", "s100", 7)
    a.s("s_add_u32", "s100", "s100", hex(0x2C0000 + hop * 12))
    a.s("s_lshl_b32", "s101", sLAYER, 6)
    a.s("s_add_u32", "s100", "s100", "s101")
    a.raw("  s_waitcnt lgkmcnt(0)")
    a.v("v_mov_b32", vT[7], "s96")
    a.v("v_mov_b32", vT[0], 0)
    set_exec(a, 1, 0)
    a.bstore(1, vT[7], vT[0], S_WS, "s100", 0)
    a.v("v_mov_b32", vT[7], "s98")
    a.bstore(1, vT[7], vT[0], S_WS, "s100", 4)
    a.v("v_mov_b32", vT[7], "s97")
    a.bstore(1, vT[7], vT[0], S_WS, "s100", 8)
    exec_all(a)


def sent_check(a, regs):
    acc = vT[7]
    rs = list(regs)
    a.v("v_max_u32", acc, rs[0], rs[1] if len(rs) > 1 else rs[0])
    rs = rs[2:]
    while rs:
        if len(rs) >= 2:
            a.v("v_max3_u32", acc, acc, rs[0], rs[1])
            rs = rs[2:]
        else:
            a.v("v_max_u32", acc, acc, rs[0])
            rs = rs[1:]
    a.v("v_cmp_eq_u32", "vcc", -1, acc)
    a.nop(1)


def poll(a, issue_loads, regs, hop=None):
    n = uid()
    pdiag(a, hop, 0)
    if hop is not None and PDL[hop]:
        a.s("s_sleep", PDL[hop])
    a.label(f"L_poll{n}")
    pdiag(a, hop, 1)
    issue_loads()
    a.wait(vm=0)
    sent_check(a, regs)
    a.s("s_cbranch_vccz", f"L_pdone{n}")
    a.s("s_sub_u32", sTO, sTO, 1)
    a.s("s_cmp_le_i32", sTO, 0)
    a.s("s_cbranch_scc1", f"L_pdone{n}")
    a.s("s_sleep", 1)
    a.s("s_branch", f"L_poll{n}")
    a.label(f"L_pdone{n}")
    pdiag(a, hop, 2)


def ipoll(a, groups, hop, post=None):
    i = uid()
    n = len(groups)
    M = [sr(68 + 2 * g, 2) for g in range(n)]

    def check():
        for g, (regs, _) in enumerate(groups):
            rs = [vr(r) for r in regs]
            if len(rs) == 1:
                acc = rs[0]
            else:
                acc = vT[6 + g % 2]
                if len(rs) == 2:
                    a.v("v_max_u32", acc, rs[0], rs[1])
                else:
                    a.v("v_max3_u32", acc, rs[0], rs[1], rs[2])
                    a.v("v_max_u32", acc, acc, rs[3])
            a.v("v_cmp_eq_u32", M[g], -1, acc)
        a.s("s_or_b64", "vcc", M[0], M[1])
        for g in range(2, n):
            a.s("s_or_b64", "vcc", "vcc", M[g])

    def issue():
        for g, (_, fn) in enumerate(groups):
            a.s("s_mov_b64", "exec", M[g])
            fn()
        exec_all(a)
    pdiag(a, hop, 0)
    if PDL[hop]:
        if post:
            a.s("s_cmp_eq_u32", sLAYER, 0)
            a.s("s_cbranch_scc1", f"L_ns{i}")
        a.s("s_sleep", PDL[hop])
        if post:
            a.label(f"L_ns{i}", pad=False)
    pdiag(a, hop, 1)
    for _, fn in groups:
        fn()
    if post:
        post()
        a.wait(vm=1)
    else:
        a.wait(vm=0)
    check()
    a.s("s_cbranch_scc0", f"L_id{i}")
    a.label(f"L_il{i}", pad=False)
    pdiag(a, hop, 1)
    issue()
    a.wait(vm=0)
    check()
    a.s("s_cbranch_scc0", f"L_id{i}")
    a.s("s_sub_u32", sTO, sTO, 1)
    a.s("s_cmp_gt_i32", sTO, 0)
    a.s("s_cbranch_scc1", f"L_il{i}")
    a.label(f"L_id{i}", pad=False)
    a.nop(2)
    pdiag(a, hop, 2)


def kreg(s, i, n=4, o=0):
    if s == 8:
        return vr(64 + 4 * i + o, n)
    return ar(32 * s + 4 * i + o, n)


def vreg(s, i, n=4, o=0):
    if s == 8:
        return vr(96 + 4 * i + o, n)
    if s < 4:
        return vr(VV + 32 * s + 4 * i + o, n)
    return ar(192 + 32 * (s - 4) + 4 * i + o, n)


def slot_loads(a, s, t, vic=0):
    a.s("s_add_u32", sT0, sKVB, t * TSTR)
    a.s("s_add_u32", sT1, sKVB, t * TSTR + 4096)
    n = 0
    if s in (6, 7):
        for half in range(2):
            srd, voff = ((S_K, vKOFF), (S_V, vVOFF))[half]
            for hi in range(2):
                a.s("s_add_u32", "m0", sLDSW, (s - 6) * 16384 + half * 8192 + hi * 4096)
                for i in range(4):
                    a.bload_lds(voff, srd, sT0 if hi == 0 else sT1, i * 1024, KVPOL)
        return 16
    for i in range(8):
        so = sT0 if i < 4 else sT1
        if vic and i < NV:
            if vic == 1:
                if i % 4 == 0:
                    a.s("s_add_u32", "m0", sVIC, (i // 4) * 4096)
                a.bload_lds(vKOFF, S_K, so, (i % 4) * 1024, KVPOL)
                n += 1
            continue
        a.bload(4, kreg(s, i), vKOFF, S_K, so, (i % 4) * 1024, KVPOL)
        n += 1
    for i in range(8):
        a.bload(4, vreg(s, i), vVOFF, S_V, sT0 if i < 4 else sT1, (i % 4) * 1024, KVPOL)
        n += 1
    return n


def victim_read(a, s):
    a.v("v_add_u32", vP[0], sVIC, vVOFF)
    for i in range(NV):
        a.ds_read(4, kreg(s, i), vP[0], i * 1024)


def tile(a, s):
    a.comment(f"---- tile slot {s}")
    lds = s in (6, 7)
    S = vT
    ST = 48

    def red(blks):
        for i, b in blks:
            a.dpp("v_mov_b32", S[i], vr(b), ctrl="quad_perm:[0,0,0,0]")
        for r in (1, 2, 3):
            for i, b in blks:
                a.dpp("v_add_f32", S[i], vr(b + r), S[i], ctrl=f"quad_perm:[{r},{r},{r},{r}]")
    if lds:
        base = (s - 6) * 16384
        for i in range(4):
            a.ds_read(4, vr(ST + 4 * i, 4), vLDS, base + i * 1024)
        a.wait(lgkm=0)
        for i in range(4):
            a.mfma(vr(VA + 4 * i, 4), vr(ST + 4 * i, 4), vr(VQ, 4), 0)
        for i in range(4):
            a.ds_read(4, vr(ST + 4 * i, 4), vLDS, base + (4 + i) * 1024)
        red([(i, VA + 4 * i) for i in range(4)])
        a.wait(lgkm=0)
        for i in range(4):
            a.mfma(vr(VA + 4 * i, 4), vr(ST + 4 * i, 4), vr(VQ, 4), 0)
        for i in range(4):
            a.ds_read(4, vr(ST + 4 * i, 4), vLDS, base + 8192 + i * 1024)
        red([(4 + i, VA + 4 * i) for i in range(4)])
    else:
        for i in range(8):
            a.mfma(vr(VA + 4 * i, 4), kreg(s, i), vr(VQ, 4), 0)
        red([(i, VA + 4 * i) for i in range(8)])
    SP = [vr(24 + 2 * e, 2) for e in range(4)]
    for i in range(0, 8, 2):
        round_pair(a, S[i], S[i + 1], vr(VA + i))
    if PK:
        for e in range(4):
            a.v("v_pk_mul_f32", SP[e], SP[e], "s[56:57]", mods="op_sel_hi:[1,0]")
    else:
        for i in range(8):
            a.v("v_mul_f32", S[i], sC, S[i])
    for i in range(0, 8, 2):
        round_pair(a, S[i], S[i + 1], vr(VA + i))
    tm, t2, alpha, mneg = vP
    a.v("v_max3_f32", tm, S[0], S[1], S[2])
    a.v("v_max3_f32", t2, S[3], S[4], S[5])
    a.v("v_max3_f32", tm, tm, S[6], S[7])
    a.v("v_max3_f32", tm, tm, t2, vM)
    a.v("v_mov_b32", t2, tm)
    a.v("v_permlane32_swap_b32", tm, t2)
    a.v("v_max_f32", tm, tm, t2)
    a.v("v_mov_b32", t2, tm)
    a.v("v_permlane16_swap_b32", tm, t2)
    a.v("v_max_f32", tm, tm, t2)
    a.v("v_sub_f32", alpha, vM, tm)
    a.v("v_mul_f32", alpha, sLOG2E, alpha)
    a.v("v_exp_f32", alpha, alpha)
    a.v("v_mov_b32", vM, tm)
    a.v("v_mul_f32", mneg, sLOG2E, tm)
    if PK:
        for e in range(4):
            a.v("v_pk_fma_f32", SP[e], SP[e], "s[56:57]", "v[22:23]",
                mods="op_sel:[0,1,1] op_sel_hi:[1,1,1] neg_lo:[0,0,1] neg_hi:[0,0,1]")
    else:
        for i in range(8):
            a.v("v_fma_f32", S[i], S[i], sLOG2E, "-" + mneg)
    for g in range(4):
        a.v("v_mov_b32_dpp", t2, alpha, mods=f"row_newbcast:{4*g} row_mask:{hex(1 << g)} bank_mask:0xf")
    for i in range(8):
        a.v("v_exp_f32", S[i], S[i])
    if PK:
        for e in range(4):
            a.v("v_pk_mul_f32", vr(VO + 2 * e, 2), vr(VO + 2 * e, 2), "v[20:21]", mods="op_sel:[0,1] op_sel_hi:[1,1]")
    else:
        for i in range(8):
            a.v("v_mul_f32", vr(VO + i), t2, vr(VO + i))
    X = lambda i: VA + 2 * i

    def mkx(i):
        a.v("v_cvt_pk_bf16_f32", vr(X(i) + 1), S[i], S[i])
        a.v("v_and_b32", vr(X(i)), MK0, vr(X(i) + 1))
        a.v("v_and_b32", vr(X(i) + 1), MK1, vr(X(i) + 1))

    def pv(i, vf):
        mfma16(a, vr(VO, 4), vr(X(i), 2), vf(0), vr(VO, 4))
        mfma16(a, vr(VO + 4, 4), vr(X(i), 2), vf(2), vr(VO + 4, 4))
    sums = [lambda: a.v("v_add_f32", tm, S[0], S[1]), lambda: a.v("v_add_f32", mneg, S[2], S[3]),
            lambda: a.v("v_add_f32", tm, tm, S[4]), lambda: a.v("v_add_f32", mneg, mneg, S[5]),
            lambda: a.v("v_add_f32", tm, tm, S[6]), lambda: a.v("v_add_f32", mneg, mneg, S[7]),
            lambda: a.v("v_mul_f32", vL, alpha, vL), lambda: a.v("v_add_f32", vL, vL, tm),
            lambda: a.v("v_add_f32", vL, vL, mneg)]
    if lds:
        for i in range(8):
            mkx(i)
        for f in sums:
            f()
        a.ds_read(4, vr(24, 4), vLDS, base + 8192 + 4 * 1024)
        a.ds_read(4, vr(28, 4), vLDS, base + 8192 + 5 * 1024)
        a.wait(lgkm=2)
        for i in range(2):
            pv(i, lambda o: vr(ST + 4 * i + o, 2))
        a.ds_read(4, vr(ST, 4), vLDS, base + 8192 + 6 * 1024)
        a.ds_read(4, vr(ST + 4, 4), vLDS, base + 8192 + 7 * 1024)
        for i in range(2, 4):
            pv(i, lambda o: vr(ST + 4 * i + o, 2))
        a.wait(lgkm=2)
        for i in range(4, 6):
            pv(i, lambda o: vr(24 + 4 * (i - 4) + o, 2))
        a.wait(lgkm=0)
        for i in range(6, 8):
            pv(i, lambda o: vr(ST + 4 * (i - 6) + o, 2))
    else:
        mkx(0)
        mkx(1)
        for i in range(8):
            pv(i, lambda o: vreg(s, i, 2, o))
            if i + 2 < 8:
                mkx(i + 2)
            for f in sums[i:i + 1] if i < 6 else sums[6:8] if i == 6 else sums[8:]:
                f()


RS = [0, 1, 2, 3, 4, 5] + ([8] if S9 else [])
STS = [6, 7] if S9 else []
if not S9:
    RS = [0, 1, 2, 3, 4, 5, 6, 7]
FILL = RS + STS
NR = len(RS)


class Sched:
    def __init__(self, a, layer):
        self.a, self.layer = a, layer
        self.out = [(s, 16) for s in FILL[-2:]] if layer == 0 else []
        self.lg = set()

    def T(self, s):
        idx = [i for i, (sl, n) in enumerate(self.out) if sl == s]
        if idx:
            i = idx[-1]
            self.a.wait(vm=min(63, sum(n for _, n in self.out[i + 1:])))
            del self.out[:i + 1]
        if self.lg and (s in self.lg or s in (6, 7)):
            self.a.wait(lgkm=0)
            self.lg.clear()
        tile(self.a, s)

    def R(self, s, t, vic=0):
        a = self.a
        assert not any(sl == s for sl, _ in self.out)
        if NOLD and self.layer:
            return
        if vic:
            victim_read(a, s)
            self.lg.add(s)
        if sum(n for _, n in self.out) > GRD:
            a.wait(vm=GRD)
            while self.out and sum(n for _, n in self.out[1:]) >= GRD:
                del self.out[0]
        self.out.append((s, slot_loads(a, s, t, vic)))


def passes(a):
    a.s("s_cmp_lg_u32", sLAYER, 0)
    a.s("s_cbranch_scc1", "L_pass2")
    for layer in range(2):
        S = Sched(a, layer)
        if layer:
            a.label("L_pass2")
        elif NV:
            victim_read(a, 0)
            S.lg.add(0)
        st = list(STS)
        for i, s in enumerate(RS):
            S.T(s)
            S.R(s, i if layer else len(FILL) + i, 2 if (NV and layer and s == 0) else 0)
            for p in SPOS:
                if p == i and st:
                    S.T(st.pop(0))
            if i >= ILV:
                S.T(RS[i - ILV])
        assert not st
        for s in RS[NR - ILV:]:
            S.T(s)
        if layer == 0:
            a.s("s_branch", "L_passend")
    a.label("L_passend")


def rows_gather_add(a, base_off, hop, pre=None):
    a.v("v_and_b32", vT[3], 7, vTID)
    a.v("v_lshlrev_b32", vT[3], 12, vT[3])
    a.v("v_bfe_u32", vT[4], vTID, 3, 3)
    a.v("v_lshl_add_u32", vT[3], vT[4], 4, vT[3])
    a.s("s_lshr_b32", sT3, sWR, 6)
    a.s("s_lshl_b32", sT3, sT3, 9)
    a.s("s_lshl_b32", sT4, sWV, 7)
    a.s("s_add_u32", sT3, sT3, sT4)
    a.s("s_add_u32", sT3, sT3, sLAY)
    a.s("s_add_u32", sT3, sT3, hex(base_off))
    mk = lambda j: (lambda: a.bload(4, vr(8 + 4 * j, 4), vT[3], S_WS, sT3, j * 2048, "sc1"))
    ipoll(a, [(range(8 + 4 * j, 12 + 4 * j), mk(j)) for j in range(2)], hop, pre)
    Y = [vr(8 + i) for i in range(4)]
    for i in range(4):
        a.v("v_add_f32", Y[i], Y[i], vr(12 + i))
    for ctrl in ("quad_perm:[1,0,3,2]", "quad_perm:[2,3,0,1]", "row_half_mirror"):
        for y in Y:
            a.dpp("v_add_f32", y, y, y, ctrl=ctrl)
    round_pair(a, Y[0], Y[1], vT[0])
    round_pair(a, Y[2], Y[3], vT[1])
    for i in range(4):
        a.v("v_add_f32", vr(XR + i), vr(XR + i), Y[i])
    round_pair(a, vr(XR), vr(XR + 1), vT[0])
    round_pair(a, vr(XR + 2), vr(XR + 3), vT[1])


def col_pos(a, dst, tmp):
    a.v("v_bfe_u32", dst, vTID, 4, 1)
    a.v("v_lshlrev_b32", dst, 7, dst)
    a.v("v_bfe_u32", tmp, vTID, 1, 3)
    a.v("v_lshl_add_u32", dst, tmp, 4, dst)
    a.v("v_and_b32", tmp, 1, vTID)
    a.v("v_lshl_add_u32", dst, tmp, 2, dst)
    a.s("s_bfe_u32", sT1, sWR, hex(2 | (2 << 16)))
    a.s("s_lshl_b32", sT1, sT1, 9)
    a.s("s_and_b32", sT2, sWR, 1)
    a.s("s_lshl_b32", sT2, sT2, 8)
    a.s("s_add_u32", sT1, sT1, sT2)
    a.s("s_and_b32", sT2, sWR, 2)
    a.s("s_lshl_b32", sT2, sT2, 2)
    a.s("s_add_u32", sT1, sT1, sT2)


def stats_wave(a, A):
    s1r, s2, t1, t2 = "v4", "v5", vT[0], vT[1]
    a.v("v_add_f32", s1r, A[0], A[1])
    a.v("v_mul_f32", s2, A[0], A[0])
    a.v("v_fmac_f32", s2, A[1], A[1])
    for x in A[2:]:
        a.v("v_add_f32", s1r, s1r, x)
        a.v("v_fmac_f32", s2, x, x)
    a.dpp("v_add_f32", s1r, s1r, s1r, ctrl="row_ror:8")
    a.dpp("v_add_f32", s2, s2, s2, ctrl="row_ror:8")
    for op in ("v_permlane16_swap_b32", "v_permlane32_swap_b32"):
        a.v("v_mov_b32", t1, s1r)
        a.v("v_mov_b32", t2, s2)
        a.v(op, s1r, t1)
        a.v(op, s2, t2)
        a.v("v_add_f32", s1r, s1r, t1)
        a.v("v_add_f32", s2, s2, t2)
    a.s("s_lshl_b32", sT4, sWV, 3)
    a.v("v_mov_b32", t1, sT4)
    set_exec(a, 1, 0)
    a.ds_write(2, t1, "v[4:5]", SC_ST)
    exec_all(a)


def stats_store(a, soff):
    a.v("v_mov_b32", vT[5], 0)
    a.ds_read(4, vr(8, 4), vT[5], SC_ST)
    a.ds_read(4, vr(12, 4), vT[5], SC_ST + 16)
    a.wait(lgkm=0)
    for e in range(2):
        a.v("v_add_f32", vr(8 + e), vr(8 + e), vr(10 + e))
        a.v("v_add_f32", vr(12 + e), vr(12 + e), vr(14 + e))
    for e in range(2):
        a.v("v_add_f32", vr(8 + e), vr(8 + e), vr(12 + e))
    for e in range(2):
        a.v("v_min_u32", vr(8 + e), SENT_FIX, vr(8 + e))
    set_exec(a, 1, 0)
    a.bstore(2, vr(8, 2), vT[5], S_WS, soff, 0, "sc1")
    exec_all(a)


def stats_finish(a, n8):
    m, r = "v4", "v5"
    for ctrl in ("quad_perm:[1,0,3,2]", "quad_perm:[2,3,0,1]", "row_half_mirror")[:3 if n8 else 2]:
        for x in (m, r):
            a.dpp("v_add_f32", x, x, x, ctrl=ctrl)
    a.v("v_mul_f32", m, hex(f32bits(1.0 / 512)), m)
    a.v("v_mul_f32", r, hex(f32bits(1.0 / 512)), r)
    a.v("v_fma_f32", r, "-" + m, m, r)
    a.v("v_max_f32", r, 0, r)
    round_pair(a, m, r, vT[0])
    a.v("v_add_f32", r, hex(f32bits(1e-5)), r)
    round_one(a, r, vT[0])
    a.v("v_sqrt_f32", r, r)
    round_one(a, r, vT[0])
    a.v("v_rcp_f32", r, r)


def issue_wQ_l0(a):
    n = uid()
    a.s("s_cmp_lg_u32", sLAYER, 0)
    a.s("s_cbranch_scc1", f"L_nwq{n}")
    issue_wQ(a, RAW_Q)
    a.label(f"L_nwq{n}", pad=False)


def combine_wg(a):
    a.comment("==== C0: WG combine")
    stamp(a, 2)
    t2 = vT[1]
    a.v("v_mov_b32", t2, vL)
    a.v("v_permlane32_swap_b32", vL, t2)
    a.v("v_add_f32", vL, vL, t2)
    a.v("v_mov_b32", t2, vL)
    a.v("v_permlane16_swap_b32", vL, t2)
    a.v("v_add_f32", vL, vL, t2)
    l = vT[0]
    a.v("v_and_b32", l, 63, vTID)
    a.v("v_bfe_u32", vT[2], l, 2, 2)
    a.s("s_lshl_b32", sT0, sWV, 5)
    a.v("v_lshl_add_u32", vT[3], vT[2], 3, sT0)
    a.v("v_lshlrev_b32", vT[4], 5, vTID)
    a.ds_write(4, vT[4], vr(VO, 4), SC_O)
    a.ds_write(4, vT[4], vr(VO + 4, 4), SC_O + 16)
    set_exec(a, 0x1111, 0)
    a.ds_write(2, vT[3], "v[4:5]", SC_ML)
    exec_all(a)
    a.s("s_lshl_b32", sT0, sWV, 3)
    a.v("v_mov_b32", vT[3], sT0)
    a.v("v_lshlrev_b32", vT[4], 3, vTID)
    a.s("s_lshr_b32", sT0, sWG, 5)
    a.s("s_lshl_b32", sT0, sT0, 2)
    a.s("s_add_u32", sT0, sT0, sWV)
    a.s("s_lshl_b32", sT0, sT0, 5)
    a.s("s_and_b32", sT1, sWG, 31)
    a.s("s_add_u32", sT0, sT0, sT1)
    a.s("s_lshl_b32", sT1, sT0, 9)
    a.s("s_add_u32", sT1, sT1, sLAY)
    a.s("s_add_u32", sT1, sT1, hex(PO))
    a.s("s_lshl_b32", sT2, sT0, 3)
    a.s("s_add_u32", sT2, sT2, sLAY)
    a.s("s_add_u32", sT2, sT2, hex(ML))
    a.wait(lgkm=0)
    a.barrier()
    mlr = [32, 34, 36, 38]
    orr = [40, 42, 44, 46]
    for w in range(4):
        a.ds_read(2, vr(mlr[w], 2), vT[3], SC_ML + w * 32)
        a.ds_read(2, vr(orr[w], 2), vT[4], SC_O + w * 2048)
    a.v("v_lshlrev_b32", vT[4], 3, l)
    a.v("v_mov_b32", vT[5], 0)
    a.wait(lgkm=0)
    Mg, Lg = vr(8), vr(9)
    a.v("v_max3_f32", Mg, vr(32), vr(34), vr(36))
    a.v("v_max_f32", Mg, Mg, vr(38))
    for w in range(4):
        a.v("v_sub_f32", vr(mlr[w]), vr(mlr[w]), Mg)
    for w in range(4):
        a.v("v_mul_f32", vr(mlr[w]), sLOG2E, vr(mlr[w]))
    for w in range(4):
        a.v("v_exp_f32", vr(mlr[w]), vr(mlr[w]))
    a.v("v_mul_f32", Lg, vr(32), vr(33))
    a.v("v_mul_f32", vr(10), vr(32), vr(40))
    a.v("v_mul_f32", vr(11), vr(32), vr(41))
    for w in range(1, 4):
        a.v("v_fmac_f32", Lg, vr(mlr[w]), vr(mlr[w] + 1))
        a.v("v_fmac_f32", vr(10), vr(mlr[w]), vr(orr[w]))
        a.v("v_fmac_f32", vr(11), vr(mlr[w]), vr(orr[w] + 1))
    for r in (10, 11, 8, 9):
        a.v("v_min_u32", vr(r), SENT_FIX, vr(r))
    a.bstore(2, "v[10:11]", vT[4], S_WS, sT1, 0, "sc1")
    set_exec(a, 1, 0)
    a.bstore(2, "v[8:9]", vT[5], S_WS, sT2, 0, "sc1")
    exec_all(a)


def stage_O(a):
    issue_wO(a, RAW_O)
    if WT:
        t = _Touch(a)
        issue_wG(t, 0)
        issue_wD(t, 0)
        a.s("s_cmp_lg_u32", sLAYER, 0)
        a.s("s_cbranch_scc1", "L_ntq")
        issue_wQ(t, 0)
        a.label("L_ntq", pad=False)
    stamp(a, 3)
    GO = list(range(8, 24)) + list(range(32, 48))
    a.s("s_lshr_b32", sT2, sWR, 4)
    a.s("s_lshl_b32", sT2, sT2, 1)
    a.s("s_lshr_b32", sT3, sWV, 1)
    a.s("s_add_u32", sT2, sT2, sT3)
    a.v("v_and_b32", vT[3], 127, vTID)
    a.v("v_lshlrev_b32", vT[3], 2, vT[3])
    a.v("v_and_b32", vT[4], 31, vTID)
    a.v("v_lshlrev_b32", vT[4], 3, vT[4])
    a.s("s_lshl_b32", sT3, sT2, 14)
    a.s("s_add_u32", sT3, sT3, sLAY)
    a.s("s_add_u32", sT3, sT3, hex(PO))
    a.s("s_lshl_b32", sT4, sT2, 8)
    a.s("s_add_u32", sT4, sT4, sLAY)
    a.s("s_add_u32", sT4, sT4, hex(ML))

    def loadsO():
        a.bload(2, "v[4:5]", vT[4], S_WS, sT4, 0, "sc1")
        for c in range(32):
            if c % 8 == 0:
                a.s("s_add_u32", sT0, sT3, (c // 8) * 4096)
            a.bload(1, vr(GO[c]), vT[3], S_WS, sT0, (c % 8) * 512, "sc1")
    poll(a, loadsO, [vr(r) for r in GO] + ["v4", "v5"], 0)
    mx, t2 = vT[0], vT[1]
    a.v("v_mov_b32", mx, vM)
    row_allreduce(a, "v_max_f32", [mx])
    a.v("v_mov_b32", t2, mx)
    a.v("v_permlane16_swap_b32", mx, t2)
    a.v("v_max_f32", mx, mx, t2)
    a.v("v_sub_f32", vM, vM, mx)
    a.v("v_mul_f32", vM, sLOG2E, vM)
    a.v("v_exp_f32", vM, vM)
    a.v("v_mul_f32", vL, vL, vM)
    row_allreduce(a, "v_add_f32", [vL])
    a.v("v_mov_b32", t2, vL)
    a.v("v_permlane16_swap_b32", vL, t2)
    a.v("v_add_f32", vL, vL, t2)
    a.v("v_rcp_f32", vL, vL)
    a.v("v_mul_f32", vM, vM, vL)
    for c in range(32):
        a.v("v_readlane_b32", sr(SW0 + c), vM, c)
    o0, o1 = vT[0], vT[1]
    a.v("v_mul_f32", o0, sr(SW0 + 0), vr(GO[0]))
    a.v("v_mul_f32", o1, sr(SW0 + 1), vr(GO[1]))
    for c in range(2, 32, 2):
        a.v("v_fmac_f32", o0, sr(SW0 + c), vr(GO[c]))
        a.v("v_fmac_f32", o1, sr(SW0 + c + 1), vr(GO[c + 1]))
    a.v("v_add_f32", o0, o0, o1)
    round_one(a, o0, vT[2])
    a.v("v_and_b32", vT[3], 0x3c, vTID)
    for i in range(4):
        a.v("v_add_u32", vr(12 + i), 64 * i, vT[3])
    for i in range(4):
        a.ds_bpermute(vr(8 + i), vr(12 + i), o0)
    issue_wG(a, RAW_G)
    a.v("v_lshrrev_b32", vT[3], 4, vTID)
    a.v("v_lshlrev_b32", vT[3], 7, vT[3])
    a.v("v_and_b32", vT[4], 3, vTID)
    a.v("v_lshl_add_u32", vT[3], vT[4], 5, vT[3])
    a.wait(lgkm=0)
    for i in range(4):
        a.v("v_lshrrev_b32", vr(12 + i), 16, vr(8 + i))
    acc = 16
    gemv(a, [(acc, [(RAW_O + 4 * i, vr(12 + i), vr(8 + i)) for i in range(4)])])
    for ctrl in ("row_ror:4", "row_ror:8"):
        for k in range(8):
            a.dpp("v_add_f32", vr(acc + k), vr(acc + k), vr(acc + k), ctrl=ctrl)
    set_exec(a, 0x000f000f, 0x000f000f)
    a.ds_write(4, vT[3], vr(acc, 4), SC_GO)
    a.ds_write(4, vT[3], vr(acc + 4, 4), SC_GO + 16)
    exec_all(a)
    issue_wD(a, RAW_D)
    xrow_addr(a, vT[5], False)
    a.ds_read(2, vr(XR, 2), vT[5], SC_X)
    a.ds_read(2, vr(XR + 2, 2), vT[5], SC_X + 256)
    a.wait(lgkm=0)
    a.barrier()
    a.s("s_cmp_lg_u32", sWV, 0)
    a.s("s_cbranch_scc1", "L_skipO")
    a.v("v_and_b32", vT[3], 31, vTID)
    a.v("v_lshlrev_b32", vT[3], 2, vT[3])
    col_pos(a, vT[4], vT[5])
    a.s("s_lshr_b32", sT0, sWR, 4)
    a.s("s_lshl_b32", sT0, sT0, 11)
    a.s("s_add_u32", sT0, sT0, sT1)
    a.s("s_add_u32", sT0, sT0, sLAY)
    a.s("s_add_u32", sT0, sT0, hex(YP))
    lds_sum16(a, vT[3], SC_GO, 128, [vr(8 + i) for i in range(16)], vT[0])
    a.v("v_min_u32", vT[0], SENT_FIX, vT[0])
    set_exec(a, 0xffffffff, 0)
    a.bstore(1, vT[0], vT[4], S_WS, sT0, 0, "sc1")
    exec_all(a)
    a.label("L_skipO")


def chain(a):
    stage_O(a)
    sGR, sGC, sHM = "s64", "s65", "s[66:67]"

    stamp(a, 4)
    g_block(a, sGR, sGC)
    a.s("s_bitcmp1_b32", sGR, 0)
    a.s("s_cselect_b64", sHM, -1, 0)
    a.s("s_mov_b64", "s[92:93]", 0)
    a.s("s_mov_b32", "s95", 0)
    a.v("v_mov_b32", vr(7), 0)
    a.s("s_cmp_lg_u32", sLAYER, 0)
    a.s("s_cbranch_scc1", "L_nocs")
    cg, cu = 8, 16
    red_addr(a, vT[5], 8, 1024, vT[6])
    a.wait(vm=2)
    gemv(a, [(cg, [(RAW_G + 4 * i, sONE_LO, sONE_HI) for i in range(2)]),
             (cu, [(RAW_G + 8 + 4 * i, sONE_LO, sONE_HI) for i in range(2)])])
    reduce8(a, [cg, cu], 8)
    set_exec(a, 0x00ff00ff, 0x00ff00ff)
    a.ds_write(2, vT[5], vr(cg, 2), SC_CT)
    a.ds_write(2, vT[5], vr(cu, 2), SC_CT + 256)
    exec_all(a)
    a.wait(lgkm=0)
    a.barrier()
    a.s("s_cmp_ge_u32", sWV, 2)
    a.s("s_cbranch_scc1", "L_nocs")
    a.s("s_and_b32", sT1, sWR, 63)
    a.s("s_cmp_ge_u32", sT1, 56)
    a.s("s_cbranch_scc1", "L_nocs")
    a.v("v_lshlrev_b32", vT[5], 2, vTID)
    sum4_lds(a, vT[5], SC_CT, 1024, [vr(8 + i) for i in range(4)], vT[0])
    a.v("v_min_u32", vr(6), SENT_FIX, vT[0])
    a.v("v_and_b32", vr(7), 63, vTID)
    a.v("v_lshlrev_b32", vr(7), 2, vr(7))
    a.s("s_mul_i32", sT0, sGR, 14336)
    a.s("s_mul_i32", sT1, sWV, 7168)
    a.s("s_add_u32", sT0, sT0, sT1)
    a.s("s_lshl_b32", sT1, sGC, 8)
    a.s("s_add_u32", sT0, sT0, sT1)
    a.s("s_add_u32", "s95", sT0, hex(CG))
    a.s("s_mov_b64", "s[92:93]", -1)
    a.label("L_nocs")

    def cs_store():
        a.s("s_mov_b64", "exec", "s[92:93]")
        a.bstore(1, vr(6), vr(7), S_WS, "s95", 0, "sc1")
        exec_all(a)
    rows_gather_add(a, YP, 1, cs_store)
    a.s("s_and_b32", sT0, sWR, 63)
    a.s("s_cmp_lt_u32", sT0, 56)
    a.s("s_cbranch_scc1", "L_doG")
    issue_wQ_l0(a)
    a.s("s_branch", "L_skipG")
    a.label("L_doG", pad=False)
    A = [vr(60), vr(61)]
    a.v("v_cndmask_b32", A[0], vr(XR), vr(XR + 2), sHM)
    a.v("v_cndmask_b32", A[1], vr(XR + 1), vr(XR + 3), sHM)
    a.v("v_lshrrev_b32", vr(62), 16, A[0])
    a.v("v_lshrrev_b32", vr(63), 16, A[1])
    ag, au = 8, 16
    gemv(a, [(ag, [(RAW_G + 4 * i, vr(62 + i), A[i]) for i in range(2)]),
             (au, [(RAW_G + 8 + 4 * i, vr(62 + i), A[i]) for i in range(2)])])
    reduce8(a, [ag, au], 8)
    red_addr(a, vT[5], 8, 512, vT[6])
    set_exec(a, 0x00ff00ff, 0x00ff00ff)
    a.ds_write(2, vT[5], vr(ag, 2), SC_RG)
    a.ds_write(2, vT[5], vr(au, 2), SC_RG + 256)
    exec_all(a)
    stats_wave(a, A)
    issue_wQ_l0(a)
    a.wait(lgkm=0)
    a.barrier()
    a.s("s_cmp_lt_u32", sWV, 2)
    a.s("s_cbranch_scc1", "L_pubG")
    a.s("s_cmp_eq_u32", sWV, 3)
    a.s("s_cbranch_scc1", "L_skipG")
    a.s("s_lshl_b32", sT0, sGC, 3)
    a.s("s_add_u32", sT0, sT0, sGR)
    a.s("s_lshl_b32", sT0, sT0, 6)
    a.s("s_lshl_b32", sT1, sLAYER, 14)
    a.s("s_add_u32", sT0, sT0, sT1)
    a.s("s_add_u32", sT0, sT0, hex(STG))
    stats_store(a, sT0)
    a.s("s_branch", "L_skipG")
    a.label("L_pubG", pad=False)
    a.v("v_lshlrev_b32", vT[5], 2, vTID)
    a.v("v_and_b32", vT[4], 63, vTID)
    a.v("v_lshlrev_b32", vT[4], 2, vT[4])
    a.s("s_mul_i32", sT0, sGR, 14336)
    a.s("s_mul_i32", sT1, sWV, 7168)
    a.s("s_add_u32", sT0, sT0, sT1)
    a.s("s_lshl_b32", sT1, sGC, 8)
    a.s("s_add_u32", sT0, sT0, sT1)
    a.s("s_add_u32", sT0, sT0, sLAY)
    a.s("s_add_u32", sT0, sT0, hex(GP))
    sum4_lds(a, vT[5], SC_RG, 512, [vr(8 + i) for i in range(4)], vT[0])
    a.v("v_min_u32", vT[0], SENT_FIX, vT[0])
    a.bstore(1, vT[0], vT[4], S_WS, sT0, 0, "sc1")
    a.label("L_skipG")

    stamp(a, 5)
    a.v("v_and_b32", vT[4], 31, vTID)
    a.v("v_min_u32", vT[3], 27, vT[4])
    a.v("v_lshlrev_b32", vT[3], 2, vT[3])
    a.v("v_bfe_u32", vT[5], vTID, 5, 1)
    a.s("s_mov_b32", sT4, 7168)
    a.v("v_mul_lo_u32", vT[5], vT[5], sT4)
    a.v("v_add_u32", vT[3], vT[3], vT[5])
    a.v("v_and_b32", vT[5], 7, vTID)
    a.v("v_lshlrev_b32", vT[5], 6, vT[5])
    a.s("s_lshr_b32", sT3, sWR, 4)
    a.s("s_lshl_b32", sT3, sT3, 2)
    a.s("s_add_u32", sT3, sT3, sWV)
    a.s("s_mul_i32", sT3, sT3, 112)
    a.s("s_lshr_b32", sT4, sT3, 8)
    a.s("s_lshl_b32", sT4, sT4, 9)
    a.s("s_lshl_b32", sT2, sLAYER, 14)
    a.s("s_add_u32", sT4, sT4, sT2)
    a.s("s_add_u32", sT4, sT4, hex(STG))
    a.s("s_add_u32", sT2, sT3, hex(CG))
    a.s("s_add_u32", sT3, sT3, sLAY)
    a.s("s_add_u32", sT3, sT3, hex(GP))

    def loadsC():
        for p in range(8):
            a.s("s_add_u32", sT0, sT2, p * 14336)
            a.bload(1, vr(16 + p), vT[3], S_WS, sT0, 0, "sc1")
    a.v("v_lshlrev_b32", vT[2], 2, vTID)
    a.s("s_cmp_eq_u32", sLAYER, 0)
    a.s("s_cbranch_scc1", "L_cs0")
    a.ds_read(1, vr(16), vT[2], SC_CS)
    a.s("s_branch", "L_cs1")
    a.label("L_cs0", pad=False)
    loadsC()
    a.label("L_cs1", pad=False)
    for p in range(8):
        a.s("s_add_u32", sr(86 + p), sT3, p * 14336)
    mk = lambda p: (lambda: a.bload(1, vr(8 + p), vT[3], S_WS, sr(86 + p), 0, "sc1"))
    ipoll(a, [((4, 5), lambda: a.bload(2, "v[4:5]", vT[5], S_WS, sT4, 0, "sc1"))] + [((8 + p,), mk(p)) for p in range(8)], 2)
    a.wait(lgkm=0)
    a.s("s_cmp_lg_u32", sLAYER, 0)
    a.s("s_cbranch_scc1", "L_cs2")
    sent_check(a, [vr(16 + i) for i in range(8)])
    a.s("s_cbranch_vccz", "L_csok")
    poll(a, loadsC, [vr(16 + i) for i in range(8)])
    a.label("L_csok", pad=False)
    for n in (4, 2, 1):
        for i in range(n):
            a.v("v_add_f32", vr(16 + i), vr(16 + i), vr(16 + i + n))
    a.ds_write(1, vT[2], vr(16), SC_CS)
    a.label("L_cs2", pad=False)
    for n in (4, 2, 1):
        for i in range(n):
            a.v("v_add_f32", vr(8 + i), vr(8 + i), vr(8 + i + n))
    stats_finish(a, True)
    g_, u_ = vr(8), vr(9)
    a.v("v_fma_f32", g_, "-v4", vr(16), g_)
    a.v("v_mul_f32", g_, g_, "v5")
    round_one(a, g_, vT[0])
    a.v("v_mov_b32", u_, g_)
    a.v("v_permlane32_swap_b32", g_, u_)
    a.v("v_cmp_lt_f32", "vcc", 0, g_)
    a.v("v_cndmask_b32", vT[0], 0, "1.0", "vcc")
    a.v("v_mul_f32", g_, g_, vT[0])
    a.v("v_mul_f32", g_, g_, u_)
    round_one(a, g_, vT[0])
    a.v("v_cmp_gt_u32", "vcc", 28, vT[4])
    a.v("v_cndmask_b32", g_, 0, g_, "vcc")
    a.v("v_and_b32", vT[3], 0x3c, vTID)
    a.v("v_add_u32", vT[5], 64, vT[3])
    a.ds_bpermute(vr(10), vT[3], g_)
    a.ds_bpermute(vr(11), vT[5], g_)
    red_addr(a, vT[5], 4, 128, vT[6])
    a.wait(lgkm=0)
    a.v("v_lshrrev_b32", vr(12), 16, vr(10))
    a.v("v_lshrrev_b32", vr(13), 16, vr(11))
    acc = 16
    gemv(a, [(acc, [(RAW_D + 4 * i, vr(12 + i), vr(10 + i)) for i in range(2)])])
    reduce8(a, [acc], 4)
    set_exec(a, 0x000f000f, 0x000f000f)
    a.ds_write(2, vT[5], vr(acc, 2), SC_RD)
    exec_all(a)
    a.wait(lgkm=0)
    a.barrier()
    a.s("s_cmp_lg_u32", sWV, 0)
    a.s("s_cbranch_scc1", "L_skipD")
    a.v("v_and_b32", vT[5], 31, vTID)
    a.v("v_lshlrev_b32", vT[5], 2, vT[5])
    col_pos(a, vT[4], vT[6])
    a.s("s_lshr_b32", sT0, sWR, 4)
    a.s("s_lshl_b32", sT0, sT0, 11)
    a.s("s_add_u32", sT0, sT0, sT1)
    a.s("s_add_u32", sT0, sT0, sLAY)
    a.s("s_add_u32", sT0, sT0, hex(DPP))
    sum4_lds(a, vT[5], SC_RD, 128, [vr(8 + i) for i in range(4)], vT[0])
    a.v("v_min_u32", vT[0], SENT_FIX, vT[0])
    set_exec(a, 0xffffffff, 0)
    a.bstore(1, vT[0], vT[4], S_WS, sT0, 0, "sc1")
    exec_all(a)
    a.label("L_skipD")
    stamp(a, 6)
    a.s("s_and_b32", sT0, sWR, 63)
    a.s("s_mul_i32", sT0, sT0, sLAYER)
    a.s("s_cmp_lg_u32", sT0, 0)
    a.s("s_cbranch_scc1", "L_end")

    a.s("s_lshr_b32", sT2, sWG, 5)
    a.s("s_lshl_b32", sT2, sT2, 11)
    a.s("s_add_u32", sQB, sT2, hex(LSTR + QP))
    a.s("s_cmp_lg_u32", sLAYER, 0)
    a.s("s_cbranch_scc1", "L_nocq")
    a.s("s_lshl_b32", sT3, sWV, 14)
    a.s("s_add_u32", sT2, sT3, sT2)
    a.s("s_add_u32", sT2, sT2, hex(CQ))
    a.bload(4, vr(16, 4), vVOFF, S_WS, sT2, 0, "sc1")
    a.bload(4, vr(20, 4), vVOFF, S_WS, sT2, 1024, "sc1")
    a.label("L_nocq")
    rows_gather_add(a, DPP, 3)
    a.s("s_cmp_eq_u32", sLAYER, 0)
    a.s("s_cbranch_scc1", "L_stQ")
    a.v("v_cvt_pk_bf16_f32", vT[0], vr(XR), vr(XR + 1))
    a.v("v_cvt_pk_bf16_f32", vT[1], vr(XR + 2), vr(XR + 3))
    xrow_addr(a, vT[3], True)
    a.v("v_lshrrev_b32", vT[3], 1, vT[3])
    set_exec(a, 0x01010101, 0x01010101)
    a.bstore(1, vT[0], vT[3], S_OUT, 0, 0)
    a.bstore(1, vT[1], vT[3], S_OUT, 0, 128)
    exec_all(a)
    stamp(a, 7)
    a.s("s_branch", "L_end")
    a.label("L_stQ", pad=False)
    A = [vr(XR + i) for i in range(4)]
    for i in range(4):
        a.v("v_lshrrev_b32", vr(60 + i), 16, A[i])
    acc = 8
    gemv(a, [(acc, [(RAW_Q + 4 * i, vr(60 + i), A[i]) for i in range(4)])])
    reduce8(a, [acc], 8)
    red_addr(a, vT[5], 8, 256, vT[6])
    set_exec(a, 0x00ff00ff, 0x00ff00ff)
    a.ds_write(2, vT[5], vr(acc, 2), SC_RQ)
    exec_all(a)
    stats_wave(a, A)
    a.s("s_lshl_b32", sT4, sWV, 11)
    a.v("v_add_u32", vT[4], sT4, vVOFF)
    a.ds_write(4, vT[4], vr(16, 4), SC_O)
    a.ds_write(4, vT[4], vr(20, 4), SC_O + 1024)
    xrow_addr(a, vT[5], False)
    set_exec(a, 0x01010101, 0x01010101)
    a.ds_write(2, vT[5], vr(XR, 2), SC_X)
    a.ds_write(2, vT[5], vr(XR + 2, 2), SC_X + 256)
    exec_all(a)
    a.wait(lgkm=0)
    a.barrier()
    a.s("s_cmp_lg_u32", sWV, 0)
    a.s("s_cbranch_scc1", "L_skipQ")
    q_publish(a, SC_RQ, hex(LSTR + QP))
    a.label("L_skipQ", pad=False)
    a.s("s_cmp_lg_u32", sWV, 1)
    a.s("s_cbranch_scc1", "L_nostq")
    a.s("s_and_b32", sT0, sWR, 63)
    a.s("s_lshl_b32", sT0, sT0, 2)
    a.s("s_lshr_b32", sT1, sWR, 6)
    a.s("s_add_u32", sT0, sT0, sT1)
    a.s("s_lshl_b32", sT0, sT0, 6)
    a.s("s_add_u32", sT0, sT0, hex(STQ))
    stats_store(a, sT0)
    a.label("L_nostq")
    stamp(a, 7)
    a.s("s_mov_b32", sLAYER, 1)
    a.s("s_mov_b32", sLAY, hex(LSTR))
    CP = [8, 16, 32, 40]
    for p in range(4):
        a.ds_read(4, vr(CP[p], 4), vVOFF, SC_O + p * 2048)
        a.ds_read(4, vr(CP[p] + 4, 4), vVOFF, SC_O + p * 2048 + 1024)
    a.v("v_and_b32", vT[5], 3, vTID)
    a.v("v_lshlrev_b32", vT[5], 6, vT[5])
    a.s("s_lshr_b32", sT4, sWG, 5)
    a.s("s_lshl_b32", sT4, sT4, 11)
    a.s("s_add_u32", sT4, sT4, hex(STQ))
    for p in range(4):
        a.s("s_add_u32", sr(86 + p), sQB, p * 16384)
    a.wait(lgkm=0)
    a.barrier()
    for k in range(8):
        a.v("v_add_f32", vr(8 + k), vr(8 + k), vr(16 + k))
        a.v("v_add_f32", vr(32 + k), vr(32 + k), vr(40 + k))
    for k in range(8):
        a.v("v_add_f32", vr(8 + k), vr(8 + k), vr(32 + k))
    mk = lambda j: (lambda: a.bload(4, vr(32 + 4 * j, 4), vVOFF, S_WS, sr(86 + j // 2), 1024 * (j % 2), "sc1"))
    ipoll(a, [((4, 5), lambda: a.bload(2, "v[4:5]", vT[5], S_WS, sT4, 0, "sc1"))] + [(range(32 + 4 * j, 36 + 4 * j), mk(j)) for j in range(8)], 4)
    for k in range(8):
        a.v("v_add_f32", vr(32 + k), vr(32 + k), vr(40 + k))
        a.v("v_add_f32", vr(48 + k), vr(48 + k), vr(56 + k))
    stats_finish(a, False)
    for k in range(8):
        a.v("v_add_f32", vr(32 + k), vr(32 + k), vr(48 + k))
    for k in range(8):
        a.v("v_fma_f32", vr(32 + k), "-v4", vr(8 + k), vr(32 + k))
    for k in range(8):
        a.v("v_mul_f32", vr(32 + k), vr(32 + k), "v5")
    for e in range(4):
        a.v("v_cvt_pk_bf16_f32", vr(VQ + e), vr(32 + 2 * e), vr(32 + 2 * e + 1))
    a.s("s_branch", "L_pass")


def fill(a, p, guard):
    if guard is not None:
        a.wait(vm=guard)
    slot_loads(a, FILL[p], p, 1 if (NV and FILL[p] == 0) else 0)


def gen_main():
    a = Asm()
    kn = NAME + "_kernel"
    a.raw(f".globl {kn}\n.p2align 8\n.type {kn},@function\n{kn}:")
    prologue(a)
    stamp(a, 0, False)
    if STAMPS == 1:
        a.raw("  s_getreg_b32 s98, hwreg(HW_REG_XCC_ID)")
        a.raw("  s_getreg_b32 s99, hwreg(HW_REG_HW_ID)")
        a.s("s_lshl_b32", "s100", sWG, 2)
        a.s("s_add_u32", "s100", "s100", sWV)
        a.s("s_lshl_b32", "s100", "s100", 7)
        a.s("s_add_u32", "s100", "s100", hex(0x280000 + 8 * 4))
        a.v("v_mov_b32", vT[6], "s98")
        a.v("v_mov_b32", vT[7], "s99")
        a.v("v_mov_b32", vT[0], 0)
        set_exec(a, 1, 0)
        a.bstore(2, "v[30:31]", vT[0], S_WS, "s100", 0)
        exec_all(a)
    a.v("v_lshlrev_b32", vT[4], 2, vTID)
    a.bload(1, "v4", vT[4], S_X, 0)
    a.s("s_lshr_b32", sT2, sWG, 5)
    a.s("s_lshl_b32", sT2, sT2, 11)
    a.s("s_add_u32", sQB, sT2, hex(Q0))
    a.s("s_lshl_b32", sKVB, sWG, 19)
    a.s("s_lshl_b32", sT2, sWV, 13)
    a.s("s_add_u32", sKVB, sKVB, sT2)
    a.s("s_mov_b32", sLAYER, 0)
    a.s("s_mov_b32", sLAY, 0)
    issue_wQ(a, RAW_Q)
    a.v("v_mov_b32", vr(12), 0)
    a.s("s_cmp_lg_u32", sWV, 0)
    a.s("s_cbranch_scc1", "L_clr_done")
    for i in range(4):
        a.v("v_mov_b32", vr(8 + i), -1)
    a.s("s_mul_i32", sT0, sWG, 3072)
    a.s("s_add_u32", sT1, sT0, hex(LSTR))
    for k in range(3):
        a.bstore(4, "v[8:11]", vVOFF, S_WS, sT0, k * 1024, "sc1")
        a.bstore(4, "v[8:11]", vVOFF, S_WS, sT1, k * 1024, "sc1")
    a.s("s_lshl_b32", sT0, sWG, 10)
    a.s("s_add_u32", sT0, sT0, hex(ZONE))
    a.bstore(4, "v[8:11]", vVOFF, S_WS, sT0, 0, "sc1")
    q_pos(a, vT[4], vT[6], hex(Q0))
    a.bstore(1, vr(8), vT[4], S_WS, sT0, 0, "sc1")
    a.ds_write(1, vr(12), vr(12), SC_QF)
    a.label("L_clr_done")
    fill(a, 0, None)
    a.s("s_cmp_lg_u32", sWV, 0)
    a.s("s_cbranch_scc1", "L_noat")
    a.wait(vm=16)
    a.v("v_mov_b32", vT[4], 1)
    set_exec(a, 1, 0)
    a.batomic_add(vT[4], vr(12), S_DBG, 0, "sc1")
    exec_all(a)
    a.label("L_noat")
    for p in range(1, NP):
        fill(a, p, None)
    a.wait(vm=16 * NP)
    a.v("v_and_b32", "v5", "0xffff0000", "v4")
    a.v("v_lshlrev_b32", "v4", 16, "v4")
    a.v("v_lshlrev_b32", vT[3], 3, vTID)
    a.ds_write(2, vT[3], "v[4:5]", SC_XF)
    a.s("s_lshr_b32", sT0, sWR, 6)
    a.s("s_cmp_lg_u32", sT0, sWV)
    a.s("s_cbranch_scc1", "L_nox")
    a.v("v_lshrrev_b32", vT[3], 1, vVOFF)
    a.ds_write(2, vT[3], "v[4:5]", SC_X)
    a.label("L_nox", pad=False)
    a.wait(lgkm=0)
    a.barrier()
    A = [vr(16 + i) for i in range(4)]
    xrow_addr(a, vT[5], True)
    ln_from_lds(a, SC_XF, vT[5], [0, 4, 256, 260], A, 8)
    for i in range(4):
        a.v("v_lshrrev_b32", vr(20 + i), 16, A[i])
    acc, cq = 48, 56
    gemv(a, [(acc, [(RAW_Q + 4 * i, vr(20 + i), A[i]) for i in range(4)]),
             (cq, [(RAW_Q + 4 * i, sONE_LO, sONE_HI) for i in range(4)])])
    reduce8(a, [acc, cq], 8)
    red_addr(a, vT[5], 8, 256, vT[6])
    set_exec(a, 0x00ff00ff, 0x00ff00ff)
    a.ds_write(2, vT[5], vr(acc, 2), SC_RQ)
    a.ds_write(2, vT[5], vr(cq, 2), SC_CT)
    exec_all(a)
    a.wait(lgkm=0)
    a.barrier()
    a.s("s_cmp_lg_u32", sWV, 0)
    a.s("s_cbranch_scc1", "L_w123")
    q_publish(a, SC_RQ, hex(Q0))
    sQS, sCNT = "s64", "s65"
    GS = CSTEP + 1
    NF = len(FILL)
    a.s("s_mov_b32", sQS, 0)
    a.v("v_mov_b32", vT[4], 0)

    def q_to_lds():
        q_gather_sum(a)
        a.v("v_mov_b32", vT[5], 1)
        a.v("v_mov_b32", vT[4], 0)
        a.ds_write(4, vVOFF, vr(VQ, 4), SC_Q)
        a.ds_write(1, vT[4], vT[5], SC_QF)

    def qcheck(lbl):
        a.s("s_cmp_lg_u32", sQS, 1)
        a.s("s_cbranch_scc1", lbl)
        sent_check(a, [vr(QG + i) for i in range(32)])
        a.s("s_cbranch_vccnz", lbl)
        q_to_lds()
        a.s("s_mov_b32", sQS, 2)
        a.label(lbl)
    assert GS + 2 <= NF - 1
    for p in range(NP, NF):
        a.wait(vm=SG + 8 if p == GS + 1 else SG)
        if p == CSTEP:
            a.raw(f"  s_load_dword {sCNT}, s[88:89], 0 glc")
        if p == GS:
            a.wait(lgkm=0)
            a.s("s_cmp_lt_u32", sCNT, 256)
            a.s("s_cbranch_scc1", "L_qng")
            a.s("s_mov_b32", sQS, 1)
            q_gather_issue(a)
            a.label("L_qng", pad=False)
        if p == GS + 2:
            qcheck("L_qc")
        fill(a, p, None)
    a.s("s_cmp_eq_u32", sQS, 2)
    a.s("s_cbranch_scc1", "L_pass")
    a.s("s_cmp_eq_u32", sQS, 1)
    a.s("s_cbranch_scc1", "L_cntok")
    a.v("v_mov_b32", vT[4], 0)
    a.label("L_cnt")
    a.bload(1, vT[0], vT[4], S_DBG, 0, 0, "sc1")
    a.wait(vm=0)
    a.v("v_readfirstlane_b32", sT0, vT[0])
    a.s("s_cmp_ge_u32", sT0, 256)
    a.s("s_cbranch_scc1", "L_cntok")
    a.s("s_sub_u32", sTO, sTO, 1)
    a.s("s_cmp_le_i32", sTO, 0)
    a.s("s_cbranch_scc1", "L_cntok")
    a.s("s_sleep", 2)
    a.s("s_branch", "L_cnt")
    a.label("L_cntok")
    poll(a, lambda: q_gather_issue(a), [vr(QG + i) for i in range(32)])
    q_to_lds()
    a.s("s_branch", "L_pass")
    a.label("L_w123")
    a.s("s_cmp_lg_u32", sWV, 1)
    a.s("s_cbranch_scc1", "L_w23")
    q_publish(a, SC_CT, hex(CQ))
    a.label("L_w23")
    for p in range(NP, NF):
        fill(a, p, SG)
    a.v("v_mov_b32", vT[5], 0)
    a.label("L_qf")
    a.ds_read(1, vT[4], vT[5], SC_QF)
    a.wait(lgkm=0)
    a.v("v_readfirstlane_b32", sT0, vT[4])
    a.s("s_cmp_lg_u32", sT0, 0)
    a.s("s_cbranch_scc1", "L_qfok")
    a.s("s_sub_u32", sTO, sTO, 1)
    a.s("s_cmp_le_i32", sTO, 0)
    a.s("s_cbranch_scc1", "L_qfok")
    a.s("s_sleep", 1)
    a.s("s_branch", "L_qf")
    a.label("L_qfok")
    a.ds_read(4, vr(VQ, 4), vVOFF, SC_Q)
    a.wait(lgkm=0)

    a.label("L_pass")
    stamp(a, 1)
    a.v("v_mov_b32", vM, "0xff7fffff")
    a.v("v_mov_b32", vL, 0)
    a.v("v_and_b32", vP[0], 3, vTID)
    a.v("v_lshlrev_b32", vP[0], 4, vP[0])
    a.v("v_lshlrev_b64", "v[6:7]", vP[0], sFFFF)
    for i in range(8):
        a.v("v_mov_b32", vr(VO + i), 0)
    passes(a)
    combine_wg(a)
    chain(a)
    a.label("L_end", pad=False)
    a.raw("  s_endpgm")
    return a.text()


def kd(name, nv, acc):
    return f""".amdhsa_kernel {name}
  .amdhsa_next_free_vgpr {nv}
  .amdhsa_next_free_sgpr 102
  .amdhsa_accum_offset {acc}
  .amdhsa_group_segment_fixed_size 0
  .amdhsa_kernarg_size 96
  .amdhsa_user_sgpr_count 2
  .amdhsa_user_sgpr_kernarg_segment_ptr 1
  .amdhsa_system_sgpr_workgroup_id_x 1
.end_amdhsa_kernel
"""


def main():
    ref = open(f"cdna_kernels/{NAME}.s.ref").read()
    head = []
    for line in ref.splitlines():
        if line.startswith("; @launch"):
            break
        head.append(line)
    out = "\n".join(head) + "\n"
    out += "; @launch grid=(256,1,1) block=(256,1,1) lds=163840\n"
    out += '.amdgcn_target "amdgcn-amd-amdhsa--gfx950"\n.text\n'
    out += gen_main()
    out += '.section .rodata,"a"\n.p2align 6\n'
    out += kd(NAME + "_kernel", 512, 256)
    dst = sys.argv[1] if len(sys.argv) > 1 else f"cdna_kernels/{NAME}.s"
    open(dst, "w").write(out)
    print("wrote", dst, len(out), "bytes")


if __name__ == "__main__":
    main()
```
